```python
import torch

def _softmax(x, axis=-1):
    return torch.softmax(x, dim=axis)
def _gelu(x):
    return torch.nn.functional.gelu(x, approximate="tanh")
def _silu(x):
    return torch.nn.functional.silu(x)
def _sigmoid(x):
    return torch.sigmoid(x)
def _layernorm(x, axis=-1, eps=1e-5):
    m = x.mean(dim=axis, keepdim=True)
    v = x.var(dim=axis, keepdim=True, unbiased=False)
    return (x - m) / torch.sqrt(v + eps)
def _scatter_add(tgt, idx, src, axis=0):
    return tgt.clone().index_add_(axis, idx, src)
def _segment_sum(src, seg, n):
    out = torch.zeros((n,) + src.shape[1:], dtype=src.dtype)
    return out.index_add_(0, seg, src)
def _pad(x, pw):
    flat = tuple(v for pair in reversed(pw) for v in pair)
    return torch.nn.functional.pad(x, flat)

kernel_name = 'gated_mix__sliding_local_dilated__moe_arch_mod__prompt'

def setup_inputs():

    _w = (lambda a: (lambda t: t.to(torch.bfloat16) if t.is_floating_point() else t)(torch.as_tensor(a)))
    def _A_setup():
        B, S, D = 1, 2048, 640
        return {
            "x": _w((lambda *s: torch.randn(*s, dtype=torch.bfloat16) * 0.05)(B, S, D)),
            "wqkv": _w((lambda *s: torch.randn(*s, dtype=torch.bfloat16) * 0.8)(D, 3 * D)),
            "wo": _w((lambda *s: torch.randn(*s, dtype=torch.bfloat16) * 0.05)(D, D)),
        }
    _A_in = _A_setup()

    def _B_setup():
        B, S, D, F, C = 1, 2048, 640, 1728, 2
        return {
            "x": _w((lambda *s: torch.randn(*s, dtype=torch.bfloat16) * 0.05)(B, S, D)),
            "w_r": _w((lambda *s: torch.randn(*s, dtype=torch.bfloat16) * 1.6)(D)),
            "w_gate": _w((lambda *s: torch.randn(*s, dtype=torch.bfloat16) * 0.4)(D, F)),
            "w_up": _w((lambda *s: torch.randn(*s, dtype=torch.bfloat16) * 0.4)(D, F)),
            "w_down": _w((lambda *s: torch.randn(*s, dtype=torch.bfloat16) * 0.4)(F, D)),
        }
    _B_in = _B_setup()

    return {
        "A_x": _A_in["x"],
        "A_wqkv": _A_in["wqkv"],
        "A_wo": _A_in["wo"],
        "B_x": _B_in["x"],
        "B_w_r": _B_in["w_r"],
        "B_w_gate": _B_in["w_gate"],
        "B_w_up": _B_in["w_up"],
        "B_w_down": _B_in["w_down"],
        "gate_w": _w((lambda *s: torch.randn(*s, dtype=torch.bfloat16) * 0.05)(640) * 16.0),
    }

def reference(A_x, A_wqkv, A_wo, B_x, B_w_r, B_w_gate, B_w_up, B_w_down, gate_w):
    def _A_ref(x, wqkv, wo):
        B, S, D = x.shape
        H = 32; Dh = D // H
        W, dil = 8, 2
        qkv = (lambda x, *d: x.permute(*d))((x @ wqkv).reshape(B, S, 3, H, Dh), 2, 0, 3, 1, 4)
        q, k, v = qkv[0], qkv[1], qkv[2]
        scale = Dh ** -0.5
        pos = torch.arange(S)
        off = torch.arange(W) * dil
        idx = pos[:, None] - off[None, :]
        mask = idx >= 0
        idx_c = torch.where(mask, idx, 0).reshape(-1)
        kg = k[:, :, idx_c, :].reshape(B, H, S, W, Dh)
        vg = v[:, :, idx_c, :].reshape(B, H, S, W, Dh)
        logits = torch.einsum("bhsd,bhswd->bhsw", q, kg) * scale
        logits = torch.where(mask[None, None, :, :], logits, -1e9)
        attn = _softmax(logits, axis=-1)
        o = torch.einsum("bhsw,bhswd->bhsd", attn, vg)
        return (lambda x, *d: x.permute(*d))(o, 0, 2, 1, 3).reshape(B, S, D) @ wo

    def _B_ref(x, w_r, w_gate, w_up, w_down):
        B, S, D = x.shape
        C = 2
        r = x @ w_r
        idx = torch.argsort(-r, axis=-1)[:, :C]
        idx_e = (lambda x, n, axis: torch.repeat_interleave(x, n, dim=axis))(idx.reshape(B, C, 1), D, axis=2)
        x_sel = (lambda x, i, axis: torch.take_along_dim(x, i, dim=axis))(x, idx_e, axis=1)
        g = _silu(x_sel @ w_gate)
        u = x_sel @ w_up
        y = (g * u) @ w_down
        r_sel = _sigmoid((lambda x, i, axis: torch.take_along_dim(x, i, dim=axis))(r, idx, axis=1))
        y = y * r_sel.reshape(B, C, 1)
        b_off = (torch.arange(B) * S).reshape(B, 1)
        flat_idx = (idx + b_off).reshape(B * C)
        zero = (x * 0.0).reshape(B * S, D)
        upd = _scatter_add(zero, flat_idx, y.reshape(B * C, D), axis=0)
        return x + upd.reshape(B, S, D)

    x = A_x
    g = _sigmoid((x * gate_w).sum(-1, keepdims=True))
    a = _A_ref(x, A_wqkv, A_wo)
    b = _B_ref(x, B_w_r, B_w_gate, B_w_up, B_w_down)
    return g * a + (1 - g) * b
```

```python
class Asm:
    def __init__(self):
        self.lines = []
        self._lbl = 0

    def __call__(self, s):
        for ln in s.strip("\n").split("\n"):
            self.lines.append("    " + ln.strip())

    def raw(self, s):
        self.lines.append(s)

    def label(self, name):
        self.lines.append(name + ":")

    def comment(self, s):
        self.lines.append("    ; " + s)

    def newlabel(self, base="L"):
        self._lbl += 1
        return "%s_%d" % (base, self._lbl)

    def text(self):
        return "\n".join(self.lines) + "\n"


class RegAlloc:
    def __init__(self, prefix, start=0, limit=256):
        self.prefix = prefix
        self.next = start
        self.limit = limit
        self.high = start

    def alloc(self, n=1, align=None):
        if align is None:
            align = 1 if n == 1 else (2 if n == 2 else 4)
        r = (self.next + align - 1) // align * align
        self.next = r + n
        assert self.next <= self.limit, "out of %s registers" % self.prefix
        self.high = max(self.high, self.next)
        return r

    def mark(self):
        return self.next

    def release(self, mark):
        self.next = mark


def vr(base, n=1):
    return "v%d" % base if n == 1 else "v[%d:%d]" % (base, base + n - 1)


def sr(base, n=1):
    return "s%d" % base if n == 1 else "s[%d:%d]" % (base, base + n - 1)


class LgkmQueue:
    def __init__(self, asm):
        self.asm = asm
        self.q = []

    def issue(self, tag):
        self.q.append(tag)

    def need(self, *tags):
        last = -1
        for i, t in enumerate(self.q):
            if t in tags:
                last = i
        if last < 0:
            return
        n = len(self.q) - 1 - last
        n = min(n, 15)
        self.asm("s_waitcnt lgkmcnt(%d)" % n)
        self.q = self.q[len(self.q) - n:] if n else []

    def drain(self, emit=True):
        if emit:
            self.asm("s_waitcnt lgkmcnt(0)")
        self.q = []
```

```python
import os
import struct
import sys

sys.path.insert(0, os.path.dirname(os.path.abspath(__file__)))
from asmdsl import Asm, RegAlloc, LgkmQueue, vr, sr

NAME = "gated_mix__sliding_local_dilated__moe_arch_mod__prompt"
STAMP = int(os.environ.get("STAMP", "0"))
EXTRA_EMPTY = int(os.environ.get("EXTRA_EMPTY", "0"))


def P(name, default):
    return int(os.environ.get(name, str(default)))


O_OFF = 0x100000
O_BYTES = 128 * 20480
G_OFF = 0x1000
SEL_OFF = 0x0
YP_OFF = 0x10000
NSL = 54
YP_BYTES = NSL * 2 * 640 * 4
STAMP_OFF = 0x400000

X_BYTES = 2048 * 1280
NEG = 0xF149F2CA
LOG2E = 0x3FB8AA3B


def f32bits(x):
    return struct.unpack("<I", struct.pack("<f", x))[0]


SCALE_L2E = f32bits((20 ** -0.5) * 1.4426950408889634)

HEADER = open(os.path.join(os.path.dirname(os.path.abspath(__file__)), "..", NAME + ".s.ref")).read().split("\n")
HEADER = [l for l in HEADER if l.startswith(";") and "@launch" not in l]


class R:
    def __init__(self, p, i):
        self.p, self.i = p, i

    def __str__(self):
        return "%s%d" % (self.p, self.i)

    def __format__(self, spec):
        return str(self)

    def __call__(self, n):
        return "%s[%d:%d]" % (self.p, self.i, self.i + n - 1)

    def __add__(self, k):
        return R(self.p, self.i + k)


class RA(RegAlloc):
    def a(self, n=1, align=None):
        return R(self.prefix, self.alloc(n, align))

    def many(self, k, n=1):
        return [self.a(n) for _ in range(k)]


def srd(a, d, base, nbytes, add=0):
    if add:
        a(f"s_add_u32 {d}, {base}, 0x{add:x}")
        a(f"s_addc_u32 {d+1}, {base+1}, 0")
    else:
        a(f"s_mov_b32 {d}, {base}")
        a(f"s_mov_b32 {d+1}, {base+1}")
    a(f"s_mov_b32 {d+2}, 0x{nbytes:x}")
    a(f"s_mov_b32 {d+3}, 0x20000")


STB = 84
STAMP_SEL = os.environ.get("STAMPS", "").split(",")


def stamp(a, name):
    if not STAMP:
        return
    if isinstance(name, int):
        a("s_memrealtime %s" % sr(STB + 2 * name, 2))
    elif name in STAMP_SEL:
        a("s_memrealtime %s" % sr(STB + 2 * (1 + STAMP_SEL.index(name)), 2))
    if not isinstance(name, int) and ("T" + name) in STAMP_SEL:
        a("s_memtime %s" % sr(STB + 2 * (1 + STAMP_SEL.index("T" + name)), 2))


def stamp_init(a):
    if STAMP:
        for i in range(8):
            a("s_mov_b64 %s, 0" % sr(STB + 2 * i, 2))
        stamp(a, 0)


def stamp_flush(a, kidx, s_ws, lbl):
    if not STAMP:
        return
    stamp(a, "fin")
    if P("ENDW", 1):
        a("s_waitcnt vmcnt(0)")
    stamp(a, 7)
    if P("AMP", 0):
        k = P("AMPK", 7)
        a("s_waitcnt lgkmcnt(0)")
        if P("AMPC", 0):
            a("s_cmp_lt_u32 s2, 64")
            a("s_cbranch_scc%d %s" % (1 if P("AMPC", 0) == 1 else 0, lbl))
        a("s_cmp_eq_u32 %s, 0" % sr(STB + 2 * k))
        a("s_cbranch_scc1 %s" % lbl)
        a("s_sub_u32 s82, %s, %s" % (sr(STB + 2 * k), sr(STB)))
        a("s_mul_i32 s82, s82, %d" % P("AMP", 0))
        a("s_min_u32 s82, s82, 20000")
        a.label("K_AMP")
        a("s_memrealtime %s" % sr(STB + 2, 2))
        a("s_waitcnt lgkmcnt(0)")
        a("s_sub_u32 s83, %s, %s" % (sr(STB + 2), sr(STB)))
        a("s_cmp_lt_u32 s83, s82")
        a("s_cbranch_scc1 K_AMP")
        a.label(lbl)
        return
    a("s_mov_b64 exec, -1")
    a("v_cmp_eq_u32 vcc, %d, v0" % (64 * P("STAMP_WAVE", 0)))
    a("s_and_saveexec_b64 s[82:83], vcc")
    a("s_cbranch_execz %s" % lbl)
    a("s_waitcnt lgkmcnt(0)")
    if P("DBGSTAMP", 0):
        a("v_mov_b32 v1, 0")
        for i in range(8):
            a("v_mov_b32 v2, %s" % sr(STB + 2 * i))
            a(f"global_atomic_umax v1, v2, {(s_ws+(-2))(2)} offset:{i*4 - 128}")
        a("v_not_b32 v2, %s" % sr(STB))
        a(f"global_atomic_umax v1, v2, {(s_ws+(-2))(2)} offset:{32 - 128}")
        a.label(lbl)
        return
    a("s_lshl_b32 s82, s2, 6")
    a("s_add_u32 s82, s82, 0x%x" % (STAMP_OFF + kidx * 256 * 64))
    a("v_mov_b32 v1, s82")
    for i in range(8):
        a("v_mov_b32 v2, %s" % sr(STB + 2 * i))
        a("v_mov_b32 v3, %s" % sr(STB + 2 * i + 1))
        a(f"global_store_dwordx2 v1, v[2:3], {s_ws(2)} offset:{i*8}")
    a.label(lbl)


def wave_max_u32(a, v, t, sdst, stmp):
    src = v
    for dpp in ("quad_perm:[1,0,3,2]", "quad_perm:[2,3,0,1]", "row_half_mirror", "row_mirror"):
        a("s_nop 1")
        a(f"v_max_u32_dpp {t}, {src}, {src} {dpp} row_mask:0xf bank_mask:0xf")
        src = t
    a("s_nop 1")
    a(f"v_readlane_b32 {sdst}, {t}, 0")
    a(f"v_readlane_b32 {stmp}, {t}, 16")
    a(f"v_readlane_b32 {stmp+1}, {t}, 32")
    a(f"v_readlane_b32 {stmp+2}, {t}, 48")
    a("s_nop 3")
    a(f"s_max_u32 {sdst}, {sdst}, {stmp}")
    a(f"s_max_u32 {stmp+1}, {stmp+1}, {stmp+2}")
    a(f"s_max_u32 {sdst}, {sdst}, {stmp+1}")


def wave_top2(a, v, t, sk1, sk2, stmp):
    wave_max_u32(a, v, t, sk1, stmp)
    a(f"v_cmp_ne_u32 vcc, {sk1}, {v}")
    a("s_nop 1")
    a(f"v_cndmask_b32 {v}, 0, {v}, vcc")
    wave_max_u32(a, v, t, sk2, stmp)


def bf16r(a, d, s):
    a(f"v_cvt_pk_bf16_f32 {d}, {s}, {s}")
    a(f"v_lshlrev_b32 {d}, 16, {d}")


def sigmoid(a, d, s, t):
    a(f"v_mul_f32 {t}, 0x{LOG2E ^ 0x80000000:x}, {s}")
    a(f"v_exp_f32 {t}, {t}")
    a("s_nop 0")
    a(f"v_add_f32 {t}, 1.0, {t}")
    a(f"v_rcp_f32 {d}, {t}")
    a("s_nop 0")


MFMA = "v_mfma_f32_16x16x32_bf16"
```

```python
from common import *

KNAME = NAME + "_kernel"
SC_POLL = os.environ.get("SC_POLL", "sc1")
SC_FLAG = os.environ.get("SC_FLAG", "sc1")
SC_ST = os.environ.get("SC_ST", "sc1")
SC_LD = os.environ.get("SC_LD", "sc1")
FNT = os.environ.get("FNT", "")
FNTD = os.environ.get("FNTD", FNT)
FL_OFF = 0x80000
YFL = 160 * 256
GW0 = 24
MT = 12
MH = 6
RROWS = (MT - 1) * 16
XREG = MT * 2048
SLOT = XREG + 16384
LA = 2
NS = 3
NCH = 10
PITCH = 272
TP = 16 * PITCH
QKV_BASE = 2 * SLOT
WO_L = 0
STG = 140288
SP = 144
YB = STG + 8 * 16 * SP
LDS_BYTES = 4 * SLOT
SPIN = 0x20000
ZW2 = 48
ZW = 16


def gen(a):
    a.raw(".p2align 8")
    a.raw(f".globl {KNAME}")
    a.raw(f".type {KNAME},@function")
    a.label(KNAME)
    S = RA("s", 3, 82 if STAMP else 100)
    V = RA("v", 1, 256)
    s_tmp = S.a()
    s_px = S.a(4)
    s_pws = S.a(4)
    s_pwo = S.a(2)
    s_po = S.a(2)
    sX, sW, sO, sWO = S.many(4, 4)
    s_xcd, s_i, s_w, s_rt, s_hg, s_t2, s_n = S.many(7)
    s_half = S.a()
    s_fl = S.a()
    s_pc = S.a(2)
    v_lane, v_t0, v_t1, v_t2, v_t3, v_pf, v_smp = V.many(7)
    DBG, WS = s_pws, s_pws + 2

    a("s_cmp_ge_u32 s2, 256")
    a("s_cbranch_scc1 K_EXIT")
    a(f"s_load_dwordx4 {s_px(4)}, s[0:1], 0")
    a(f"s_load_dwordx4 {s_pws(4)}, s[0:1], 80")
    a(f"s_load_dwordx2 {s_pwo(2)}, s[0:1], 16")
    a(f"s_load_dwordx2 {s_po(2)}, s[0:1], 72")
    stamp_init(a)
    if P("SKEW", 0):
        a("s_and_b32 s3, s2, 7")
        a(f"s_cmp_lg_u32 s3, {P('SKEWX', 4)}")
        a("s_cbranch_scc1 K_NOSKEW")
        a(f"s_sleep {P('SKEW', 0)}")
        a.label("K_NOSKEW")
    if P("DBGSTAMP", 0):
        a("s_waitcnt lgkmcnt(0)")
        a(f"s_add_u32 {DBG}, {DBG}, 128")
        a(f"s_addc_u32 {DBG+1}, {DBG+1}, 0")
    a(f"s_getpc_b64 {s_pc(2)}")
    a.label("K_PC")
    CPF = P("CPF", 1)
    if CPF == 0:
        a(f"v_lshlrev_b32 {v_t0}, 7, v0")
        a(f"v_min_u32 {v_t0}, K_CODE_END-K_PC-4, {v_t0}")
        a("v_cmp_gt_u32 vcc, (K_CODE_END-K_PC+127)/128, v0")
        a("s_and_saveexec_b64 %s, vcc" % sX(2))
        a("s_cbranch_execz K_NOPF")
        a(f"global_load_dword {v_pf}, {v_t0}, {s_pc(2)}")
    elif CPF == 1:
        a("s_bfe_u32 s3, s2, 0x30003")
        a("s_lshl_b32 s3, s3, 5")
        a("s_sub_u32 s3, s3, 256")
        a(f"v_add_u32 {v_t0}, s3, v0")
        a(f"v_lshlrev_b32 {v_t0}, 7, {v_t0}")
        a(f"v_min_u32 {v_t0}, K_CODE_END-K_PC-4, {v_t0}")
        a(f"v_lshrrev_b32 {v_t1}, 5, v0")
        a(f"v_cmp_eq_u32 vcc, 8, {v_t1}")
        a("s_and_saveexec_b64 %s, vcc" % sX(2))
        a("s_cbranch_execz K_NOPF")
        a(f"global_load_dword {v_pf}, {v_t0}, {s_pc(2)}")
    a.label("K_NOPF")
    a("s_mov_b64 exec, -1")
    a(f"v_lshrrev_b32 {v_t0}, 6, v0")
    a(f"v_and_b32 {v_lane}, 63, v0")
    a(f"v_readfirstlane_b32 {s_w}, {v_t0}")
    a(f"v_mov_b32 {v_smp}, 0")
    a(f"v_mov_b32 {v_t1}, {YB + 32}")
    a(f"ds_write2_b32 {v_t1}, {v_smp}, {v_smp} offset0:0 offset1:1")
    a(f"ds_write2_b32 {v_t1}, {v_smp}, {v_smp} offset0:2 offset1:3")
    a(f"ds_write2_b32 {v_t1}, {v_smp}, {v_smp} offset0:4 offset1:5")
    a(f"s_and_b32 {s_xcd}, s2, 7")
    a(f"s_lshr_b32 {s_i}, s2, 3")
    if P("WSWAP", 1):
        a(f"s_xor_b32 {s_w}, {s_w}, 4")
    a(f"s_lshr_b32 {s_n}, {s_i}, 3")
    a(f"s_lshl_b32 {s_n}, {s_n}, 2")
    a(f"s_and_b32 {s_tmp}, {s_i}, 3")
    a(f"s_add_u32 {s_n}, {s_n}, {s_tmp}")
    a(f"s_add_u32 {s_n}, {s_n}, 4")
    a(f"s_bitcmp1_b32 {s_i}, 2")
    a(f"s_cselect_b32 {s_n}, -1, {s_n}")
    a(f"s_cmp_lt_u32 {s_i}, 8")
    a(f"s_cselect_b32 {s_n}, {s_i}, {s_n}")
    s_rt2, s_ct = S.many(2)
    a(f"s_lshl_b32 {s_rt2}, {s_xcd}, 1")
    a(f"s_cmp_ge_u32 {s_n}, 10")
    a(f"s_addc_u32 {s_rt2}, {s_rt2}, 0")
    a(f"s_sub_u32 {s_ct}, {s_n}, 10")
    a(f"s_cmp_ge_u32 {s_n}, 10")
    a(f"s_cselect_b32 {s_ct}, {s_ct}, {s_n}")
    s_mb = S.a()
    a(f"s_mul_i32 {s_mb}, {s_xcd}, 20")
    a(f"s_add_u32 {s_mb}, {s_mb}, {s_n}")
    a(f"s_and_b32 {s_mb}, {s_mb}, 255")
    a(f"s_lshl_b32 {s_mb}, {s_mb}, 8")
    a(f"s_add_u32 {s_mb}, {s_mb}, {FL_OFF}")
    a(f"s_cmp_lt_u32 {s_i}, 8")
    a("s_cbranch_scc1 K_AUX")
    mS, mV = S.mark(), V.mark()

    def zpoll(k):
        a(f"v_mov_b32 {v_t2}, {ZW2*4}")
        a(f"s_mov_b32 {s_tmp}, {SPIN}")
        a.label(f"K_ZPOLL{k}")
        a(f"v_readfirstlane_b32 {s_t2}, {v_smp}")
        a("s_nop 3")
        a(f"s_sub_u32 {s_tmp}, {s_tmp}, 1")
        a(f"s_cselect_b32 {s_t2}, 1, {s_t2}")
        a(f"s_cmp_lg_u32 {s_t2}, 0")
        a(f"s_cbranch_scc1 K_ZOK{k}")
        if k == 7:
            a(f"s_sleep {P('ZSLEEP', 8)}")
        a(f"global_load_dword {v_smp}, {v_t2}, {DBG(2)} {SC_POLL}")
        a("s_waitcnt vmcnt(0)")
        a(f"s_branch K_ZPOLL{k}")
        a.label(f"K_ZOK{k}")

    def mb_sample(vaddr):
        a(f"v_min_u32 {vaddr}, 23, {v_lane}")
        a(f"v_lshl_add_u32 {vaddr}, {vaddr}, 2, {s_mb}")
        a(f"global_load_dword {v_smp}, {vaddr}, {WS(2)} offset:128 {SC_POLL}")

    def wo_voff(v_wo):
        a(f"v_lshrrev_b32 {v_t0}, 3, {v_lane}")
        a(f"v_mul_u32_u24 {v_t0}, 1280, {v_t0}")
        a(f"v_lshrrev_b32 {v_t1}, 4, {v_lane}")
        a(f"v_lshlrev_b32 {v_t1}, 1, {v_t1}")
        a(f"v_and_b32 {v_t2}, 7, {v_lane}")
        a(f"v_xor_b32 {v_t1}, {v_t1}, {v_t2}")
        a(f"v_lshl_add_u32 {v_t0}, {v_t1}, 4, {v_t0}")
        a(f"s_lshl_b32 {s_t2}, {s_ct}, 7")
        a(f"v_add_u32 {v_wo}, {s_t2}, {v_t0}")

    def wo_blocks(v_wo, s_k, late, s_src, s_dst, s_o, thr=0):
        a(f"s_lshl_b32 {s_src}, {s_k}, 2")
        a(f"s_lshr_b32 {s_src}, 0x{0x6431 if late else 0x7520:x}, {s_src}")
        a(f"s_and_b32 {s_src}, {s_src}, 7")
        a(f"s_mul_i32 {s_src}, {s_src}, 51200")
        a(f"s_mul_i32 {s_dst}, {s_k}, 5120")
        for b in range(2):
            for r in range(5):
                a(f"s_add_u32 {s_o}, {s_src}, {b*8*51200 + r*10240}")
                a(f"s_add_u32 m0, {s_dst}, {WO_L + late*40960 + b*20480 + r*1024}")
                a(f"s_waitcnt vmcnt({thr-1})" if thr else "s_nop 0")
                a(f"buffer_load_dwordx4 {v_wo}, {sWO(4)}, {s_o} offen lds")

    s_pos = s_half
    if P("MAP", 0) == 1:
        a(f"s_lshr_b32 {s_rt}, {s_xcd}, 2")
        a(f"s_mul_i32 {s_rt}, {s_rt}, 6")
        a(f"s_lshr_b32 {s_tmp}, {s_i}, 3")
        a(f"s_sub_u32 {s_tmp}, {s_tmp}, 1")
        a(f"s_lshl_b32 {s_tmp}, {s_tmp}, 1")
        a(f"s_add_u32 {s_rt}, {s_rt}, {s_tmp}")
        a(f"s_bfe_u32 {s_tmp}, {s_i}, 0x10001")
        a(f"s_add_u32 {s_rt}, {s_rt}, {s_tmp}")
        a(f"s_and_b32 {s_hg}, {s_xcd}, 3")
        a(f"s_lshl_b32 {s_hg}, {s_hg}, 2")
        a(f"s_and_b32 {s_tmp}, {s_i}, 1")
        a(f"s_lshl_b32 {s_t2}, {s_tmp}, 1")
        a(f"s_add_u32 {s_hg}, {s_hg}, {s_t2}")
        a(f"s_lshr_b32 {s_t2}, {s_i}, 2")
        a(f"s_xor_b32 {s_t2}, {s_t2}, {s_xcd}")
        a(f"s_and_b32 {s_t2}, {s_t2}, 1")
        a(f"s_add_u32 {s_hg}, {s_hg}, {s_t2}")
        a(f"s_and_b32 {s_pos}, {s_xcd}, 3")
        a(f"s_lshl_b32 {s_pos}, {s_pos}, 1")
        a(f"s_add_u32 {s_pos}, {s_pos}, {s_tmp}")
        a(f"s_and_b32 {s_tmp}, {s_i}, 4")
        a(f"s_lshl_b32 {s_tmp}, {s_tmp}, 1")
        a(f"s_add_u32 {s_pos}, {s_pos}, {s_tmp}")
    else:
        a(f"s_lshr_b32 {s_rt}, {s_xcd}, 1")
        a(f"s_mul_i32 {s_rt}, {s_rt}, 3")
        a(f"s_lshr_b32 {s_tmp}, {s_i}, 3")
        a(f"s_add_u32 {s_rt}, {s_rt}, {s_tmp}")
        a(f"s_sub_u32 {s_rt}, {s_rt}, 1")
        a(f"s_and_b32 {s_hg}, {s_xcd}, 1")
        a(f"s_lshl_b32 {s_hg}, {s_hg}, 3")
        a(f"s_and_b32 {s_tmp}, {s_i}, 7")
        a(f"s_lshl_b32 {s_tmp}, {s_tmp}, 2")
        a(f"s_lshr_b32 {s_tmp}, 0x64317520, {s_tmp}")
        a(f"s_and_b32 {s_tmp}, {s_tmp}, 7")
        a(f"s_add_u32 {s_hg}, {s_hg}, {s_tmp}")
        a(f"s_and_b32 {s_pos}, {s_i}, 3")
        a(f"s_and_b32 {s_tmp}, {s_i}, 4")
        a(f"s_lshl_b32 {s_tmp}, {s_tmp}, 1")
        a(f"s_add_u32 {s_pos}, {s_pos}, {s_tmp}")
        a(f"s_and_b32 {s_tmp}, {s_xcd}, 1")
        a(f"s_lshl_b32 {s_tmp}, {s_tmp}, 2")
        a(f"s_add_u32 {s_pos}, {s_pos}, {s_tmp}")

    v_row, v_g, v_r, v_c = V.many(4)
    v_lo, v_hi, v_va, v_os, v_ot, v_neg, v_wv, v_fo, v_ow, v_ox, v_or, v_hq = V.many(12)
    v_b0, v_b1, v_bp, v_ps = V.many(4, 4)
    s_tg = S.a()
    s_g0 = S.a(2)
    s_c = S.a(2)
    s_sc = S.a(2)
    s_oo = S.many(3)

    def lane_consts():
        a(f"v_and_b32 {v_row}, 15, {v_lane}")
        a(f"v_lshrrev_b32 {v_g}, 4, {v_lane}")
        a(f"v_bfe_u32 {v_r}, {v_lane}, 2, 2")
        a(f"v_and_b32 {v_c}, 3, {v_lane}")

    def att_consts():
        srd(a, sO, WS, O_BYTES, O_OFF)
        a(f"s_lshr_b32 {s_tmp}, {s_w}, 1")
        a(f"s_mul_i32 {s_tmp}, {s_tmp}, 3")
        a(f"s_mul_i32 {s_tg}, {s_rt}, {MT-1}")
        a(f"s_add_u32 {s_tg}, {s_tg}, {s_tmp}")
        a(f"s_mul_i32 {s_tmp}, {s_tmp}, {TP}")
        a(f"s_and_b32 {s_t2}, {s_w}, 1")
        a(f"s_mul_i32 {s_c}, {s_t2}, 40")
        a(f"s_add_u32 {s_tmp}, {s_tmp}, {s_c}")
        a(f"s_add_u32 {s_tmp}, {s_tmp}, {QKV_BASE}")
        a(f"v_mul_u32_u24 {v_hi}, {PITCH}, {v_row}")
        a(f"v_lshl_add_u32 {v_lo}, {v_g}, 3, {v_hi}")
        a(f"v_add_u32 {v_lo}, {s_tmp}, {v_lo}")
        a(f"v_add3_u32 {v_hi}, {v_hi}, 32, {s_tmp}")
        a(f"s_sub_u32 {s_c}, {240 - 160 - 32}, {s_c}")
        a(f"v_add_u32 {v_t0}, {s_c}, {v_hi}")
        a(f"v_cmp_eq_u32 vcc, 0, {v_g}")
        a("s_nop 1")
        a(f"v_cndmask_b32 {v_hq}, {v_t0}, {v_hi}, vcc")
        a(f"v_lshl_add_u32 {v_va}, {v_g}, 2, {v_r}")
        a(f"v_mul_u32_u24 {v_va}, {PITCH}, {v_va}")
        a(f"v_lshl_add_u32 {v_va}, {v_c}, 3, {v_va}")
        a(f"v_add_u32 {v_va}, {s_tmp}, {v_va}")
        a(f"s_lshl_b32 {s_t2}, {s_t2}, 3")
        a(f"s_lshl_b32 {s_tmp}, {s_pos}, 10")
        a(f"s_add_u32 {s_tmp}, {s_tmp}, {s_t2}")
        a(f"v_lshl_add_u32 {v_os}, {v_lane}, 4, {s_tmp}")
        a(f"s_lshl_b32 {s_tmp}, {s_pos}, 8")
        a(f"s_add_u32 {s_tmp}, {s_tmp}, {s_t2}")
        a(f"s_add_u32 {s_tmp}, {s_tmp}, 16384")
        a(f"v_lshl_add_u32 {v_ot}, {v_lane}, 4, {s_tmp}")
        a(f"s_mul_i32 {s_oo[0]}, {s_tg}, 20480")
        a(f"s_add_u32 {s_oo[1]}, {s_oo[0]}, {20480}")
        a(f"s_add_u32 {s_oo[2]}, {s_oo[0]}, {2*20480}")
        a(f"v_mov_b32 {v_neg}, 0x{NEG:x}")
        a(f"v_lshlrev_b32 {v_t0}, 2, {v_g}")
        a(f"v_sub_u32 {v_t0}, {v_row}, {v_t0}")
        a(f"s_cmp_eq_u32 {s_tg}, 0")
        a(f"s_cselect_b32 {s_tmp}, 0x{NEG:x}, 0")
        for r in range(4):
            a(f"v_subrev_u32 {v_t1}, {r}, {v_t0}")
            a(f"v_and_b32 {v_t2}, 0x80000001, {v_t1}")
            a(f"v_cmp_eq_u32 vcc, 0, {v_t2}")
            a("s_nop 1")
            a(f"v_cndmask_b32 {v_b1+r}, {v_neg}, 0, vcc")
            a(f"v_cmp_eq_u32 vcc, 0x80000000, {v_t2}")
            a("s_nop 1")
            a(f"v_cndmask_b32 {v_b0+r}, {v_neg}, 0, vcc")
            a(f"v_add_f32 {v_bp+r}, {s_tmp}, {v_b0+r}")
        for p, vb in enumerate((v_b0, v_b1)):
            for k in range(2):
                lo = 0x0c0c0000 | ((2 * k + 1) << 8) | (2 * k)
                hi = 0x00000c0c | ((2 * k + 1) << 24) | ((2 * k) << 16)
                a(f"v_mov_b32 {v_t1}, 0x0c0c0c0c")
                a(f"v_mov_b32 {v_t2}, 0x{lo:x}")
                a(f"v_cmp_eq_u32 vcc, 0, {vb+2*k}")
                a(f"v_mov_b32 {v_t3}, 0x{hi:x}")
                a("s_nop 0")
                a(f"v_cndmask_b32 {v_t1}, {v_t1}, {v_t2}, vcc")
                a(f"v_cmp_eq_u32 vcc, 0, {vb+2*k+1}")
                a("s_nop 1")
                a(f"v_cndmask_b32 {v_ps+2*p+k}, {v_t1}, {v_t3}, vcc")
        a(f"s_mul_i32 {s_tmp}, {s_rt}, 11")
        a(f"s_add_u32 {s_t2}, {s_tmp}, 10")
        a(f"s_lshr_b32 {s_tmp}, {s_tmp}, 3")
        a(f"s_lshr_b32 {s_t2}, {s_t2}, 3")
        a(f"s_min_u32 {s_t2}, {s_t2}, 15")
        a(f"s_sub_u32 {s_t2}, {s_t2}, {s_tmp}")
        a(f"s_add_u32 {s_t2}, {s_t2}, 1")
        a(f"s_mul_i32 {s_t2}, {s_t2}, 10")
        a(f"s_bfm_b32 {s_fl}, {s_t2}, 0")
        a(f"v_mul_u32_u24 {v_t0}, 205, {v_lane}")
        a(f"v_lshrrev_b32 {v_t0}, 11, {v_t0}")
        a(f"v_add_u32 {v_t0}, {s_tmp}, {v_t0}")
        a(f"v_mul_u32_u24 {v_t0}, {8*187}, {v_t0}")
        a(f"v_lshrrev_b32 {v_t0}, 11, {v_t0}")
        a(f"v_sub_u32 {v_t0}, {s_rt}, {v_t0}")
        a(f"v_and_b32 {v_t0}, 1, {v_t0}")
        a(f"v_lshlrev_b32 {v_t0}, 6, {v_t0}")
        a(f"v_lshl_add_u32 {v_t0}, {v_lane}, 8, {v_t0}")
        a(f"s_mul_i32 {s_tmp}, {s_tmp}, 2560")
        a(f"s_lshl_b32 {s_t2}, {s_pos}, 2")
        a(f"s_add_u32 {s_tmp}, {s_tmp}, {s_t2}")
        a(f"s_add_u32 {s_tmp}, {s_tmp}, {FL_OFF}")
        a(f"v_add_u32 {v_fo}, {s_tmp}, {v_t0}")
        if P("ODENSE", 1):
            OB = SLOT
            a(f"s_lshr_b32 {s_tmp}, {s_w}, 1")
            a(f"s_mul_i32 {s_tmp}, {s_tmp}, 3")
            a(f"s_and_b32 {s_t2}, {s_w}, 1")
            a(f"s_lshl_b32 {s_t2}, {s_t2}, 3")
            a(f"v_lshl_add_u32 {v_t0}, {v_lane}, 4, {s_t2}")
            a(f"s_lshl_b32 {s_t2}, {s_tmp}, 10")
            a(f"s_add_u32 {s_t2}, {s_t2}, {OB}")
            a(f"v_add_u32 {v_ow}, {s_t2}, {v_t0}")
            a(f"s_lshl_b32 {s_t2}, {s_tmp}, 8")
            a(f"s_add_u32 {s_t2}, {s_t2}, {OB + 12288}")
            a(f"v_add_u32 {v_ox}, {s_t2}, {v_t0}")
            a(f"s_lshl_b32 {s_t2}, {s_w}, 10")
            a(f"s_add_u32 {s_t2}, {s_t2}, {OB}")
            a(f"v_lshl_add_u32 {v_or}, {v_lane}, 4, {s_t2}")
            a(f"s_mul_i32 {s_oo[0]}, {s_rt}, {(MT-1)*20480}")
            a(f"s_mul_i32 {s_tmp}, {s_w}, 20480")
            a(f"s_lshl_b32 {s_t2}, {s_pos}, 10")
            a(f"s_add_u32 {s_tmp}, {s_tmp}, {s_t2}")
            a(f"v_lshl_add_u32 {v_os}, {v_lane}, 4, {s_tmp}")
            a(f"v_add_u32 {v_t1}, {8*20480}, {v_os}")
            a(f"s_sub_u32 {s_tmp}, {s_w}, 4")
            a(f"s_lshl_b32 {s_tmp}, {s_tmp}, 2")
            a(f"v_add_u32 {v_t2}, {s_tmp}, {v_g}")
            a(f"v_mul_u32_u24 {v_t0}, 20480, {v_t2}")
            a(f"v_lshl_add_u32 {v_t0}, {v_row}, 4, {v_t0}")
            a(f"s_lshl_b32 {s_t2}, {s_pos}, 8")
            a(f"s_add_u32 {s_t2}, {s_t2}, 16384")
            a(f"v_add_u32 {v_t0}, {s_t2}, {v_t0}")
            a(f"v_mov_b32 {v_t3}, 0x10000000")
            a(f"v_cmp_gt_u32 vcc, {MT-1}, {v_t2}")
            a("s_nop 1")
            a(f"v_cndmask_b32 {v_t0}, {v_t3}, {v_t0}, vcc")
            a(f"s_cmp_lt_u32 {s_w}, 3")
            a("s_cselect_b64 vcc, -1, 0")
            a("s_nop 1")
            a(f"v_cndmask_b32 {v_ot}, {v_t0}, {v_t1}, vcc")
        a(f"s_mov_b64 {s_g0(2)}, 0xffff")
        a(f"s_mov_b32 {s_c}, 0x{LOG2E if P('RLOG', 1) else SCALE_L2E:x}")
        a(f"s_mov_b32 {s_c+1}, {s_c}")
        a(f"s_mov_b32 {s_sc}, 0x{f32bits(20 ** -0.5):x}")
        a(f"s_mov_b32 {s_sc+1}, {s_sc}")

    mV2 = V.mark()
    mS2 = S.mark()
    a(f"s_cmp_lt_u32 {s_w}, 4")
    a("s_cbranch_scc1 K_CONS")

    stamp(a, "role")
    v_xo = V.many(6)
    v_wo = V.many(4)
    s_lw, s_row0, s_m0x, s_m0w, s_sox, s_sow, s_kc = S.many(7)
    a(f"s_sub_u32 {s_lw}, {s_w}, 4")
    a(f"s_mul_i32 {s_row0}, {s_rt}, {RROWS}")
    a(f"s_mul_i32 {s_tmp}, {s_lw}, 48")
    a(f"s_add_u32 {s_row0}, {s_row0}, {s_tmp}")
    a(f"s_sub_u32 {s_row0}, {s_row0}, 16")
    a(f"s_mul_i32 {s_m0x}, {s_lw}, 6144")
    a(f"s_lshl_b32 {s_m0w}, {s_lw}, 12")
    a(f"s_add_u32 {s_m0w}, {s_m0w}, {XREG}")
    a(f"v_lshrrev_b32 {v_t1}, 4, {v_lane}")
    a(f"s_mul_i32 {s_sow}, {s_hg}, 80")
    a(f"s_mul_i32 {s_sox}, {s_lw}, {16*3840}")
    a(f"s_add_u32 {s_sow}, {s_sow}, {s_sox}")
    a(f"v_mul_u32_u24 {v_xo[0]}, 3840, {v_t1}")
    a(f"v_add_u32 {v_xo[0]}, {s_sow}, {v_xo[0]}")
    a(f"v_mov_b32 {v_xo[1]}, 2480")
    a(f"v_mov_b32 {v_xo[2]}, -160")
    for jj in range(2):
        a(f"v_lshlrev_b32 {v_t0}, 1, {v_t1}")
        a(f"v_sub_u32 {v_t0}, {v_lane}, {v_t0}")
        if jj:
            a(f"v_add_u32 {v_t0}, 8, {v_t0}")
        a(f"v_and_b32 {v_t0}, 15, {v_t0}")
        if not P("ZSP", 1):
            a(f"v_min_u32 {v_t0}, 14, {v_t0}")
        a(f"v_mov_b32 {v_t3}, 1280")
        a(f"v_cmp_le_u32 vcc, 5, {v_t0}")
        a(f"v_lshl_add_u32 {v_t2}, {v_t0}, 4, {v_xo[0]}")
        a("s_nop 0")
        a(f"v_cndmask_b32 {v_t3}, {v_t3}, {v_xo[1]}, vcc")
        a(f"v_cmp_le_u32 vcc, 10, {v_t0}")
        a("s_nop 1")
        a(f"v_cndmask_b32 {v_t3}, {v_t3}, {v_xo[2]}, vcc")
        if P("ZSP", 1):
            a(f"v_cmp_eq_u32 vcc, 15, {v_t0}")
            a(f"v_mov_b32 {v_xo[3]}, 0x10000000")
            a("s_nop 0")
            a(f"v_cndmask_b32 {v_t3}, {v_t3}, {v_xo[3]}, vcc")
        if jj:
            a(f"v_add_u32 {v_t2}, {8*3840}, {v_t2}")
        a(f"v_add_u32 {v_wo[2*jj]}, {v_t2}, {v_t3}")
        a(f"v_add_u32 {v_wo[2*jj+1]}, {4*3840}, {v_wo[2*jj]}")
    a(f"v_lshrrev_b32 {v_t0}, 3, {v_lane}")
    a(f"v_and_b32 {v_t2}, 7, {v_lane}")
    a(f"v_xor_b32 {v_t2}, {v_t2}, {v_t1}")
    a(f"v_lshlrev_b32 {v_t2}, 4, {v_t2}")
    a(f"v_xor_b32 {v_t1}, 64, {v_t2}")
    a(f"v_add_u32 {v_t0}, {s_row0}, {v_t0}")
    for j in range(6):
        if j:
            a(f"v_add_u32 {v_t3}, {8*j}, {v_t0}")
            a(f"v_max_i32 {v_t3}, 0, {v_t3}")
        else:
            a(f"v_max_i32 {v_t3}, 0, {v_t0}")
        a(f"v_mul_u32_u24 {v_t3}, 1280, {v_t3}")
        a(f"v_add_u32 {v_xo[j]}, {v_t1 if j & 1 else v_t2}, {v_t3}")
    if P("MAP", 0) == 1:
        a(f"s_and_b32 {s_kc}, {s_hg}, 3")
        a(f"s_mul_i32 {s_kc}, {s_kc}, 5")
        a(f"s_lshr_b32 {s_kc}, {s_kc}, 1")
        a(f"s_mul_i32 {s_tmp}, {s_rt}, {P('ROTR', 7)}")
        a(f"s_add_u32 {s_kc}, {s_kc}, {s_tmp}")
        a(f"s_mul_i32 {s_tmp}, {s_xcd}, {P('ROTX', 1)}")
        a(f"s_add_u32 {s_kc}, {s_kc}, {s_tmp}")
    elif P("ROTG", 0):
        a(f"s_mul_i32 {s_kc}, {s_hg}, {P('ROTH', 1)}")
        a(f"s_mul_i32 {s_tmp}, {s_rt}, {P('ROTR', 3)}")
        a(f"s_add_u32 {s_kc}, {s_kc}, {s_tmp}")
    else:
        a(f"s_and_b32 {s_kc}, {s_hg}, 7")
        a(f"s_mul_i32 {s_kc}, {s_kc}, {P('ROTH', 3)}")
        a(f"s_lshr_b32 {s_tmp}, {s_i}, 3")
        a(f"s_mul_i32 {s_tmp}, {s_tmp}, {P('ROTR', 4)}")
        a(f"s_add_u32 {s_kc}, {s_kc}, {s_tmp}")
        a(f"s_mul_i32 {s_tmp}, {s_xcd}, {P('ROTX', 1)}")
        a(f"s_add_u32 {s_kc}, {s_kc}, {s_tmp}")
    a(f"s_mul_i32 {s_tmp}, {s_kc}, 205")
    a(f"s_lshr_b32 {s_tmp}, {s_tmp}, 11")
    a(f"s_mul_i32 {s_tmp}, {s_tmp}, 10")
    a(f"s_sub_u32 {s_kc}, {s_kc}, {s_tmp}")
    stamp(a, "setup")
    a("s_waitcnt lgkmcnt(0)")
    stamp(a, "karg")
    srd(a, sX, s_px, X_BYTES)
    srd(a, sW, s_px + 2, 640 * 3840)

    ORDER = [("w", 0), ("x", 0), ("w", 1), ("x", 1), ("x", 2), ("w", 2), ("x", 3), ("w", 3), ("x", 4), ("x", 5)]
    HS = P("HSPLIT", 5)

    def dma_part(c, lo, hi):
        if c >= NCH:
            return
        sl = ((c + 1) % NS) * SLOT
        if lo == 0:
            a(f"s_lshl_b32 {s_sox}, {s_kc}, 7")
            a(f"s_mul_i32 {s_sow}, {s_kc}, {64*3840}")
            a(f"s_add_u32 {s_kc}, {s_kc}, 1")
            a(f"s_cmp_eq_u32 {s_kc}, 10")
            a(f"s_cselect_b32 {s_kc}, 0, {s_kc}")
        for kind, j in ORDER[lo:hi]:
            if kind == "w":
                a(f"s_add_u32 m0, {s_m0w}, {sl + j*1024}")
                a("s_nop 0")
                a(f"buffer_load_dwordx4 {v_wo[j]}, {sW(4)}, {s_sow} offen lds")
            else:
                a(f"s_add_u32 m0, {s_m0x}, {sl + j*1024}")
                a("s_nop 0")
                a(f"buffer_load_dwordx4 {v_xo[j]}, {sX(4)}, {s_sox} offen lds")

    if P("LPRIO", 0):
        a(f"s_setprio {P('LPRIO', 0)}")
    dma_part(0, 0, 10)
    dma_part(1, 0, HS)
    stamp(a, "issued")
    srd(a, sWO, s_pwo, 640 * 1280)
    lane_consts()
    att_consts()
    LPRE = P("LPRE", -1)
    v_q0, v_q1 = V.many(2)
    a(f"s_lshl_b32 {s_tmp}, {s_pos}, 10")
    a(f"v_lshl_add_u32 {v_q0}, {v_lane}, 4, {s_tmp}")
    a(f"s_lshl_b32 {s_tmp}, {s_pos}, 8")
    a(f"s_add_u32 {s_tmp}, {s_tmp}, 16384")
    a(f"v_lshl_add_u32 {v_q1}, {v_lane}, 4, {s_tmp}")
    for c in range(NCH):
        outst = HS if c + 1 < NCH else (6 if LPRE == 8 else 0)
        a(f"s_waitcnt vmcnt({outst})")
        stamp(a, f"w{c}")
        a("s_barrier")
        stamp(a, f"c{c}")
        dma_part(c + 1, HS, 10)
        dma_part(c + 2, 0, HS)
        stamp(a, f"i{c}")
        if c == LPRE:
            a(f"s_mul_i32 {s_sox}, {s_rt}, {MT-1}")
            a(f"s_add_u32 {s_sox}, {s_sox}, {s_lw}")
            a(f"s_mul_i32 {s_sox}, {s_sox}, 20480")
            for k in range(3):
                if k == 2:
                    a(f"s_cmp_eq_u32 {s_lw}, 3")
                    a(f"s_cselect_b32 {s_tmp}, {4*20480}, 0")
                    a(f"s_sub_u32 {s_sox}, {s_sox}, {s_tmp}")
                a(f"buffer_store_dwordx4 {v_b0(4)}, {v_q0}, {sO(4)}, {s_sox} offen {SC_ST}")
                a(f"s_mov_b64 exec, {s_g0(2)}")
                a(f"buffer_store_dwordx4 {v_b0(4)}, {v_q1}, {sO(4)}, {s_sox} offen {SC_ST}")
                a("s_mov_b64 exec, -1")
                a(f"s_add_u32 {s_sox}, {s_sox}, {4*20480}")
    a(f"s_cmp_eq_u32 {s_w}, 4")
    a("s_cbranch_scc1 K_NOSMP")
    a(f"v_mov_b32 {v_t0}, {ZW2*4}")
    a(f"global_load_dword {v_smp}, {v_t0}, {DBG(2)} {SC_POLL}")
    a.label("K_NOSMP")
    a(f"s_cmp_eq_u32 {s_n}, -1")
    a("s_cbranch_scc1 K_NOLT")
    wo_voff(v_wv)
    wo_blocks(v_wv, s_lw, 0, s_sox, s_sow, s_tmp)
    a("s_waitcnt vmcnt(10)")
    a("s_branch K_JOIN")
    if P("LTCH", 0):
        a(f"s_mul_i32 {s_tmp}, {s_lw}, 160")
        a(f"v_add_u32 {v_t0}, {s_tmp}, {v_lane}")
        a(f"v_mul_u32_u24 {v_t0}, 1280, {v_t0}")
        a(f"s_lshl_b32 {s_t2}, {s_ct}, 7")
        a(f"v_add_u32 {v_t0}, {s_t2}, {v_t0}")
        for k in range(3):
            a(f"s_mov_b32 {s_tmp}, {k*64*1280}")
            if k == 2:
                a("s_mov_b32 exec_hi, 0")
            a(f"buffer_load_dword {v_pf}, {v_t0}, {sWO(4)}, {s_tmp} offen")
        a("s_mov_b64 exec, -1")
        a("s_waitcnt vmcnt(3)")
        a("s_branch K_JOIN")
    a.label("K_NOLT")
    a("s_waitcnt vmcnt(0)")
    stamp(a, "loopend")
    a("s_branch K_JOIN")

    V.release(mV2)
    S.release(mS2)
    a.label("K_CONS")
    lane_consts()
    s_mh, s_nh = S.many(2)
    a(f"s_lshr_b32 {s_mh}, {s_w}, 1")
    a(f"s_and_b32 {s_nh}, {s_w}, 1")
    v_aa = [V.many(2) for _ in range(2)]
    v_ba = [V.many(4) for _ in range(2)]
    v_wa = V.a()
    a(f"v_lshrrev_b32 {v_t0}, 1, {v_row}")
    a(f"v_xor_b32 {v_t0}, {v_t0}, {v_g}")
    a(f"v_lshlrev_b32 {v_t0}, 4, {v_t0}")
    a(f"v_lshl_add_u32 {v_t0}, {v_row}, 7, {v_t0}")
    a(f"s_mul_i32 {s_tmp}, {s_mh}, {MH*2048}")
    a(f"v_add_u32 {v_aa[0][0]}, {s_tmp}, {v_t0}")
    a(f"v_xor_b32 {v_aa[0][1]}, 64, {v_aa[0][0]}")
    for ks in range(2):
        a(f"v_add_u32 {v_aa[1][ks]}, {2*SLOT}, {v_aa[0][ks]}")
    a(f"v_and_b32 {v_t0}, 1, {v_g}")
    a(f"v_lshl_or_b32 {v_t0}, {v_t0}, 2, {v_r}")
    a(f"v_lshl_add_u32 {v_t1}, {v_g}, 3, {v_r}")
    a(f"v_lshlrev_b32 {v_t1}, 8, {v_t1}")
    a(f"v_lshl_add_u32 {v_t1}, {v_c}, 3, {v_t1}")
    a(f"v_add_u32 {v_t1}, {XREG}, {v_t1}")
    a(f"s_lshl_b32 {s_tmp}, {s_nh}, 2")
    a(f"v_add_u32 {v_t0}, {s_tmp}, {v_t0}")
    for tt in range(4):
        a(f"v_add_u32 {v_t2}, {tt}, {v_t0}")
        a(f"v_and_b32 {v_t2}, 7, {v_t2}")
        a(f"v_lshl_add_u32 {v_ba[0][tt]}, {v_t2}, 5, {v_t1}")
        a(f"v_add_u32 {v_ba[1][tt]}, {2*SLOT}, {v_ba[0][tt]}")
    a(f"v_mul_u32_u24 {v_wa}, {PITCH}, {v_row}")
    a(f"v_lshl_add_u32 {v_wa}, {v_g}, 3, {v_wa}")
    a(f"s_mul_i32 {s_tmp}, {s_mh}, {MH*TP}")
    a(f"s_lshl_b32 {s_t2}, {s_nh}, 7")
    a(f"s_add_u32 {s_tmp}, {s_tmp}, {s_t2}")
    a(f"s_add_u32 {s_tmp}, {s_tmp}, {QKV_BASE}")
    a(f"v_add_u32 {v_wa}, {s_tmp}, {v_wa}")
    a("s_waitcnt lgkmcnt(0)")
    srd(a, sX, s_px, X_BYTES)
    srd(a, sWO, s_pwo, 640 * 1280)
    v_wt = V.a()
    a(f"s_mul_i32 {s_tmp}, {s_w}, 160")
    a(f"v_add_u32 {v_wt}, {s_tmp}, {v_lane}")
    a(f"v_mul_u32_u24 {v_wt}, 1280, {v_wt}")
    a(f"s_lshl_b32 {s_t2}, {s_ct}, 7")
    a(f"s_and_b32 {s_t2}, {s_t2}, 0x7ff")
    a(f"v_add_u32 {v_wt}, {s_t2}, {v_wt}")
    att_consts()
    acc = [V.many(4, 4) for _ in range(MH)]
    v_p0, v_p1 = V.many(2)
    s_pre = S.a()
    a(f"v_and_b32 {v_p0}, -16, {v_os}")
    a(f"v_and_b32 {v_p1}, -16, {v_ot}")
    a(f"s_mul_i32 {s_pre}, {s_rt}, {MT-1}")
    a(f"s_add_u32 {s_pre}, {s_pre}, {s_w}")
    a(f"s_mul_i32 {s_pre}, {s_pre}, 20480")
    OPC = [int(x) for x in os.environ.get("OPC", "").split(",") if x]

    def opre(k):
        if k == 2:
            a(f"s_cmp_eq_u32 {s_w}, 3")
            a("s_cbranch_scc1 K_OPRE")
        a(f"buffer_store_dwordx4 {v_b0(4)}, {v_p0}, {sO(4)}, {s_pre} offen {SC_ST}")
        a(f"s_mov_b64 exec, {s_g0(2)}")
        a(f"buffer_store_dwordx4 {v_b0(4)}, {v_p1}, {sO(4)}, {s_pre} offen {SC_ST}")
        a("s_mov_b64 exec, -1")
        a(f"s_add_u32 {s_pre}, {s_pre}, {4*20480}")
        if k == 2:
            a.label("K_OPRE")

    stamp(a, "issued")

    fa = [V.many(MH, 4) for _ in range(2)]
    fb = [V.many(4, 4) for _ in range(2)]

    def read_ops(c, ks):
        sl = (c + 1) % NS
        sp, so = sl >> 1, (sl & 1) * SLOT
        B, A = [], []
        for tt in range(4):
            B.append([f"ds_read_b64_tr_b16 {(fb[ks][tt]+2*h)(2)}, {v_ba[sp][tt]} offset:{so + ks*8192 + h*1024}"
                      for h in range(2)])
        for m in range(MH):
            A.append(f"ds_read_b128 {fa[ks][m](4)}, {v_aa[sp][ks]} offset:{so + m*2048}")
        return B[0] + [A[0]] + B[1] + [A[1]] + B[2] + [A[2]] + B[3] + A[3:]

    def mfma_block(ks, first, fillers, post=None):
        k = 0
        idx = 0
        order = [(m, tt) for m in range(MH) for tt in range(4)]
        if P("MORD", 2) == 1:
            order = [(m, tt) for tt in range(4) for m in range(MH)]
        if P("MORD", 2) == 2:
            order = [(m, tt if m % 2 == 0 else 3 - tt) for m in range(MH) for tt in range(4)]
        if P("MORD", 2) == 3:
            order = [(m if tt % 2 == 0 else MH - 1 - m, tt) for tt in range(4) for m in range(MH)]
        for m, tt in order:
            if True:
                a(f"{MFMA} {acc[m][tt](4)}, {fb[ks][tt](4)}, {fa[ks][m](4)}, {'0' if first else acc[m][tt](4)}")
                if k < len(fillers):
                    a(fillers[k])
                    k += 1
                if post:
                    post(idx)
                idx += 1
        assert k == len(fillers)

    tmpw = V.many(4, 2)

    def wr_tile(idx):
        m, tt = idx // 4, idx % 4
        t = tmpw[idx % 4]
        a(f"v_cvt_pk_bf16_f32 {t}, {acc[m][tt]}, {acc[m][tt]+1}")
        a(f"v_cvt_pk_bf16_f32 {t+1}, {acc[m][tt]+2}, {acc[m][tt]+3}")
        a(f"ds_write_b64 {v_wa}, {t(2)} offset:{m*TP + tt*32}")

    if P("CPRIO", 2):
        a(f"s_setprio {P('CPRIO', 2)}")
    a("s_barrier")
    stamp(a, "c0")
    for line in read_ops(0, 0):
        a(line)
    for c in range(NCH):
        a.comment("chunk %d" % c)
        if c == 5:
            stamp(a, "c5")
        if c in (3, 8):
            stamp(a, f"k{c}")
        TCH = [int(x) for x in os.environ.get("WOT", "").split(",") if x]
        if c in TCH:
            k = TCH.index(c)
            a(f"s_cmp_eq_u32 {s_n}, -1")
            a(f"s_cbranch_scc1 K_NOT{c}")
            a(f"s_mov_b32 {s_tmp}, {k*64*1280}")
            if k == 2:
                a("s_mov_b32 exec_hi, 0")
            a(f"buffer_load_dword {v_pf}, {v_wt}, {sWO(4)}, {s_tmp} offen")
            if k == 2:
                a("s_mov_b64 exec, -1")
            a.label(f"K_NOT{c}")
        for k, cc in enumerate(OPC):
            if cc == c:
                opre(k)
        a("s_waitcnt lgkmcnt(0)")
        if c == NCH - 1 and P("LASTR", 1):
            M0 = P("LASTM", 4)
            seq = [(m, tt, 0) for m in range(M0) for tt in range(4)]
            seq += [(m, tt, 1) for m in range(M0) for tt in range(4)]
            for m in range(M0, MH):
                seq += [(m, tt, 0) for tt in range(4)] + [(m, tt, 1) for tt in range(4)]
            fill = read_ops(c, 1)
            done = []
            for pos, (m, tt, ks) in enumerate(seq):
                if pos == 4 * M0:
                    a("s_waitcnt lgkmcnt(0)")
                    stamp(a, "loopend")
                a(f"{MFMA} {acc[m][tt](4)}, {fb[ks][tt](4)}, {fa[ks][m](4)}, {acc[m][tt](4)}")
                if pos < len(fill):
                    a(fill[pos])
                if ks == 1:
                    done.append((len(a.lines), m * 4 + tt))
                if done and len(a.lines) - done[0][0] >= 8:
                    wr_tile(done.pop(0)[1])
            a("s_nop 7")
            for _, idx in done:
                wr_tile(idx)
            continue
        mfma_block(0, c == 0, read_ops(c, 1))
        a("s_waitcnt lgkmcnt(0)")
        if c < NCH - 1:
            a("s_barrier")
            mfma_block(1, False, read_ops(c + 1, 0))
        else:
            stamp(a, "loopend")
            LAG = 8
            mfma_block(1, False, [], post=lambda idx: wr_tile(idx - LAG) if idx >= LAG else None)
            a("s_nop 3")
            for idx in range(4 * MH - LAG, 4 * MH):
                wr_tile(idx)
    a("s_waitcnt vmcnt(0) lgkmcnt(0)")

    if P("CPRIO", 2):
        a("s_setprio 0")
    a.label("K_JOIN")
    a("s_barrier")
    stamp(a, "join")
    V.release(mV2)
    S.release(mS2)
    NU = 3
    U = range(NU)
    qf = V.many(NU, 4)
    kf = V.many(NU + 1, 4)
    vf = [V.a(2 * (NU + 1), 4) for _ in range(2)]
    sc = [V.many(2, 4) for _ in U]
    pf = V.many(NU, 4)
    oc = [V.many(2, 4) for _ in U]
    ee = V.many(NU, 2)
    mx, sm = V.many(NU, 2), V.many(NU, 2)
    mt = V.many(NU)
    st = V.many(NU, 4)
    Q = LgkmQueue(a)

    def rdk(t):
        a(f"ds_read_b64 {kf[t](2)}, {v_lo} offset:{t*TP}"); Q.issue(("k", t))
        a(f"ds_read_b64 {(kf[t]+2)(2)}, {v_hi} offset:{t*TP}"); Q.issue(("k", t))

    rdk(0)
    for u in U:
        a(f"ds_read_b64 {qf[u](2)}, {v_lo} offset:{(u+1)*TP + 160}"); Q.issue(("q", u))
        a(f"ds_read_b64 {(qf[u]+2)(2)}, {v_hq} offset:{(u+1)*TP + 160}"); Q.issue(("q", u))
        rdk(u + 1)
    vrd = [f"ds_read_b64_tr_b16 {(vf[dt]+2*t)(2)}, {v_va} offset:{t*TP + 80 + 32*dt}" for t in range(NU + 1) for dt in range(2)]
    assert P("ZSP", 1)
    for u in U:
        Q.need(("q", u), ("k", u + 1))
        a(f"{MFMA} {sc[u][0](4)}, {kf[u](4)}, {qf[u](4)}, {(v_bp if u == 0 else v_b0)(4)}")
        a(f"{MFMA} {sc[u][1](4)}, {kf[u+1](4)}, {qf[u](4)}, {v_b1(4)}")
    stamp(a, "a1")
    for l in vrd:
        a(l)
    for u in U:
        s0, s1 = sc[u]
        a(f"v_max3_f32 {ee[u]}, {s0}, {s0+1}, {s1}")
        a(f"v_max3_f32 {ee[u]+1}, {s0+2}, {s0+3}, {s1+2}")
        a(f"v_max_f32 {ee[u]}, {ee[u]}, {s1+1}")
        a(f"v_max_f32 {ee[u]+1}, {ee[u]+1}, {s1+3}")
    RL = P("RLOG", 1)
    if RL:
        for rep in range(2):
            for u in U:
                a(f"v_cvt_pk_bf16_f32 {ee[u]+1}, {ee[u]}, {ee[u]+1}")
            for u in U:
                a(f"v_lshlrev_b32 {ee[u]}, 16, {ee[u]+1}")
                a(f"v_and_b32 {ee[u]+1}, 0xffff0000, {ee[u]+1}")
            if rep == 0:
                for u in U:
                    a(f"v_pk_mul_f32 {ee[u](2)}, {ee[u](2)}, {s_sc(2)}")
    for u in U:
        a(f"v_max_f32 {mx[u]}, {ee[u]}, {ee[u]+1}")

    def xreduce(regs, tmps, op):
        A, B, C = regs
        ta, tb, tc = tmps
        a(f"v_mov_b32 {tc}, {C}")
        a(f"v_permlane16_swap_b32 {A}, {B}")
        a("s_nop 0")
        a(f"v_permlane16_swap_b32 {C}, {tc}")
        a(f"{op} {A}, {A}, {B}")
        a(f"{op} {C}, {C}, {tc}")
        a(f"v_mov_b32 {B}, {A}")
        a(f"v_mov_b32 {tc}, {C}")
        a("s_nop 0")
        a(f"v_permlane32_swap_b32 {A}, {B}")
        a(f"v_permlane32_swap_b32 {C}, {tc}")
        a(f"{op} {A}, {A}, {B}")
        a(f"v_mov_b32 {B}, {A}")
        a(f"{op} {C}, {C}, {tc}")
        a("s_nop 0")
        a(f"v_permlane16_swap_b32 {A}, {B}")

    xreduce(mx, mt, "v_max_f32")
    for u in U:
        a(f"v_pk_add_f32 {ee[u](2)}, {ee[u](2)}, {mx[u](2)} op_sel_hi:[1,0] neg_lo:[0,1] neg_hi:[0,1]")
    for u in U:
        a(f"v_pk_mul_f32 {ee[u](2)}, {ee[u](2)}, {s_c(2)}")
    for u in U:
        a(f"v_exp_f32 {ee[u]}, {ee[u]}")
        a(f"v_exp_f32 {ee[u]+1}, {ee[u]+1}")
    a("s_nop 0")
    for u in U:
        a(f"v_add_f32 {sm[u]}, {ee[u]}, {ee[u]+1}")
    stamp(a, "a2")
    xreduce(sm, mt, "v_add_f32")
    for u in U:
        a(f"v_rcp_f32 {sm[u]}, {sm[u]}")
    a("s_waitcnt lgkmcnt(0)")
    for u in U:
        a(f"v_pk_mul_f32 {ee[u](2)}, {ee[u](2)}, {sm[u](2)} op_sel_hi:[1,0]")
    for u in U:
        a(f"v_cvt_pk_bf16_f32 {ee[u]}, {ee[u]}, {ee[u]+1}")
    for u in U:
        for k in range(4):
            a(f"v_perm_b32 {pf[u]+k}, {ee[u]}, {ee[u]}, {v_ps+k}")
        if u > 0:
            for dt in range(2):
                a(f"{MFMA} {oc[u-1][dt](4)}, {(vf[dt]+2*(u-1))(4)}, {pf[u-1](4)}, 0")
    a("s_nop 0")
    for dt in range(2):
        a(f"{MFMA} {oc[NU-1][dt](4)}, {(vf[dt]+2*(NU-1))(4)}, {pf[NU-1](4)}, 0")
    if P("ODENSE", 1):
        stamp(a, "a3")
        a("s_nop 1")
        for u in U:
            a(f"v_cvt_pk_bf16_f32 {st[u]}, {oc[u][0]}, {oc[u][0]+1}")
            a(f"v_cvt_pk_bf16_f32 {st[u]+1}, {oc[u][0]+2}, {oc[u][0]+3}")
            a(f"v_cvt_pk_bf16_f32 {st[u]+2}, {oc[u][1]}, {oc[u][1]+1}")
            a(f"v_cvt_pk_bf16_f32 {st[u]+3}, {oc[u][1]+2}, {oc[u][1]+3}")
            a(f"ds_write_b64 {v_ow}, {st[u](2)} offset:{u*1024}")
        a(f"s_mov_b64 exec, {s_g0(2)}")
        for u in U:
            a(f"ds_write_b64 {v_ox}, {(st[u]+2)(2)} offset:{u*256}")
        a("s_mov_b64 exec, -1")
        a("s_waitcnt lgkmcnt(0)")
        stamp(a, "a4")
        a("s_barrier")
        stamp(a, "a5")
        a(f"ds_read_b128 {st[0](4)}, {v_or}")
        a(f"ds_read_b128 {st[1](4)}, {v_or} offset:8192")
        a("s_waitcnt lgkmcnt(1)")
        a(f"buffer_store_dwordx4 {st[0](4)}, {v_os}, {sO(4)}, {s_oo[0]} offen {SC_ST}")
        a("s_waitcnt lgkmcnt(0)")
        a(f"buffer_store_dwordx4 {st[1](4)}, {v_ot}, {sO(4)}, {s_oo[0]} offen {SC_ST}")
    else:
        a(f"s_cmp_ge_u32 {s_w}, 6")
        a(f"s_cselect_b32 {s_oo[2]}, 0x{O_BYTES:x}, {s_oo[2]}")
        for u in U:
            a(f"v_cvt_pk_bf16_f32 {st[u]}, {oc[u][0]}, {oc[u][0]+1}")
            a(f"v_cvt_pk_bf16_f32 {st[u]+1}, {oc[u][0]+2}, {oc[u][0]+3}")
            a(f"v_cvt_pk_bf16_f32 {st[u]+2}, {oc[u][1]}, {oc[u][1]+1}")
            a(f"v_cvt_pk_bf16_f32 {st[u]+3}, {oc[u][1]+2}, {oc[u][1]+3}")
            a(f"buffer_store_dwordx2 {st[u](2)}, {v_os}, {sO(4)}, {s_oo[u]} offen {SC_ST}")
        a(f"s_mov_b64 exec, {s_g0(2)}")
        for u in U:
            a(f"buffer_store_dwordx2 {(st[u]+2)(2)}, {v_ot}, {sO(4)}, {s_oo[u]} offen {SC_ST}")
        a("s_mov_b64 exec, -1")
    a.label("K_ATT_DONE")
    stamp(a, "attdone")
    a(f"s_cmp_eq_u32 {s_n}, -1")
    a("s_cbranch_scc1 K_NOS6")
    a(f"s_cmp_lt_u32 {s_w}, 4")
    a("s_cbranch_scc1 K_P2_EARLY")
    a(f"s_cmp_lg_u32 {s_w}, 6")
    a("s_cbranch_scc1 K_NOS6")
    zpoll(2)
    mb_sample(v_t0)
    a.label("K_NOS6")
    a(f"s_cmp_lg_u32 {s_w}, 5")
    a("s_cbranch_scc1 K_NOFL")
    zpoll(0)
    a(f"v_mov_b32 {v_t1}, 1")
    a(f"s_mov_b32 exec_lo, {s_fl}")
    a("s_mov_b32 exec_hi, 0")
    a("s_setprio 3")
    a("s_waitcnt vmcnt(0)")
    a("s_barrier")
    a(f"global_store_dword {v_fo}, {v_t1}, {WS(2)} {SC_FLAG}")
    a("s_setprio 0")
    a("s_mov_b64 exec, -1")
    a("s_branch K_FLAGGED")
    a.label("K_NOFL")
    a("s_waitcnt vmcnt(0)")
    a("s_barrier")
    stamp(a, "drained")
    a.label("K_FLAGGED")
    a(f"s_cmp_eq_u32 {s_n}, -1")
    a("s_cbranch_scc1 K_END")
    a(f"s_cmp_ge_u32 {s_w}, 6")
    a("s_cbranch_scc1 K_P2_HELP")
    wo_voff(v_wv)
    a(f"s_sub_u32 {s_tg}, {s_w}, 4")
    wo_blocks(v_wv, s_tg, 1, s_oo[0], s_oo[1], s_tmp, P("THR2", 14))
    a(f"s_add_u32 {s_tg}, {s_tg}, 2")
    wo_blocks(v_wv, s_tg, 1, s_oo[0], s_oo[1], s_tmp, P("THR2", 14))
    a(f"v_mov_b32 {v_t0}, {YB}")
    a(f"v_mov_b32 {v_t1}, 2")
    a("s_waitcnt vmcnt(0)")
    a("s_mov_b64 exec, 1")
    a(f"ds_add_u32 {v_t0}, {v_t1} offset:44")
    a("s_mov_b64 exec, -1")
    a("s_branch K_P2_HELP")

    seg_aux0 = len(a.lines)
    S.release(mS)
    V.release(mV)
    a.label("K_AUX")
    GA, UP, DN = 0, 40960, 81920
    KEYS = 122880
    KSEL = KEYS + 1024
    PRE = KSEL + 64
    HB = PRE + 1024
    WV = HB + 1024
    assert WV + 4096 <= STG
    s_j = S.a()
    s_pm = S.a(8)
    s_pg = S.a(2)
    sR, sGW = sW, sO
    sG, sU, sD = S.many(3, 4)
    s_so, s_m0, s_k1, s_k2 = S.many(4)
    s_t3 = S.a(3)
    a(f"s_load_dwordx8 {s_pm(8)}, s[0:1], 32")
    a(f"s_load_dwordx2 {s_pg(2)}, s[0:1], 64")
    a(f"s_mov_b32 {s_fl}, 4")
    a(f"s_mul_i32 {s_j}, {s_xcd}, 7")
    a(f"s_add_u32 {s_j}, {s_j}, {s_i}")
    a(f"s_sub_u32 {s_j}, {s_j}, 1")
    a(f"s_cmp_lt_u32 {s_j}, {NSL}")
    a(f"s_cselect_b32 {s_j}, {s_j}, 63")
    a(f"s_cmp_eq_u32 {s_i}, 0")
    a(f"s_cselect_b32 {s_j}, 63, {s_j}")
    v_row, v_xo, v_c16 = V.many(3)
    xr = V.a(160)
    wr, gw = V.many(2, 4), V.many(2, 4)
    a(f"s_lshl_b32 {s_tmp}, {s_xcd}, 8")
    a(f"s_lshl_b32 {s_so}, {s_w}, 5")
    a(f"s_add_u32 {s_tmp}, {s_tmp}, {s_so}")
    a(f"v_lshrrev_b32 {v_row}, 3, {v_lane}")
    a(f"v_add_u32 {v_row}, {s_tmp}, {v_row}")
    a(f"v_and_b32 {v_c16}, 7, {v_lane}")
    a(f"v_lshlrev_b32 {v_c16}, 4, {v_c16}")
    a(f"v_mul_u32_u24 {v_xo}, 1280, {v_row}")
    a(f"v_add_u32 {v_xo}, {v_xo}, {v_c16}")
    a("s_waitcnt lgkmcnt(0)")
    srd(a, sX, s_px, X_BYTES)
    srd(a, sR, s_pm, 1280)
    srd(a, sGW, s_pg, 1280)
    srd(a, sWO, s_pwo, 640 * 1280)
    if P("WOPF", 0):
        a(f"s_cmp_lg_u32 {s_w}, 6")
        a("s_cbranch_scc1 K_AUX_NOPF")
        a(f"s_mul_i32 {s_tmp}, s2, {100*128}")
        a(f"v_lshl_add_u32 {v_t0}, {v_lane}, 7, {s_tmp}")
        a(f"s_mov_b32 {s_tmp}, {64*128}")
        a(f"buffer_load_dword {v_pf}, {v_t0}, {sWO(4)}, 0 offen")
        a("s_mov_b32 exec_hi, 15")
        a(f"buffer_load_dword {v_pf}, {v_t0}, {sWO(4)}, {s_tmp} offen")
        a("s_mov_b64 exec, -1")
        a.label("K_AUX_NOPF")

    def wo_touch():
        a(f"s_mul_i32 {s_tmp}, {s_w}, 80")
        a(f"v_add_u32 {v_t0}, {s_tmp}, {v_lane}")
        a(f"v_mul_u32_u24 {v_t0}, 1280, {v_t0}")
        a(f"s_lshl_b32 {s_t2}, {s_i}, 7")
        a(f"v_add_u32 {v_t0}, {s_t2}, {v_t0}")
        a(f"buffer_load_dword {v_pf}, {v_t0}, {sWO(4)}, 0 offen")
        a(f"v_add_u32 {v_t0}, {64*1280}, {v_t0}")
        a(f"s_mul_i32 {s_tmp}, {s_w}, 20")
        a(f"s_sub_u32 {s_tmp}, {s_tmp}, 16")
        a(f"v_add_u32 {v_t1}, {s_tmp}, {v_lane}")
        a(f"v_lshrrev_b32 {v_t2}, 1, {v_t1}")
        a(f"s_mul_i32 {s_tmp}, {s_i}, 80")
        a(f"v_add_u32 {v_t2}, {s_tmp}, {v_t2}")
        a(f"v_mul_u32_u24 {v_t2}, 1280, {v_t2}")
        a(f"v_and_b32 {v_t1}, 1, {v_t1}")
        a(f"v_lshl_add_u32 {v_t2}, {v_t1}, 7, {v_t2}")
        a(f"v_add_u32 {v_t2}, 1024, {v_t2}")
        a(f"v_cmp_gt_u32 vcc, 16, {v_lane}")
        a("s_nop 1")
        a(f"v_cndmask_b32 {v_t0}, {v_t2}, {v_t0}, vcc")
        a("s_mov_b32 exec_hi, 15")
        a(f"buffer_load_dword {v_pf}, {v_t0}, {sWO(4)}, 0 offen")
        a("s_mov_b64 exec, -1")

    a("s_cmp_lg_u32 s2, 63")
    a("s_cbranch_scc1 K_AUX_NOZ")
    srd(a, sG, WS, YFL + 2048, FL_OFF)
    a(f"v_lshlrev_b32 {v_t0}, 4, v0")
    for e in range(4):
        a(f"v_mov_b32 {xr+e}, 0")
    for k in range(6):
        a(f"s_mov_b32 {s_tmp}, {k*8192}")
        a(f"buffer_store_dwordx4 {xr(4)}, {v_t0}, {sG(4)}, {s_tmp} offen {SC_FLAG}")
    a(f"v_mov_b32 {v_t0}, {ZW2*4}")
    a(f"v_mov_b32 {v_t1}, 1")
    a("s_waitcnt vmcnt(0)")
    a("s_barrier")
    a(f"s_cmp_lg_u32 {s_w}, 0")
    a("s_cbranch_scc1 K_AUX_NOZ")
    a("s_mov_b64 exec, 1")
    a(f"global_store_dword {v_t0}, {v_t1}, {DBG(2)} {SC_FLAG}")
    a("s_mov_b64 exec, -1")
    a.label("K_AUX_NOZ")
    a(f"s_cmp_lg_u32 {s_i}, 0")
    a("s_cbranch_scc1 K_AUX_FFN0")
    a(f"v_lshlrev_b32 {v_t0}, 4, {v_lane}")
    a(f"s_cmp_ge_u32 {s_w}, 2")
    a("s_cbranch_scc1 K_AUX_R1")
    a(f"s_cmp_eq_u32 {s_w}, 1")
    a("s_cbranch_scc1 K_AUX_R0")
    a(f"s_mov_b32 m0, {WV}")
    a("s_nop 0")
    a(f"buffer_load_dwordx4 {v_t0}, {sR(4)}, 0 offen lds")
    a(f"buffer_load_dwordx4 {v_t0}, {sR(4)}, 0 offen offset:1024 lds")
    a("s_branch K_AUX_R1")
    a.label("K_AUX_R0")
    a(f"s_mov_b32 m0, {WV + 2048}")
    a("s_nop 0")
    a(f"buffer_load_dwordx4 {v_t0}, {sGW(4)}, 0 offen lds")
    a(f"buffer_load_dwordx4 {v_t0}, {sGW(4)}, 0 offen offset:1024 lds")
    a.label("K_AUX_R1")
    s_h = [0, s_so, s_m0, s_k1]
    for hh in range(1, 4):
        a(f"s_mov_b32 {s_h[hh]}, {10240*hh}")
    a(f"v_add_u32 {v_c16}, {WV}, {v_c16}")
    for j in range(10):
        for hh in range(4):
            a(f"buffer_load_dwordx4 {(xr+16*j+4*hh)(4)}, {v_xo}, {sX(4)}, {s_h[hh]} offen offset:{j*128}")
        if j == 1:
            a("s_waitcnt vmcnt(8)")
            a("s_barrier")
    a(f"v_mov_b32 {v_t0}, {ZW2*4}")
    a(f"global_load_dword {v_smp}, {v_t0}, {DBG(2)} {SC_POLL}")
    ar, ag = V.many(4), V.many(4)
    for i in range(4):
        a(f"v_mov_b32 {ar[i]}, 0")
        a(f"v_mov_b32 {ag[i]}, 0")

    def dots(acc_, off, first):
        def rd(j):
            a(f"ds_read_b128 {wr[j&1](4)}, {v_c16} offset:{off + j*128}")
        rd(0)
        for j in range(10):
            if j < 9:
                rd(j + 1)
            if first:
                a(f"s_waitcnt vmcnt({37 - 4*j if j < 9 else 0}) lgkmcnt({1 if j < 9 else 0})")
            else:
                a(f"s_waitcnt lgkmcnt({1 if j < 9 else 0})")
            for e in range(4):
                for hh in range(4):
                    a(f"v_dot2c_f32_bf16 {acc_[hh]}, {xr+16*j+4*hh+e}, {wr[j&1]+e}")
        a("s_nop 2")
        for dpp in ("quad_perm:[1,0,3,2]", "quad_perm:[2,3,0,1]", "row_half_mirror"):
            for v in acc_:
                a(f"v_add_f32_dpp {v}, {v}, {v} {dpp} row_mask:0xf bank_mask:0xf")

    dots(ar, 0, True)
    v_kw = gw[0]
    a(f"v_and_b32 {v_kw}, 255, {v_row}")
    a(f"v_lshlrev_b32 {v_kw}, 2, {v_kw}")
    a(f"v_add_u32 {v_kw}, {KEYS}, {v_kw}")
    for hh in range(4):
        bf16r(a, v_t0, ar[hh])
        a(f"v_ashrrev_i32 {v_t1}, 31, {v_t0}")
        a(f"v_or_b32 {v_t1}, 0x80000000, {v_t1}")
        a(f"v_xor_b32 {v_t0}, {v_t0}, {v_t1}")
        a(f"v_and_b32 {v_t0}, 0xffff0000, {v_t0}")
        a(f"v_sub_u32 {v_t1}, 0x{0x87ff - 8*hh:x}, {v_row}")
        a(f"v_or_b32 {ar[hh]}, {v_t0}, {v_t1}")
        a(f"ds_write_b32 {v_kw}, {ar[hh]} offset:{32*hh}")
    a("s_waitcnt lgkmcnt(0)")
    a("s_barrier")
    vk = V.a(4)
    a(f"s_cmp_lg_u32 {s_w}, 0")
    a("s_cbranch_scc1 K_AUX_G0")
    a("s_setprio 3")
    a(f"v_lshlrev_b32 {v_t1}, 4, {v_lane}")
    a(f"v_add_u32 {v_t1}, {KEYS}, {v_t1}")
    a(f"ds_read_b128 {vk(4)}, {v_t1}")
    a("s_waitcnt lgkmcnt(0)")
    a(f"v_max_u32 {v_t0}, {vk}, {vk+1}")
    a(f"v_min_u32 {v_t1}, {vk}, {vk+1}")
    a(f"v_max_u32 {v_t2}, {vk+2}, {vk+3}")
    a(f"v_min_u32 {v_t3}, {vk+2}, {vk+3}")
    a(f"v_max_u32 {v_t1}, {v_t1}, {v_t3}")
    a(f"v_min_u32 {v_t3}, {v_t0}, {v_t2}")
    a(f"v_max_u32 {v_t0}, {v_t0}, {v_t2}")
    a(f"v_max_u32 {v_t2}, {v_t1}, {v_t3}")
    wave_max_u32(a, v_t0, v_t1, s_k1, s_t3)
    a(f"v_cmp_ne_u32 vcc, {s_k1}, {v_t0}")
    a("s_nop 1")
    a(f"v_cndmask_b32 {v_t0}, {v_t2}, {v_t0}, vcc")
    wave_max_u32(a, v_t0, v_t1, s_k2, s_t3)
    a(f"v_mov_b32 {vk}, {s_k1}")
    a(f"v_mov_b32 {vk+1}, {s_k2}")
    zpoll(3)
    srd(a, sU, WS, YFL, FL_OFF)
    a(f"s_lshl_b32 {s_tmp}, {s_xcd}, 3")
    a(f"v_lshl_add_u32 {v_t1}, {v_lane}, 8, {s_tmp}")
    for k in range(3):
        a(f"s_mov_b32 {s_tmp}, {k*64*256}")
        a(f"buffer_store_dwordx2 {vk(2)}, {v_t1}, {sU(4)}, {s_tmp} offen offset:128 {SC_FLAG}")
    a("s_setprio 0")
    stamp(a, "pub")
    a.label("K_AUX_G0")
    dots(ag, 2048, False)
    for hh in range(4):
        a(f"ds_write_b32 {v_kw}, {ag[hh]} offset:{PRE - KEYS + 32*hh}")
    a("s_waitcnt lgkmcnt(0)")
    a("s_barrier")
    a(f"s_cmp_lg_u32 {s_w}, 5")
    a("s_cbranch_scc1 K_AUX_FFN0")
    srd(a, sG, WS, 8192, G_OFF)
    a(f"v_lshlrev_b32 {v_t1}, 4, {v_lane}")
    a(f"v_add_u32 {v_t2}, {PRE}, {v_t1}")
    a(f"ds_read_b128 {vk(4)}, {v_t2}")
    a("s_waitcnt lgkmcnt(0)")
    for e in range(4):
        bf16r(a, vk + e, vk + e)
        sigmoid(a, vk + e, vk + e, v_t3)
        bf16r(a, vk + e, vk + e)
    a(f"s_lshl_b32 {s_tmp}, {s_xcd}, 10")
    a(f"buffer_store_dwordx4 {vk(4)}, {v_t1}, {sG(4)}, {s_tmp} offen {SC_ST}")
    zpoll(4)
    srd(a, sU, WS, YFL, FL_OFF)
    a(f"s_lshl_b32 {s_tmp}, {s_xcd}, 2")
    a(f"v_lshl_add_u32 {v_t0}, {v_lane}, 8, {s_tmp}")
    a(f"v_mov_b32 {v_t1}, 1")
    a("s_waitcnt vmcnt(0)")
    for k in range(3):
        a(f"s_mov_b32 {s_tmp}, {k*64*256}")
        a(f"buffer_store_dword {v_t1}, {v_t0}, {sU(4)}, {s_tmp} offen offset:192 {SC_FLAG}")
    a.label("K_AUX_FFN0")
    a(f"s_cmp_lg_u32 {s_j}, 63")
    a("s_cbranch_scc1 K_AUX_FFN1")
    a(f"s_cmp_eq_u32 {s_i}, 0")
    a("s_cbranch_scc1 K_AUX_NB")
    a("s_barrier")
    a.label("K_AUX_NB")
    if P("RTCH", 0):
        wo_touch()
    a(f"s_cmp_lg_u32 {s_w}, 6")
    a("s_cbranch_scc1 K_P2")
    zpoll(6)
    a(f"v_mov_b32 {v_smp}, 0")
    a("s_branch K_P2")
    a.label("K_AUX_FFN1")
    srd(a, sG, s_pm + 2, 640 * 3456)
    srd(a, sU, s_pm + 4, 640 * 3456)
    v_go, v_do = V.many(2)
    a(f"v_lshrrev_b32 {v_t0}, 2, {v_lane}")
    a(f"v_mul_u32_u24 {v_go}, 3456, {v_t0}")
    a(f"v_and_b32 {v_t0}, 3, {v_lane}")
    a(f"v_lshl_add_u32 {v_go}, {v_t0}, 4, {v_go}")
    a(f"s_mul_i32 {s_tmp}, {s_w}, {5*55296}")
    a(f"s_lshl_b32 {s_so}, {s_j}, 6")
    a(f"s_add_u32 {s_tmp}, {s_tmp}, {s_so}")
    a(f"v_add_u32 {v_go}, {s_tmp}, {v_go}")
    a(f"s_mul_i32 {s_m0}, {s_w}, 5120")
    if P("FDELAY", 0):
        a(f"s_cmp_lg_u32 {s_w}, 7")
        a("s_cbranch_scc1 K_FD")
        zpoll(7)
        a.label("K_FD")
        a("s_barrier")
    for q in range(5):
        a(f"s_mov_b32 {s_so}, {q*55296}")
        a(f"s_add_u32 m0, {s_m0}, {GA + q*1024}")
        a("s_nop 0")
        a(f"buffer_load_dwordx4 {v_go}, {sG(4)}, {s_so} offen {FNT} lds")
        a(f"s_add_u32 m0, {s_m0}, {UP + q*1024}")
        a("s_nop 0")
        a(f"buffer_load_dwordx4 {v_go}, {sU(4)}, {s_so} offen {FNT} lds")
    srd(a, sU, WS, YP_BYTES, YP_OFF)
    a(f"s_cmp_ge_u32 {s_w}, 4")
    a("s_cbranch_scc1 K_FFN_C")
    a(f"s_mul_i32 {s_tmp}, {s_j}, 5120")
    a(f"s_mul_i32 {s_so}, {s_w}, 1280")
    a(f"s_add_u32 {s_tmp}, {s_tmp}, {s_so}")
    a(f"v_lshlrev_b32 {v_t0}, 4, {v_lane}")
    a(f"buffer_store_dwordx4 {xr(4)}, {v_t0}, {sU(4)}, {s_tmp} offen {SC_ST}")
    a("s_mov_b64 exec, 0xffff")
    a(f"buffer_store_dwordx4 {xr(4)}, {v_t0}, {sU(4)}, {s_tmp} offen offset:1024 {SC_ST}")
    a("s_mov_b64 exec, -1")
    a(f"s_sub_u32 {s_tmp}, {s_i}, 1")
    a(f"s_mul_i32 {s_tmp}, {s_tmp}, 92")
    a(f"s_mul_i32 {s_so}, {s_w}, 23")
    a(f"s_add_u32 {s_tmp}, {s_tmp}, {s_so}")
    a(f"v_lshrrev_b32 {v_t0}, 1, {v_lane}")
    a(f"v_add_u32 {v_t0}, {s_tmp}, {v_t0}")
    a(f"v_mul_u32_u24 {v_t0}, 1280, {v_t0}")
    a(f"v_and_b32 {v_t1}, 1, {v_lane}")
    a(f"v_lshl_add_u32 {v_t0}, {v_t1}, 7, {v_t0}")
    a(f"s_mov_b32 exec_hi, 0x{(1 << 14) - 1:x}")
    a(f"buffer_load_dword {v_pf}, {v_t0}, {sWO(4)}, 0 offen offset:1024")
    if P("T0", 1):
        a("s_mov_b32 exec_lo, 0x55555555")
        a(f"s_mov_b32 exec_hi, 0x{0x55555555 & ((1 << 14) - 1):x}")
        a(f"buffer_load_dword {v_pf}, {v_t0}, {sWO(4)}, 0 offen")
    a("s_mov_b64 exec, -1")
    a(f"s_waitcnt vmcnt({4 if P('T0', 1) else 3})")
    a("s_barrier")
    a("s_branch K_P2_EARLY")

    a.label("K_FFN_C")
    srd(a, sD, s_pm + 6, 1728 * 1280)
    s_c4 = s_k2
    wf, xf, df = xr, xr + 80, xr
    v_g, v_wa, v_da, v_ka, v_gy = V.many(5)
    a(f"s_sub_u32 {s_m0}, {s_w}, 4")
    a(f"s_mul_i32 {s_tmp}, {s_j}, 40960")
    a(f"s_mul_i32 {s_m0}, {s_m0}, 10240")
    a(f"s_add_u32 {s_tmp}, {s_tmp}, {s_m0}")
    a(f"v_lshl_add_u32 {v_do}, {v_lane}, 4, {s_tmp}")
    a(f"v_lshrrev_b32 {v_g}, 4, {v_lane}")
    a(f"v_bfe_u32 {v_t0}, {v_lane}, 2, 2")
    a(f"v_lshl_add_u32 {v_t0}, {v_g}, 3, {v_t0}")
    a(f"v_and_b32 {v_t1}, 3, {v_lane}")
    a(f"v_lshlrev_b32 {v_t1}, 3, {v_t1}")
    a(f"v_lshl_add_u32 {v_wa}, {v_t0}, 6, {v_t1}")
    a(f"s_bfe_u32 {s_tmp}, {s_w}, 0x10001")
    a(f"s_mul_i32 {s_tmp}, {s_tmp}, 40960")
    a(f"s_and_b32 {s_so}, {s_w}, 1")
    a(f"s_lshl_b32 {s_so}, {s_so}, 5")
    a(f"s_add_u32 {s_tmp}, {s_tmp}, {s_so}")
    a(f"s_add_u32 {s_tmp}, {s_tmp}, {GA}")
    a(f"v_add_u32 {v_wa}, {s_tmp}, {v_wa}")
    a(f"v_mul_u32_u24 {v_da}, 1280, {v_t0}")
    a(f"s_and_b32 {s_tmp}, {s_w}, 3")
    a(f"s_mul_i32 {s_tmp}, {s_tmp}, 320")
    a(f"s_add_u32 {s_tmp}, {s_tmp}, {DN}")
    a(f"v_add3_u32 {v_da}, {v_da}, {v_t1}, {s_tmp}")
    a(f"v_mov_b32 {v_ka}, {KSEL}")
    a(f"v_mov_b32 {v_gy}, {YB}")
    for q in range(10):
        a(f"s_mov_b32 {s_so}, {q*1024}")
        a(f"s_add_u32 m0, {s_m0}, {DN + q*1024}")
        a("s_nop 0")
        a(f"buffer_load_dwordx4 {v_do}, {sD(4)}, {s_so} offen {FNTD} lds")
    a("s_waitcnt vmcnt(10)")
    a("s_barrier")
    stamp(a, "dmad")
    for q in range(20):
        for h in range(2):
            a(f"ds_read_b64_tr_b16 {(wf+4*q+2*h)(2)}, {v_wa} offset:{q*2048 + h*256}")
    a("s_setprio 3")
    a("s_waitcnt lgkmcnt(0)")
    a("s_barrier")

    def fgate(name, off, val):
        a(f"s_mov_b32 {s_tmp}, {SPIN*8}")
        a.label(f"K_FG{name}")
        a(f"ds_read_b32 {v_t0}, {v_gy} offset:{off}")
        a("s_sleep 1")
        a(f"s_sub_u32 {s_tmp}, {s_tmp}, 1")
        a("s_waitcnt lgkmcnt(0)")
        a(f"v_readfirstlane_b32 {s_t2}, {v_t0}")
        a("s_nop 3")
        a(f"s_cselect_b32 {s_t2}, {val}, {s_t2}")
        a(f"s_cmp_lt_u32 {s_t2}, {val}")
        a(f"s_cbranch_scc1 K_FG{name}")

    a(f"s_cmp_lg_u32 {s_w}, 7")
    a("s_cbranch_scc1 K_AUX_POLLED")
    zpoll(5)
    a(f"v_and_b32 {v_t1}, 15, {v_lane}")
    a(f"v_lshl_add_u32 {v_t1}, {v_t1}, 2, {s_mb}")
    a(f"s_mov_b32 {s_tmp}, {SPIN}")
    a.label("K_AUX_POLL")
    a(f"global_load_dword {v_t0}, {v_t1}, {WS(2)} offset:128 {SC_POLL}")
    a("s_waitcnt vmcnt(0)")
    a(f"v_cmp_eq_u32 vcc, 0, {v_t0}")
    a("s_cbranch_vccz K_AUX_GOT")
    a(f"s_sleep {P('KSLEEP', 6)}")
    a(f"s_sub_u32 {s_tmp}, {s_tmp}, 1")
    a(f"s_cmp_lg_u32 {s_tmp}, 0")
    a("s_cbranch_scc1 K_AUX_POLL")
    a.label("K_AUX_GOT")
    wave_top2(a, v_t0, v_t1, s_k1, s_k2, s_t3)
    a(f"v_mov_b32 {vk}, {s_k1}")
    a(f"v_mov_b32 {vk+1}, {s_k2}")
    a(f"v_mov_b32 {v_t1}, 1")
    a(f"ds_write_b64 {v_ka}, {vk(2)}")
    a(f"ds_write_b32 {v_gy}, {v_t1} offset:48")
    a.label("K_AUX_POLLED")
    fgate("K", 48, 1)
    stamp(a, "polled")
    a(f"ds_read_b64 {vk(2)}, {v_ka}")
    a(f"v_and_b32 {v_t0}, 1, {v_lane}")
    a(f"v_cmp_eq_u32 vcc, 1, {v_t0}")
    a("s_waitcnt lgkmcnt(0)")
    a(f"v_cndmask_b32 {v_t2}, {vk}, {vk+1}, vcc")
    a(f"v_and_b32 {v_t1}, 0x7ff, {v_t2}")
    a(f"v_sub_u32 {v_t1}, 2047, {v_t1}")
    a(f"v_mul_u32_u24 {v_xo}, 1280, {v_t1}")
    a(f"v_lshl_add_u32 {v_xo}, {v_g}, 4, {v_xo}")
    a("s_mov_b32 exec_lo, 0x00030003")
    a("s_mov_b32 exec_hi, 0x00030003")
    for q in range(20):
        a(f"buffer_load_dwordx4 {(xf+4*q)(4)}, {v_xo}, {sX(4)}, 0 offen offset:{q*64}")
    a("s_mov_b64 exec, -1")
    pacc = V.many(2, 4)
    v_pa, v_hr, v_hs, v_hw, v_yo = V.many(5)
    a(f"v_and_b32 {v_t0}, 1, {v_lane}")
    a(f"v_lshlrev_b32 {v_pa}, 6, {v_t0}")
    a(f"v_lshl_add_u32 {v_pa}, {v_g}, 4, {v_pa}")
    a(f"s_and_b32 {s_tmp}, {s_w}, 3")
    a(f"s_lshl_b32 {s_tmp}, {s_tmp}, 7")
    a(f"v_add3_u32 {v_hr}, {v_pa}, {s_tmp}, {v_ka}")
    a(f"v_add_u32 {v_pa}, {PRE - KSEL}, {v_hr}")
    a(f"v_add_u32 {v_hr}, {HB - KSEL}, {v_hr}")
    a(f"v_lshrrev_b32 {v_t0}, 5, {v_lane}")
    a(f"v_bfe_u32 {v_t1}, {v_lane}, 4, 1")
    a(f"v_lshl_add_u32 {v_t1}, {v_t1}, 1, {v_t0}")
    a(f"v_lshlrev_b32 {v_t1}, 6, {v_t1}")
    a(f"v_and_b32 {v_t2}, 15, {v_lane}")
    a(f"v_lshl_add_u32 {v_t1}, {v_t2}, 2, {v_t1}")
    a(f"v_add_u32 {v_hs}, {PRE}, {v_t1}")
    a(f"v_lshlrev_b32 {v_t2}, 1, {v_lane}")
    a(f"s_add_u32 {s_tmp}, {s_tmp}, {HB}")
    a(f"v_add_u32 {v_hw}, {s_tmp}, {v_t2}")
    a(f"v_and_b32 {v_t0}, 1, {v_lane}")
    a(f"v_mul_u32_u24 {v_t0}, 2560, {v_t0}")
    a(f"v_lshl_add_u32 {v_yo}, {v_g}, 4, {v_t0}")
    a(f"s_mul_i32 {s_tmp}, {s_j}, 5120")
    a(f"s_and_b32 {s_so}, {s_w}, 3")
    a(f"s_mul_i32 {s_so}, {s_so}, 640")
    a(f"s_add_u32 {s_so}, {s_so}, {s_tmp}")
    a(f"v_mov_b32 {v_t1}, 1")
    for q in range(20):
        if q % 4 == 0:
            a(f"s_waitcnt vmcnt({16 - q})")
        a(f"{MFMA} {pacc[q&1](4)}, {(wf+4*q)(4)}, {(xf+4*q)(4)}, {'0' if q < 2 else pacc[q&1](4)}")
    a("s_nop 7")
    for r in range(4):
        a(f"v_add_f32 {pacc[0]+r}, {pacc[0]+r}, {pacc[1]+r}")
    a("s_mov_b32 exec_lo, 0x00030003")
    a("s_mov_b32 exec_hi, 0x00030003")
    a(f"ds_write_b128 {v_pa}, {pacc[0](4)}")
    a("s_mov_b64 exec, 1")
    a(f"ds_add_u32 {v_gy}, {v_t1} offset:52")
    a("s_mov_b64 exec, -1")
    a(f"s_cmp_lg_u32 {s_w}, 6")
    a("s_cbranch_scc1 K_NOS6B")
    mb_sample(v_t2)
    a.label("K_NOS6B")
    fgate("P", 52, 4)
    hv = V.a(4)
    stamp(a, "pre")
    a(f"ds_read_b32 {hv}, {v_hs}")
    a(f"ds_read_b32 {hv+2}, {v_hs} offset:256")
    for q in range(7):
        for h in range(2):
            a(f"ds_read_b64_tr_b16 {(df+4*q+2*h)(2)}, {v_da} offset:{q*32 + h*5120}")
    a("s_waitcnt lgkmcnt(14)")
    bf16r(a, hv, hv)
    bf16r(a, hv + 2, hv + 2)
    sigmoid(a, hv + 1, hv, hv + 1)
    a(f"v_mul_f32 {hv}, {hv}, {hv+1}")
    bf16r(a, hv, hv)
    a(f"v_mul_f32 {hv}, {hv}, {hv+2}")
    a(f"v_cvt_pk_bf16_f32 {hv}, {hv}, {hv}")
    a(f"ds_write_b16 {v_hw}, {hv}")
    a("s_waitcnt lgkmcnt(0)")
    a(f"ds_read_b128 {hv(4)}, {v_hr}")
    for q in range(7, 10):
        for h in range(2):
            a(f"ds_read_b64_tr_b16 {(df+4*q+2*h)(2)}, {v_da} offset:{q*32 + h*5120}")
    a("s_waitcnt lgkmcnt(6)")
    for q in range(10):
        if q >= 7:
            a(f"s_waitcnt lgkmcnt({2 * (9 - q)})")
        a(f"{MFMA} {(xf+4*q)(4)}, {(df+4*q)(4)}, {hv(4)}, 0")
    a("s_mov_b32 exec_lo, 0x00030003")
    a("s_mov_b32 exec_hi, 0x00030003")
    for q in range(10):
        a(f"buffer_store_dwordx4 {(xf+4*q)(4)}, {v_yo}, {sU(4)}, {s_so} offen offset:{q*64} {SC_ST}")
    a("s_mov_b64 exec, -1")
    a(f"s_lshl_b32 {s_tmp}, {s_j}, 3")
    a(f"s_add_u32 {s_tmp}, {s_tmp}, {s_w}")
    a(f"s_lshl_b32 {s_tmp}, {s_tmp}, 2")
    a(f"s_add_u32 {s_tmp}, {s_tmp}, {FL_OFF + YFL - 16}")
    a(f"v_mov_b32 {v_t0}, {s_tmp}")
    a(f"v_mov_b32 {v_t1}, 1")
    a("s_waitcnt vmcnt(0)")
    stamp(a, "ydone")
    a("s_mov_b64 exec, 1")
    a(f"global_store_dword {v_t0}, {v_t1}, {WS(2)} {SC_FLAG}")
    a("s_mov_b64 exec, -1")
    a("s_branch K_P2")
    seg_aux1 = len(a.lines)

    S.release(mS)
    V.release(mV)
    sG, sY, sOut = sW, S.a(4), S.a(4)
    s_so, s_tg, s_row0, s_c10 = S.many(4)
    s_sel = S.a(4)
    s_k1, s_k2 = S.many(2)
    s_t3 = S.a(3)
    s_os = S.many(5)
    v_l3, v_g, v_xo, v_go, v_fa, v_da, v_sr, v_yb = V.many(8)
    xv = V.a(8)
    gv = V.a(2)
    vsel = V.a(4)
    bx = V.a(16)
    om = V.many(2)
    mV3 = V.mark()
    RM = P("RMIX", 0)

    def epi_pre():
        L = []
        for j in range(2):
            L += [f"v_sub_f32 {om[j]}, 1.0, {gv+j}", f"v_cvt_pk_bf16_f32 {om[j]}, {om[j]}, {om[j]}", f"v_lshlrev_b32 {om[j]}, 16, {om[j]}"]
        for i in range(8):
            L += [f"v_lshlrev_b32 {bx+2*i}, 16, {xv+i}", f"v_and_b32 {bx+2*i+1}, 0xffff0000, {xv+i}"]
        for i in range(16):
            L.append(f"v_mul_f32 {bx+i}, {bx+i}, {om[i//8]}")
        if RM:
            for i in range(8):
                L.append(f"v_cvt_pk_bf16_f32 {bx+2*i+1}, {bx+2*i}, {bx+2*i+1}")
            for i in range(8):
                L += [f"v_lshlrev_b32 {bx+2*i}, 16, {bx+2*i+1}", f"v_and_b32 {bx+2*i+1}, 0xffff0000, {bx+2*i+1}"]
        return L
    v_r, v_c, v_sw, v_wo = V.many(4)
    v_oo = V.many(2)
    PERM = [0, 2, 5, 7, 1, 3, 4, 6]
    HGT = [[8 * (u & 1) + PERM[4 * (u >> 1) + i] for i in range(4)] for u in range(4)]
    vn, vn2, vt = V.many(4), V.many(4), V.many(4)

    def p2_common():
        a(f"s_lshl_b32 {s_row0}, {s_rt2}, 7")
        a(f"v_lshrrev_b32 {v_l3}, 3, {v_lane}")
        a(f"v_lshrrev_b32 {v_g}, 4, {v_lane}")
        a(f"v_mov_b32 {v_yb}, {YB}")
        a(f"s_lshl_b32 {s_tg}, {s_rt2}, 3")
        a(f"s_add_u32 {s_tg}, {s_tg}, {s_w}")
        a(f"s_mul_i32 {s_tmp}, {s_tg}, 20480")
        a(f"s_lshl_b32 {s_t2}, {s_ct}, 7")
        a(f"s_add_u32 {s_tmp}, {s_tmp}, {s_t2}")
        a(f"v_and_b32 {v_t0}, 7, {v_lane}")
        a(f"v_lshlrev_b32 {v_t0}, 4, {v_t0}")
        a(f"v_mul_u32_u24 {v_t2}, 1280, {v_l3}")
        a(f"v_add3_u32 {v_xo}, {v_t0}, {v_t2}, {s_tmp}")
        a(f"s_lshl_b32 {s_tmp}, {s_tg}, 6")
        a(f"v_lshl_add_u32 {v_go}, {v_l3}, 2, {s_tmp}")
        a(f"s_mov_b32 {s_c10}, 10240")
        srd(a, sO, WS, O_BYTES, O_OFF)
        srd(a, sG, WS, 8192, G_OFF)
        srd(a, sOut, s_po, X_BYTES)
        a(f"v_mul_u32_u24 {v_t1}, {SP}, {v_l3}")
        a(f"v_add_u32 {v_t1}, {v_t0}, {v_t1}")
        a(f"s_mul_i32 {s_tmp}, {s_w}, {16*SP}")
        a(f"s_add_u32 {s_tmp}, {s_tmp}, {STG}")
        a(f"v_add_u32 {v_sr}, {s_tmp}, {v_t1}")

    def p2_gemm_setup():
        a(f"v_bfe_u32 {v_r}, {v_lane}, 2, 2")
        a(f"v_and_b32 {v_c}, 3, {v_lane}")
        a(f"s_add_u32 {s_tmp}, {s_tg}, {s_w}")
        a(f"s_mul_i32 {s_tmp}, {s_tmp}, 20480")
        a(f"v_lshl_add_u32 {v_oo[0]}, {v_lane}, 4, {s_tmp}")
        a(f"v_add_u32 {v_oo[1]}, 20480, {v_oo[0]}")
        a(f"v_lshl_add_u32 {v_t0}, {v_g}, 2, {v_r}")
        a(f"v_bfe_u32 {v_t1}, {v_t0}, 1, 2")
        a(f"v_lshlrev_b32 {v_t0}, 7, {v_t0}")
        a(f"v_lshl_add_u32 {v_t0}, {v_c}, 3, {v_t0}")
        assert WO_L == 0
        for t in range(4):
            a(f"v_xor_b32 {v_t2}, {t}, {v_t1}")
            a(f"v_lshl_add_u32 {vn[t]}, {v_t2}, 5, {v_t0}")
            a(f"v_add_u32 {vn2[t]}, 40960, {vn[t]}")
        a(f"v_lshrrev_b32 {v_t1}, 1, {v_r}")
        a(f"v_mul_u32_u24 {v_t0}, 40, {v_g}")
        a(f"v_add3_u32 {v_t0}, {v_t0}, 16, {v_r}")
        a(f"v_lshlrev_b32 {v_t0}, 7, {v_t0}")
        a(f"v_lshl_add_u32 {v_t0}, {v_c}, 3, {v_t0}")
        for t in range(4):
            a(f"v_xor_b32 {v_t2}, {t}, {v_t1}")
            a(f"v_lshl_add_u32 {vt[t]}, {v_t2}, 5, {v_t0}")

    def p2_gemm_setup2():
        a(f"v_and_b32 {v_t0}, 15, {v_lane}")
        a(f"v_mul_u32_u24 {v_t0}, {SP}, {v_t0}")
        a(f"v_lshl_add_u32 {v_t0}, {v_g}, 3, {v_t0}")
        a(f"s_mul_i32 {s_tmp}, {s_w}, {32*SP}")
        a(f"s_add_u32 {s_tmp}, {s_tmp}, {STG}")
        a(f"v_add_u32 {v_sw}, {s_tmp}, {v_t0}")
        for u in range(5):
            a(f"s_mov_b32 {s_os[u]}, {u*4096}")

    def lgate(name, off, val, sleep=0):
        a(f"s_mov_b32 {s_tmp}, {SPIN*8}")
        a.label(f"K_P2_G{name}")
        a(f"ds_read_b32 {v_t0}, {v_yb} offset:{off}")
        if sleep:
            a(f"s_sleep {sleep}")
        a(f"s_sub_u32 {s_tmp}, {s_tmp}, 1")
        a("s_waitcnt lgkmcnt(0)")
        a(f"v_readfirstlane_b32 {s_t2}, {v_t0}")
        a("s_nop 3")
        a(f"s_cselect_b32 {s_t2}, {val}, {s_t2}")
        a(f"s_cmp_lt_u32 {s_t2}, {val}")
        a(f"s_cbranch_scc1 K_P2_G{name}")

    def xloads():
        a(f"buffer_load_dwordx4 {xv(4)}, {v_xo}, {sX(4)}, 0 offen")
        a(f"buffer_load_dwordx4 {(xv+4)(4)}, {v_xo}, {sX(4)}, {s_c10} offen")

    def gloads():
        a(f"buffer_load_dword {gv}, {v_go}, {sG(4)}, 0 offen {SC_LD}")
        a(f"buffer_load_dword {gv+1}, {v_go}, {sG(4)}, 0 offen offset:32 {SC_LD}")
        a(f"ds_read_b128 {vsel(4)}, {v_yb}")

    a.label("K_P2_EARLY")
    p2_common()
    p2_gemm_setup()
    p2_gemm_setup2()
    a("s_waitcnt vmcnt(0)")
    a("s_barrier")
    stamp(a, "drained")
    a(f"s_cmp_lt_u32 {s_i}, 8")
    a("s_cbranch_scc1 K_P2_AUXW0")
    a.label("K_P2_GEMM")
    a(f"s_setprio {P('GPRIO', 2)}")
    stamp(a, "p2in")
    NB = P("P2NB", 5)
    RO = P("P2RO", 6)
    OA = P("P2OA", 5)
    of = [V.many(2, 4) for _ in range(RO)]
    acc = [V.many(4, 4) for _ in range(2)]
    fb = [V.many(4, 4) for _ in range(NB)]
    Q = LgkmQueue(a)

    SORD = [(0, 0), (1, 0), (0, 1), (1, 1), (0, 2), (1, 2), (0, 3), (1, 3), (0, 4), (1, 4),
            (2, 0), (3, 0), (2, 1), (3, 1), (2, 2), (3, 2), (2, 3), (3, 3), (2, 4), (3, 4)]
    spin = Asm()
    s_rdy, s_sh0, s_sh1 = s_sel + 2, s_sel + 3, s_k2
    VQ = []

    def bits(s):
        u, i = SORD[s]
        return (1 << (4 * u + i)) if i < 4 else (15 << (4 * u))

    def fetch_mask(r_):
        r_(f"ds_read_b32 {v_t0}, {v_yb} offset:32")
        r_("s_waitcnt lgkmcnt(0)")
        r_(f"v_readfirstlane_b32 {s_t2}, {v_t0}")
        r_("s_nop 3")
        r_(f"s_lshr_b32 {s_rdy}, {s_t2}, {s_sh0}")
        r_(f"s_lshr_b32 {s_t2}, {s_t2}, {s_sh1}")
        r_(f"s_and_b32 {s_rdy}, {s_rdy}, {s_t2}")

    def need_ready(s):
        a(f"s_andn2_b32 {s_t2}, {bits(s)}, {s_rdy}")
        a(f"s_cbranch_scc1 K_SP{s}")
        a.label(f"K_SPR{s}")
        spin.label(f"K_SP{s}")
        if s == 0 and P("SP0", 0):
            spin(f"s_sleep {P('SP0', 0)}")
        fetch_mask(spin)
        spin(f"s_andn2_b32 {s_t2}, {bits(s)}, {s_rdy}")
        spin(f"s_cbranch_scc1 K_SP{s}")
        spin(f"s_branch K_SPR{s}")

    def oload(s, track=True):
        u, i = SORD[s]
        for m in range(2):
            if i < 4:
                a(f"buffer_load_dwordx4 {of[s % RO][m](4)}, {v_oo[m]}, {sO(4)}, {s_os[u]} offen offset:{i*1024} {SC_LD}")
            else:
                a(f"buffer_load_dwordx4 {of[s % RO][m](4)}, {v_oo[m]}, {sO(4)}, {s_os[4]} offen offset:{u*1024} {SC_LD}")
            if track:
                VQ.append(s)

    def vwait(tag):
        last = max(i for i, t in enumerate(VQ) if t == tag)
        a(f"s_waitcnt vmcnt({len(VQ) - 1 - last})")
        del VQ[:last + 1]

    def read_list(s):
        u, i = SORD[s]
        b = s % NB
        L = []
        for t in range(4):
            if i < 4:
                ps = 4 * u + i
                n_, off = (vn, ps * 5120) if ps < 8 else (vn2, (ps - 8) * 5120)
            else:
                n_, off = vt, u * 20480
            L.append(((s, t), f"ds_read_b64_tr_b16 {fb[b][t](2)}, {n_[t]} offset:{off}"))
            L.append(((s, t), f"ds_read_b64_tr_b16 {(fb[b][t]+2)(2)}, {n_[t^2]} offset:{off + 2560}"))
        return L

    EP = epi_pre()
    a(f"s_lshl_b32 {s_tmp}, {s_rt2}, 3")
    a(f"s_mul_i32 {s_t2}, {s_tmp}, 187")
    a(f"s_lshr_b32 {s_t2}, {s_t2}, 11")
    a(f"s_add_u32 {s_t2}, {s_t2}, 1")
    a(f"s_mul_i32 {s_t2}, {s_t2}, 11")
    a(f"s_add_u32 {s_tmp}, {s_tg}, {s_w}")
    a(f"s_cmp_ge_u32 {s_tmp}, {s_t2}")
    a(f"s_cselect_b32 {s_sh0}, 16, 0")
    a(f"s_add_u32 {s_tmp}, {s_tmp}, 1")
    a(f"s_cmp_ge_u32 {s_tmp}, {s_t2}")
    a(f"s_cselect_b32 {s_sh1}, 16, 0")
    a(f"s_mov_b32 {s_rdy}, 0")
    PR = P("P2PR", 3)
    for s in range(PR):
        for tag, l in read_list(s):
            a(l)
            Q.issue(tag)
    for s in range(OA):
        need_ready(s)
        if s == 0:
            stamp(a, "p2goA")
        oload(s)
    for s in range(PR, NB):
        for tag, l in read_list(s):
            a(l)
            Q.issue(tag)
    XS = P("P2XS", 6)
    for s in range(20):
        if s == XS:
            lgate("S", 40, 1)
            xloads()
            gloads()
            VQ.extend(["x"] * 4)
            Q.drain(emit=False)
            Q.issue("sel")
        if s - 1 + NB == 10:
            lgate("W", 44, 4)
            Q.drain(emit=False)
            stamp(a, "p2w2")
        vwait(s)
        rl = read_list(s - 1 + NB) if (s >= 1 and s - 1 + NB < 20) else []
        k = 0
        for t in range(4):
            Q.need((s, t))
            for m in range(2):
                a(f"{MFMA} {acc[m][t](4)}, {fb[s % NB][t](4)}, {of[s % RO][m](4)}, {'0' if s == 0 else acc[m][t](4)}")
                if k < len(rl):
                    a(rl[k][1])
                    Q.issue(rl[k][0])
                    k += 1
                for _ in range(2 if not rl else 1):
                    if "x" not in VQ and s > XS and EP:
                        a(EP.pop(0))
        if s + OA < 20:
            need_ready(s + OA)
            if s + OA == 19:
                stamp(a, "p2go")
            oload(s + OA)
    assert not EP and OA <= RO
    seg_f0 = seg_f1 = len(a.lines)
    stamp(a, "p2mm")
    a("s_nop 3")
    for t in range(4):
        for m in range(2):
            tr = fb[m][t]
            a(f"v_cvt_pk_bf16_f32 {tr}, {acc[m][t]}, {acc[m][t]+1}")
            a(f"v_cvt_pk_bf16_f32 {tr+1}, {acc[m][t]+2}, {acc[m][t]+3}")
            a(f"ds_write_b64 {v_sw}, {tr(2)} offset:{m*16*SP + t*32}")

    seg_h0 = len(a.lines)
    a.label("K_P2")
    a(f"s_cmp_ge_u32 {s_w}, 4")
    a("s_cbranch_scc1 K_P2_HELP")
    p2_common()
    p2_gemm_setup()
    p2_gemm_setup2()
    a("s_branch K_P2_AUXW")
    a.label("K_P2_AUXW0")
    if P("WDEF", 0) == 1:
        lgate("WD", 48, 1, 2)
    if P("WDEF", 0) == 2:
        lgate("WD", 52, 4, 2)
    a.label("K_P2_AUXW")
    wo_voff(v_wo)
    wo_blocks(v_wo, s_w, 0, s_k1, s_k2, s_so, P("THR", 6))
    wo_blocks(v_wo, s_w, 1, s_k1, s_k2, s_so, P("THR", 6))
    a(f"v_mov_b32 {v_t1}, 1")
    a("s_waitcnt vmcnt(0)")
    a("s_mov_b64 exec, 1")
    a(f"ds_add_u32 {v_yb}, {v_t1} offset:44")
    a("s_mov_b64 exec, -1")
    lgate("WA", 44, 4)
    a("s_branch K_P2_GEMM")
    V.release(mV3)
    a.label("K_P2_HELP")
    a(f"s_setprio {P('HPRIO', 3)}")
    a(f"s_lshl_b32 {s_tg}, {s_rt2}, 3")
    a(f"s_mul_i32 {s_k1}, {s_tg}, 187")
    a(f"s_lshr_b32 {s_k1}, {s_k1}, 11")
    a(f"s_add_u32 {s_tmp}, {s_tg}, 7")
    a(f"s_mul_i32 {s_k2}, {s_tmp}, 187")
    a(f"s_lshr_b32 {s_k2}, {s_k2}, 11")
    a(f"s_sub_u32 {s_k2}, {s_k2}, {s_k1}")
    a(f"s_lshl_b32 {s_k2}, {s_k2}, 4")
    a(f"s_or_b32 {s_k2}, {s_k2}, 15")
    a(f"v_and_b32 {v_fa}, {s_k2}, {v_lane}")
    a(f"v_lshl_add_u32 {v_fa}, {v_fa}, 2, {s_mb}")
    a(f"s_cmp_lg_u32 {s_w}, 7")
    a("s_cbranch_scc1 K_P2_N7")
    zpoll(1)
    a(f"global_load_dword {v_smp}, {v_fa}, {WS(2)} {SC_POLL}")
    a.label("K_P2_N7")
    p2_common()
    srd(a, sY, WS, YP_BYTES, YP_OFF)
    vs = V.a(4)
    yq = V.many(14, 4)
    v_one = V.a()
    a(f"v_mov_b32 {v_one}, 1")
    a(f"s_cmp_eq_u32 {s_w}, 7")
    a("s_cbranch_scc1 K_P2_FLAGS")
    xloads()
    a(f"s_cmp_lg_u32 {s_w}, 6")
    a("s_cbranch_scc1 K_P2_HW")
    a(f"s_mov_b32 {s_tmp}, {SPIN}")
    a.label("K_P2_DPOLL")
    a(f"v_cmp_eq_u32 vcc, 0, {v_smp}")
    a("s_cbranch_vccz K_P2_DOK")
    a(f"s_cmp_eq_u32 {s_tmp}, {SPIN}")
    a("s_cbranch_scc1 K_P2_DNS")
    a(f"s_sleep {P('DSLEEP', 12)}")
    a.label("K_P2_DNS")
    mb_sample(v_da)
    a(f"s_sub_u32 {s_tmp}, {s_tmp}, 1")
    a("s_waitcnt vmcnt(0)")
    a(f"s_cmp_lg_u32 {s_tmp}, 0")
    a("s_cbranch_scc1 K_P2_DPOLL")
    a.label("K_P2_DOK")
    a(f"v_cmp_gt_u32 vcc, 16, {v_lane}")
    a("s_nop 1")
    a(f"v_cndmask_b32 {v_t0}, 0, {v_smp}, vcc")
    wave_top2(a, v_t0, v_t1, s_k1, s_k2, s_t3)
    for t, sk in enumerate((s_k1, s_k2)):
        a(f"s_and_b32 {s_tmp}, {sk}, 0x7ff")
        a(f"s_sub_u32 {s_tmp}, 2047, {s_tmp}")
        a(f"v_mov_b32 {vs+t}, {s_tmp}")
        a(f"v_mov_b32 {v_t2}, {sk}")
        a(f"v_and_b32 {v_t2}, 0xffff0000, {v_t2}")
        a(f"v_ashrrev_i32 {v_t3}, 31, {v_t2}")
        a(f"v_not_b32 {v_t3}, {v_t3}")
        a(f"v_or_b32 {v_t3}, 0x80000000, {v_t3}")
        a(f"v_xor_b32 {v_t2}, {v_t2}, {v_t3}")
        a(f"v_and_b32 {v_t2}, 0xffff0000, {v_t2}")
        sigmoid(a, v_t2, v_t2, v_t3)
        bf16r(a, vs + 2 + t, v_t2)
    a(f"ds_write_b128 {v_yb}, {vs(4)}")
    a(f"ds_write_b32 {v_yb}, {v_one} offset:40")
    a.label("K_P2_HW")
    lgate("S2", 40, 1, 1)
    gloads()
    a(f"s_cmp_eq_u32 {s_w}, 6")
    a("s_cbranch_scc1 K_P2_E")
    a("s_waitcnt lgkmcnt(0)")
    a(f"s_cmp_eq_u32 {s_w}, 4")
    a("s_cselect_b64 vcc, -1, 0")
    a("s_nop 1")
    a(f"v_cndmask_b32 {v_t0}, {vsel+1}, {vsel}, vcc")
    a(f"v_cndmask_b32 {v_t3}, {vsel+3}, {vsel+2}, vcc")
    a("s_nop 0")
    a(f"v_readfirstlane_b32 {s_k1}, {v_t0}")
    a("s_nop 3")
    a(f"s_sub_u32 {s_tmp}, {s_k1}, {s_row0}")
    a(f"s_cmp_lt_u32 {s_tmp}, 128")
    a("s_cbranch_scc0 K_P2_E")
    a(f"v_min_u32 {v_t1}, {NSL-1}, {v_lane}")
    a(f"v_lshlrev_b32 {v_t1}, 5, {v_t1}")
    a(f"v_add_u32 {v_t1}, {FL_OFF + YFL}, {v_t1}")
    lgate("Y", 32, P("YG", 0x01000000), 1)
    a(f"s_mov_b32 {s_tmp}, {SPIN}")
    a.label("K_P2_YPOLL")
    a(f"global_load_dwordx4 {vs(4)}, {v_t1}, {WS(2)} {SC_POLL}")
    a(f"s_sub_u32 {s_tmp}, {s_tmp}, 1")
    a("s_waitcnt vmcnt(0)")
    a(f"v_and_b32 {v_t0}, {vs}, {vs+1}")
    a(f"v_and_b32 {v_t0}, {v_t0}, {vs+2}")
    a(f"v_and_b32 {v_t0}, {v_t0}, {vs+3}")
    a(f"v_cmp_ne_u32 vcc, 1, {v_t0}")
    a("s_cbranch_vccz K_P2_YGO")
    a(f"s_sleep {P('YSLEEP', 8)}")
    a(f"s_cmp_lg_u32 {s_tmp}, 0")
    a("s_cbranch_scc1 K_P2_YPOLL")
    a.label("K_P2_YGO")
    a(f"v_and_b32 {v_t0}, 15, {v_lane}")
    a(f"v_lshlrev_b32 {v_t0}, 4, {v_t0}")
    a(f"v_mul_u32_u24 {v_t2}, 5120, {v_g}")
    a(f"s_sub_u32 {s_k2}, {s_w}, 4")
    a(f"s_mul_i32 {s_t2}, {s_k2}, 2560")
    a(f"s_lshl_b32 {s_tmp}, {s_ct}, 8")
    a(f"s_add_u32 {s_tmp}, {s_tmp}, {s_t2}")
    a(f"v_add3_u32 {v_t1}, {v_t0}, {v_t2}, {s_tmp}")
    NQ = (NSL + 3) // 4
    for q in range(NQ):
        a(f"s_mov_b32 {s_so}, {q*20480}")
        a(f"buffer_load_dwordx4 {yq[q](4)}, {v_t1}, {sY(4)}, {s_so} offen {SC_LD}")
    for q in range(1, NQ):
        a(f"s_waitcnt vmcnt({NQ-1-q})")
        for e in range(4):
            a(f"v_add_f32 {vs+e}, {(vs if q > 1 else yq[0])+e}, {yq[q]+e}")
    for swap in ("v_permlane16_swap_b32", "v_permlane32_swap_b32"):
        for e in range(4):
            a(f"v_mov_b32 {yq[0]+e}, {vs+e}")
        a("s_nop 0")
        for e in range(4):
            a(f"{swap} {vs+e}, {yq[0]+e}")
        for e in range(4):
            a(f"v_add_f32 {vs+e}, {vs+e}, {yq[0]+e}")
    for e in range(4):
        bf16r(a, vs + e, vs + e)
        a(f"v_mul_f32 {vs+e}, {v_t3}, {vs+e}")
        bf16r(a, vs + e, vs + e)
    a(f"s_lshl_b32 {s_tmp}, {s_k2}, 8")
    a(f"s_add_u32 {s_tmp}, {s_tmp}, {YB + 256}")
    a(f"v_add_u32 {v_t0}, {s_tmp}, {v_t0}")
    a(f"ds_write_b128 {v_t0}, {vs(4)}")
    a("s_branch K_P2_E")
    a.label("K_P2_FLAGS")
    a("s_mov_b32 exec_hi, 0")
    a("s_waitcnt vmcnt(0)")
    a(f"s_mov_b32 {s_tmp}, {SPIN}")
    a.label("K_P2_FCHK")
    a(f"v_cmp_eq_u32 vcc, 1, {v_smp}")
    a("s_nop 1")
    a(f"v_mov_b32 {v_t0}, vcc_lo")
    a(f"ds_write_b32 {v_yb}, {v_t0} offset:32")
    a("s_cmp_eq_u32 vcc_lo, -1")
    a("s_cbranch_scc1 K_P2_FGO")
    a("s_cmp_lg_u32 vcc_lo, 0")
    a("s_cbranch_scc1 K_P2_FS")
    a(f"s_sleep {P('FSLEEP0', 16)}")
    a.label("K_P2_FS")
    a(f"s_sleep {P('FSLEEP', 6)}")
    a(f"global_load_dword {v_smp}, {v_fa}, {WS(2)} {SC_POLL}")
    a(f"s_sub_u32 {s_tmp}, {s_tmp}, 1")
    a("s_waitcnt vmcnt(0)")
    a("s_cbranch_scc0 K_P2_FCHK")
    a(f"v_mov_b32 {v_t0}, -1")
    a(f"ds_write_b32 {v_yb}, {v_t0} offset:32")
    a.label("K_P2_FGO")
    a("s_mov_b64 exec, -1")
    xloads()
    lgate("S3", 40, 1, 1)
    gloads()
    a.label("K_P2_E")
    a("s_setprio 0")
    a("s_waitcnt vmcnt(0)")
    for l in epi_pre():
        a(l)
    a("s_branch K_P2_E2")
    seg_h1 = len(a.lines)

    V.release(mV3)
    a.label("K_P2_E2")
    av = V.a(8)
    yt = V.a(12)
    ta = V.a(4)
    a("s_waitcnt lgkmcnt(0)")
    for k in range(2):
        a(f"v_readfirstlane_b32 {s_sel+k}, {vsel+k}")
    s_r16 = S.a()
    a(f"s_lshl_b32 {s_r16}, {s_tg}, 4")
    a("s_barrier")
    stamp(a, "p2e")
    a(f"ds_read_b128 {av(4)}, {v_sr}")
    a(f"ds_read_b128 {(av+4)(4)}, {v_sr} offset:{8*SP}")
    rare = Asm()
    for t in range(2):
        a(f"s_sub_u32 {s_tmp}, {s_sel+t}, {s_r16}")
        a(f"s_cmp_lt_u32 {s_tmp}, 16")
        a(f"s_cbranch_scc1 K_YROW{t}")
        a.label(f"K_NOY{t}")
        r_ = rare
        r_.label(f"K_YROW{t}")
        r_(f"v_and_b32 {v_t0}, 7, {v_lane}")
        r_(f"v_lshlrev_b32 {v_t0}, 5, {v_t0}")
        r_(f"v_add_u32 {v_t0}, {YB + 256 + t*256}, {v_t0}")
        r_(f"ds_read_b128 {yt(4)}, {v_t0}")
        r_(f"ds_read_b128 {(yt+4)(4)}, {v_t0} offset:16")
        r_(f"s_and_b32 {s_t2}, {s_tmp}, 7")
        r_(f"v_cmp_eq_u32 vcc, {s_t2}, {v_l3}")
        r_(f"s_cmp_ge_u32 {s_tmp}, 8")
        r_(f"s_cbranch_scc1 K_YR1_{t}")
        for j in range(2):
            if j:
                r_.label(f"K_YR1_{t}")
            r_("s_waitcnt lgkmcnt(0)")
            for i in range(8):
                tt_ = yt + 8 + (i & 3)
                if i & 1:
                    r_(f"v_and_b32 {tt_}, 0xffff0000, {xv+4*j+i//2}")
                else:
                    r_(f"v_lshlrev_b32 {tt_}, 16, {xv+4*j+i//2}")
                r_(f"v_add_f32 {tt_}, {tt_}, {yt+i}")
                bf16r(r_, tt_, tt_)
                r_(f"v_mul_f32 {tt_}, {tt_}, {om[j]}")
                if RM:
                    bf16r(r_, tt_, tt_)
                r_(f"v_cndmask_b32 {bx+8*j+i}, {bx+8*j+i}, {tt_}, vcc")
            r_(f"s_branch K_NOY{t}")
    OSC = os.environ.get("OUT_SC", "sc1")
    for j in range(2):
        a(f"s_waitcnt lgkmcnt({1-j})")
        for i in range(4):
            r = av + 4 * j + i
            t = ta + 2 * (i & 1)
            a(f"v_lshlrev_b32 {t}, 16, {r}")
            a(f"v_and_b32 {t+1}, 0xffff0000, {r}")
            if RM:
                a(f"v_mul_f32 {t}, {t}, {gv+j}")
                a(f"v_mul_f32 {t+1}, {t+1}, {gv+j}")
                a(f"v_cvt_pk_bf16_f32 {t+1}, {t}, {t+1}")
                a(f"v_lshlrev_b32 {t}, 16, {t+1}")
                a(f"v_and_b32 {t+1}, 0xffff0000, {t+1}")
                a(f"v_add_f32 {t}, {t}, {bx+8*j+2*i}")
                a(f"v_add_f32 {t+1}, {t+1}, {bx+8*j+2*i+1}")
            else:
                a(f"v_fma_f32 {t}, {t}, {gv+j}, {bx+8*j+2*i}")
                a(f"v_fma_f32 {t+1}, {t+1}, {gv+j}, {bx+8*j+2*i+1}")
            a(f"v_cvt_pk_bf16_f32 {r}, {t}, {t+1}")
        a(f"buffer_store_dwordx4 {(av+4*j)(4)}, {v_xo}, {sOut(4)}, {'0' if j == 0 else s_c10} offen {OSC}")
    a.label("K_END")
    stamp_flush(a, 0, WS, "K_STX")
    a.label("K_EXIT")
    a("s_endpgm")
    L = a.lines
    a.lines = L[:seg_aux0] + L[seg_aux1:seg_f0] + L[seg_f1:seg_h0] + L[seg_h1:] + rare.lines + spin.lines + L[seg_f0:seg_f1] \
        + L[seg_h0:seg_h1] + L[seg_aux0:seg_aux1]
    a.label("K_CODE_END")
    return V.high, S.high


def kd(name, vg, sg):
    vg = (vg + 7) // 8 * 8
    return """.amdhsa_kernel %s
  .amdhsa_next_free_vgpr %d
  .amdhsa_next_free_sgpr %d
  .amdhsa_accum_offset %d
  .amdhsa_group_segment_fixed_size 0
  .amdhsa_kernarg_size 96
  .amdhsa_user_sgpr_count 2
  .amdhsa_user_sgpr_kernarg_segment_ptr 1
  .amdhsa_system_sgpr_workgroup_id_x 1
.end_amdhsa_kernel""" % (name, vg, 100 if STAMP else max(sg, 16), vg)


def main():
    a = Asm()
    for l in HEADER:
        a.raw(l)
    a.raw("; @launch grid=(256,1,1) block=(512,1,1) lds=%d" % LDS_BYTES)
    a.raw('.amdgcn_target "amdgcn-amd-amdhsa--gfx950"')
    a.raw(".text")
    v1, s1 = gen(a)
    a.raw('.section .rodata,"a"')
    a.raw(".p2align 6")
    a.raw(kd(KNAME, v1, s1))
    out = sys.argv[1] if len(sys.argv) > 1 else os.path.join(os.path.dirname(os.path.abspath(__file__)), "..", NAME + ".s")
    open(out, "w").write(a.text())
    print("wrote", out, "v%d s%d" % (v1, s1))


if __name__ == "__main__":
    main()
```

```python
from common import *

KNAME = NAME + "_kernel"
SC_POLL = os.environ.get("SC_POLL", "sc1")
SC_FLAG = os.environ.get("SC_FLAG", "sc1")
SC_ST = os.environ.get("SC_ST", "sc1")
SC_LD = os.environ.get("SC_LD", "sc1")
FNT = os.environ.get("FNT", "")
FNTD = os.environ.get("FNTD", FNT)
FL_OFF = 0x80000
YFL = 160 * 256
GW0 = 24
MT = 12
MH = 6
RROWS = (MT - 1) * 16
XREG = MT * 2048
SLOT = XREG + 16384
LA = 2
NS = 3
NCH = 10
PITCH = 272
TP = 16 * PITCH
QKV_BASE = 2 * SLOT
WO_L = 0
STG = 140288
SP = 144
YB = STG + 8 * 16 * SP
LDS_BYTES = 4 * SLOT
QO, KO, VO = 0, 80, 160
SPIN = 0x20000
ZW2 = 48
ZW = 16


def gen(a):
    a.raw(".p2align 8")
    a.raw(f".globl {KNAME}")
    a.raw(f".type {KNAME},@function")
    a.label(KNAME)
    S = RA("s", 3, 82 if STAMP else 100)
    V = RA("v", 1, 256)
    s_tmp = S.a()
    s_px = S.a(2)
    s_pws = S.a(4)
    s_po = S.a(2)
    sX, sW, sO, sWO = S.many(4, 4)
    s_xcd, s_i, s_w, s_rt, s_hg, s_t2, s_n = S.many(7)
    s_half = S.a()
    s_fl = S.a()
    s_pc = S.a(2)
    v_lane, v_t0, v_t1, v_t2, v_t3, v_pf, v_smp = V.many(7)
    DBG, WS = s_pws, s_pws + 2

    s_rt2, s_ct = S.many(2)
    s_mb = S.a()
    a("s_cmp_ge_u32 s2, 256")
    a("s_cbranch_scc1 K_EXIT")
    a(f"s_load_dwordx2 {sX(2)}, s[0:1], 0")
    a(f"s_load_dwordx2 {sW(2)}, s[0:1], 8")
    a(f"v_readfirstlane_b32 {s_w}, v0")
    a(f"s_load_dwordx4 {s_pws(4)}, s[0:1], 80")
    a(f"s_load_dwordx2 {sWO(2)}, s[0:1], 16")
    a(f"s_load_dwordx2 {s_po(2)}, s[0:1], 72")
    stamp_init(a)
    a(f"s_and_b32 {s_xcd}, s2, 7")
    a(f"v_and_b32 {v_lane}, 63, v0")
    a(f"s_mov_b32 {sX+2}, 0x{X_BYTES:x}")
    a(f"s_mov_b32 {sX+3}, 0x20000")
    a(f"s_lshr_b32 {s_w}, {s_w}, 6")
    a("s_cmp_lt_u32 s2, 64")
    a("s_cbranch_scc1 K_SLOW")
    a(f"s_cmp_ge_u32 {s_w}, 4")
    a("s_cbranch_scc1 K_SLOW")

    def slow_head():
        a(f"s_getpc_b64 {s_pc(2)}")
        a.label("K_PC")
        a("s_bfe_u32 s3, s2, 0x30003")
        a("s_lshl_b32 s3, s3, 5")
        a("s_sub_u32 s3, s3, 256")
        a(f"s_sub_u32 {s_pc}, {s_pc}, K_PC-{KNAME}")
        a(f"s_subb_u32 {s_pc+1}, {s_pc+1}, 0")
        a(f"v_add_u32 {v_t0}, s3, v0")
        a(f"v_lshlrev_b32 {v_t0}, 7, {v_t0}")
        a(f"v_min_u32 {v_t0}, K_CODE_END-{KNAME}-4, {v_t0}")
        a(f"v_lshrrev_b32 {v_t1}, 5, v0")
        a(f"v_cmp_eq_u32 vcc, 8, {v_t1}")
        a("s_and_saveexec_b64 %s, vcc" % s_px(2))
        a("s_cbranch_execz K_NOPF")
        a(f"global_load_dword {v_pf}, {v_t0}, {s_pc(2)}")
        a.label("K_NOPF")
        a("s_mov_b64 exec, -1")
        a(f"v_mov_b32 {v_t0}, 0")
        a(f"v_mov_b32 {v_t1}, {YB + 32}")
        for k in range(3):
            a(f"ds_write2_b32 {v_t1}, {v_t0}, {v_t0} offset0:{2*k} offset1:{2*k+1}")

    def common_ids():
        a(f"v_mov_b32 {v_smp}, 0")
        a(f"s_lshr_b32 {s_i}, s2, 3")
        a(f"s_xor_b32 {s_w}, {s_w}, 4")
        a(f"s_mov_b32 {sWO+2}, 0x{640*1280:x}")
        a(f"s_mov_b32 {sWO+3}, 0x20000")
        a(f"s_lshr_b32 {s_n}, {s_i}, 3")
        a(f"s_lshl_b32 {s_n}, {s_n}, 2")
        a(f"s_and_b32 {s_tmp}, {s_i}, 3")
        a(f"s_add_u32 {s_n}, {s_n}, {s_tmp}")
        a(f"s_add_u32 {s_n}, {s_n}, 4")
        a(f"s_bitcmp1_b32 {s_i}, 2")
        a(f"s_cselect_b32 {s_n}, -1, {s_n}")
        a(f"s_cmp_lt_u32 {s_i}, 8")
        a(f"s_cselect_b32 {s_n}, {s_i}, {s_n}")
        a(f"s_lshl_b32 {s_rt2}, {s_xcd}, 1")
        a(f"s_cmp_ge_u32 {s_n}, 10")
        a(f"s_addc_u32 {s_rt2}, {s_rt2}, 0")
        a(f"s_sub_u32 {s_ct}, {s_n}, 10")
        a(f"s_cmp_ge_u32 {s_n}, 10")
        a(f"s_cselect_b32 {s_ct}, {s_ct}, {s_n}")
        a(f"s_mul_i32 {s_mb}, {s_xcd}, 20")
        a(f"s_add_u32 {s_mb}, {s_mb}, {s_n}")
        a(f"s_and_b32 {s_mb}, {s_mb}, 255")
        a(f"s_lshl_b32 {s_mb}, {s_mb}, 8")
        a(f"s_add_u32 {s_mb}, {s_mb}, {FL_OFF}")

    mS, mV = S.mark(), V.mark()

    def zpoll(k):
        a(f"v_mov_b32 {v_t2}, {ZW2*4}")
        a(f"s_mov_b32 {s_tmp}, {SPIN}")
        a.label(f"K_ZPOLL{k}")
        a(f"v_readfirstlane_b32 {s_t2}, {v_smp}")
        a("s_nop 3")
        a(f"s_sub_u32 {s_tmp}, {s_tmp}, 1")
        a(f"s_cselect_b32 {s_t2}, 1, {s_t2}")
        a(f"s_cmp_lg_u32 {s_t2}, 0")
        a(f"s_cbranch_scc1 K_ZOK{k}")
        if k == 7:
            a(f"s_sleep {P('ZSLEEP', 8)}")
        a(f"global_load_dword {v_smp}, {v_t2}, {DBG(2)} {SC_POLL}")
        a("s_waitcnt vmcnt(0)")
        a(f"s_branch K_ZPOLL{k}")
        a.label(f"K_ZOK{k}")

    def mb_sample(vaddr):
        a(f"v_min_u32 {vaddr}, 23, {v_lane}")
        a(f"v_lshl_add_u32 {vaddr}, {vaddr}, 2, {s_mb}")
        a(f"global_load_dword {v_smp}, {vaddr}, {WS(2)} offset:128 {SC_POLL}")

    def wo_voff(v_wo):
        a(f"v_lshrrev_b32 {v_t0}, 3, {v_lane}")
        a(f"v_mul_u32_u24 {v_t0}, 1280, {v_t0}")
        a(f"v_lshrrev_b32 {v_t1}, 4, {v_lane}")
        a(f"v_lshlrev_b32 {v_t1}, 1, {v_t1}")
        a(f"v_and_b32 {v_t2}, 7, {v_lane}")
        a(f"v_xor_b32 {v_t1}, {v_t1}, {v_t2}")
        a(f"v_lshl_add_u32 {v_t0}, {v_t1}, 4, {v_t0}")
        a(f"s_lshl_b32 {s_t2}, {s_ct}, 7")
        a(f"v_add_u32 {v_wo}, {s_t2}, {v_t0}")

    def wo_blocks(v_wo, s_k, late, s_src, s_dst, s_o, thr=0):
        a(f"s_lshl_b32 {s_src}, {s_k}, 2")
        a(f"s_lshr_b32 {s_src}, 0x{0x6431 if late else 0x7520:x}, {s_src}")
        a(f"s_and_b32 {s_src}, {s_src}, 7")
        a(f"s_mul_i32 {s_src}, {s_src}, 51200")
        a(f"s_mul_i32 {s_dst}, {s_k}, 5120")
        for b in range(2):
            for r in range(5):
                a(f"s_add_u32 {s_o}, {s_src}, {b*8*51200 + r*10240}")
                a(f"s_add_u32 m0, {s_dst}, {WO_L + late*40960 + b*20480 + r*1024}")
                a(f"s_waitcnt vmcnt({thr-1})" if thr else "s_nop 0")
                a(f"buffer_load_dwordx4 {v_wo}, {sWO(4)}, {s_o} offen lds")

    s_pos = s_half

    def main_ids():
        a(f"s_lshr_b32 {s_rt}, {s_xcd}, 1")
        a(f"s_mul_i32 {s_rt}, {s_rt}, 3")
        a(f"s_lshr_b32 {s_tmp}, {s_i}, 3")
        a(f"s_add_u32 {s_rt}, {s_rt}, {s_tmp}")
        a(f"s_sub_u32 {s_rt}, {s_rt}, 1")
        a(f"s_and_b32 {s_pos}, {s_i}, 3")
        a(f"s_and_b32 {s_tmp}, {s_i}, 4")
        a(f"s_lshl_b32 {s_tmp}, {s_tmp}, 1")
        a(f"s_add_u32 {s_pos}, {s_pos}, {s_tmp}")
        a(f"s_and_b32 {s_tmp}, {s_xcd}, 1")
        a(f"s_lshl_b32 {s_tmp}, {s_tmp}, 2")
        a(f"s_add_u32 {s_pos}, {s_pos}, {s_tmp}")

    v_row, v_g, v_r, v_c = V.many(4)
    v_lo, v_hi, v_va, v_os, v_ot, v_neg, v_wv, v_fo, v_ow, v_ox, v_or, v_hq = V.many(12)
    v_b0, v_b1, v_bp, v_ps = V.many(4, 4)
    s_tg = S.a()
    s_g0 = S.a(2)
    s_c = S.a(2)
    s_sc = S.a(2)
    s_oo = S.many(3)

    def lane_consts():
        a(f"v_and_b32 {v_row}, 15, {v_lane}")
        a(f"v_lshrrev_b32 {v_g}, 4, {v_lane}")
        a(f"v_bfe_u32 {v_r}, {v_lane}, 2, 2")
        a(f"v_and_b32 {v_c}, 3, {v_lane}")

    def att_consts():
        srd(a, sO, WS, O_BYTES, O_OFF)
        a(f"s_lshr_b32 {s_tmp}, {s_w}, 1")
        a(f"s_mul_i32 {s_tmp}, {s_tmp}, 3")
        a(f"s_mul_i32 {s_tg}, {s_rt}, {MT-1}")
        a(f"s_add_u32 {s_tg}, {s_tg}, {s_tmp}")
        a(f"s_mul_i32 {s_tmp}, {s_tmp}, {TP}")
        a(f"s_and_b32 {s_t2}, {s_w}, 1")
        a(f"s_mul_i32 {s_c}, {s_t2}, 40")
        a(f"s_add_u32 {s_tmp}, {s_tmp}, {s_c}")
        a(f"s_add_u32 {s_tmp}, {s_tmp}, {QKV_BASE}")
        a(f"v_mul_u32_u24 {v_hi}, {PITCH}, {v_row}")
        a(f"v_lshl_add_u32 {v_lo}, {v_g}, 3, {v_hi}")
        a(f"v_add_u32 {v_lo}, {s_tmp}, {v_lo}")
        a(f"v_add3_u32 {v_hi}, {v_hi}, 32, {s_tmp}")
        a(f"s_sub_u32 {s_c}, {240 - QO - 32}, {s_c}")
        a(f"v_add_u32 {v_t0}, {s_c}, {v_hi}")
        a(f"v_cmp_eq_u32 vcc, 0, {v_g}")
        a("s_nop 1")
        a(f"v_cndmask_b32 {v_hq}, {v_t0}, {v_hi}, vcc")
        a(f"v_lshl_add_u32 {v_va}, {v_g}, 2, {v_r}")
        a(f"v_mul_u32_u24 {v_va}, {PITCH}, {v_va}")
        a(f"v_lshl_add_u32 {v_va}, {v_c}, 3, {v_va}")
        a(f"v_add_u32 {v_va}, {s_tmp}, {v_va}")
        a(f"s_lshl_b32 {s_t2}, {s_t2}, 3")
        a(f"s_lshl_b32 {s_tmp}, {s_pos}, 10")
        a(f"s_add_u32 {s_tmp}, {s_tmp}, {s_t2}")
        a(f"v_lshl_add_u32 {v_os}, {v_lane}, 4, {s_tmp}")
        a(f"s_lshl_b32 {s_tmp}, {s_pos}, 8")
        a(f"s_add_u32 {s_tmp}, {s_tmp}, {s_t2}")
        a(f"s_add_u32 {s_tmp}, {s_tmp}, 16384")
        a(f"v_lshl_add_u32 {v_ot}, {v_lane}, 4, {s_tmp}")
        a(f"s_mul_i32 {s_oo[0]}, {s_tg}, 20480")
        a(f"s_add_u32 {s_oo[1]}, {s_oo[0]}, {20480}")
        a(f"s_add_u32 {s_oo[2]}, {s_oo[0]}, {2*20480}")
        a(f"v_mov_b32 {v_neg}, 0x{NEG:x}")
        a(f"v_lshlrev_b32 {v_t0}, 2, {v_g}")
        a(f"v_sub_u32 {v_t0}, {v_row}, {v_t0}")
        a(f"s_cmp_eq_u32 {s_tg}, 0")
        a(f"s_cselect_b32 {s_tmp}, 0x{NEG:x}, 0")
        for r in range(4):
            a(f"v_subrev_u32 {v_t1}, {r}, {v_t0}")
            a(f"v_and_b32 {v_t2}, 0x80000001, {v_t1}")
            a(f"v_cmp_eq_u32 vcc, 0, {v_t2}")
            a("s_nop 1")
            a(f"v_cndmask_b32 {v_b1+r}, {v_neg}, 0, vcc")
            a(f"v_cmp_eq_u32 vcc, 0x80000000, {v_t2}")
            a("s_nop 1")
            a(f"v_cndmask_b32 {v_b0+r}, {v_neg}, 0, vcc")
            a(f"v_add_f32 {v_bp+r}, {s_tmp}, {v_b0+r}")
        for p, vb in enumerate((v_b0, v_b1)):
            for k in range(2):
                lo = 0x0c0c0000 | ((2 * k + 1) << 8) | (2 * k)
                hi = 0x00000c0c | ((2 * k + 1) << 24) | ((2 * k) << 16)
                a(f"v_mov_b32 {v_t1}, 0x0c0c0c0c")
                a(f"v_mov_b32 {v_t2}, 0x{lo:x}")
                a(f"v_cmp_eq_u32 vcc, 0, {vb+2*k}")
                a(f"v_mov_b32 {v_t3}, 0x{hi:x}")
                a("s_nop 0")
                a(f"v_cndmask_b32 {v_t1}, {v_t1}, {v_t2}, vcc")
                a(f"v_cmp_eq_u32 vcc, 0, {vb+2*k+1}")
                a("s_nop 1")
                a(f"v_cndmask_b32 {v_ps+2*p+k}, {v_t1}, {v_t3}, vcc")
        a(f"s_mul_i32 {s_tmp}, {s_rt}, 11")
        a(f"s_add_u32 {s_t2}, {s_tmp}, 10")
        a(f"s_lshr_b32 {s_tmp}, {s_tmp}, 3")
        a(f"s_lshr_b32 {s_t2}, {s_t2}, 3")
        a(f"s_min_u32 {s_t2}, {s_t2}, 15")
        a(f"s_sub_u32 {s_t2}, {s_t2}, {s_tmp}")
        a(f"s_add_u32 {s_t2}, {s_t2}, 1")
        a(f"s_mul_i32 {s_t2}, {s_t2}, 10")
        a(f"s_bfm_b32 {s_fl}, {s_t2}, 0")
        a(f"v_mul_u32_u24 {v_t0}, 205, {v_lane}")
        a(f"v_lshrrev_b32 {v_t0}, 11, {v_t0}")
        a(f"v_add_u32 {v_t0}, {s_tmp}, {v_t0}")
        a(f"v_mul_u32_u24 {v_t0}, {8*187}, {v_t0}")
        a(f"v_lshrrev_b32 {v_t0}, 11, {v_t0}")
        a(f"v_sub_u32 {v_t0}, {s_rt}, {v_t0}")
        a(f"v_and_b32 {v_t0}, 1, {v_t0}")
        a(f"v_lshlrev_b32 {v_t0}, 6, {v_t0}")
        a(f"v_lshl_add_u32 {v_t0}, {v_lane}, 8, {v_t0}")
        a(f"s_mul_i32 {s_tmp}, {s_tmp}, 2560")
        a(f"s_lshl_b32 {s_t2}, {s_pos}, 2")
        a(f"s_add_u32 {s_tmp}, {s_tmp}, {s_t2}")
        a(f"s_add_u32 {s_tmp}, {s_tmp}, {FL_OFF}")
        a(f"v_add_u32 {v_fo}, {s_tmp}, {v_t0}")
        if P("ODENSE", 1):
            OB = SLOT
            a(f"s_lshr_b32 {s_tmp}, {s_w}, 1")
            a(f"s_mul_i32 {s_tmp}, {s_tmp}, 3")
            a(f"s_and_b32 {s_t2}, {s_w}, 1")
            a(f"s_lshl_b32 {s_t2}, {s_t2}, 3")
            a(f"v_lshl_add_u32 {v_t0}, {v_lane}, 4, {s_t2}")
            a(f"s_lshl_b32 {s_t2}, {s_tmp}, 10")
            a(f"s_add_u32 {s_t2}, {s_t2}, {OB}")
            a(f"v_add_u32 {v_ow}, {s_t2}, {v_t0}")
            a(f"s_lshl_b32 {s_t2}, {s_tmp}, 8")
            a(f"s_add_u32 {s_t2}, {s_t2}, {OB + 12288}")
            a(f"v_add_u32 {v_ox}, {s_t2}, {v_t0}")
            a(f"s_lshl_b32 {s_t2}, {s_w}, 10")
            a(f"s_add_u32 {s_t2}, {s_t2}, {OB}")
            a(f"v_lshl_add_u32 {v_or}, {v_lane}, 4, {s_t2}")
            a(f"s_mul_i32 {s_oo[0]}, {s_rt}, {(MT-1)*20480}")
            a(f"s_mul_i32 {s_tmp}, {s_w}, 20480")
            a(f"s_lshl_b32 {s_t2}, {s_pos}, 10")
            a(f"s_add_u32 {s_tmp}, {s_tmp}, {s_t2}")
            a(f"v_lshl_add_u32 {v_os}, {v_lane}, 4, {s_tmp}")
            a(f"v_add_u32 {v_t1}, {8*20480}, {v_os}")
            a(f"s_sub_u32 {s_tmp}, {s_w}, 4")
            a(f"s_lshl_b32 {s_tmp}, {s_tmp}, 2")
            a(f"v_add_u32 {v_t2}, {s_tmp}, {v_g}")
            a(f"v_mul_u32_u24 {v_t0}, 20480, {v_t2}")
            a(f"v_lshl_add_u32 {v_t0}, {v_row}, 4, {v_t0}")
            a(f"s_lshl_b32 {s_t2}, {s_pos}, 8")
            a(f"s_add_u32 {s_t2}, {s_t2}, 16384")
            a(f"v_add_u32 {v_t0}, {s_t2}, {v_t0}")
            a(f"v_mov_b32 {v_t3}, 0x10000000")
            a(f"v_cmp_gt_u32 vcc, {MT-1}, {v_t2}")
            a("s_nop 1")
            a(f"v_cndmask_b32 {v_t0}, {v_t3}, {v_t0}, vcc")
            a(f"s_cmp_lt_u32 {s_w}, 3")
            a("s_cselect_b64 vcc, -1, 0")
            a("s_nop 1")
            a(f"v_cndmask_b32 {v_ot}, {v_t0}, {v_t1}, vcc")
        a(f"s_mov_b64 {s_g0(2)}, 0xffff")
        a(f"s_mov_b32 {s_c}, 0x{LOG2E if P('RLOG', 1) else SCALE_L2E:x}")
        a(f"s_mov_b32 {s_c+1}, {s_c}")
        a(f"s_mov_b32 {s_sc}, 0x{f32bits(20 ** -0.5):x}")
        a(f"s_mov_b32 {s_sc+1}, {s_sc}")

    mV2 = V.mark()
    mS2 = S.mark()
    stamp(a, "role")
    v_xo = V.many(2)
    v_wo = V.many(2)
    s_lw, s_xb, s_wb, s_m0x, s_m0w, s_sox, s_sow, s_kc, s_so = S.many(9)
    PERM8 = [0, 2, 5, 7, 1, 3, 4, 6]
    KT = sum(((P('ROTH', 3) * PERM8[k]) % 10) << (4 * k) for k in range(8))
    a(f"s_lshr_b32 {s_hg}, s2, 1")
    a(f"s_and_b32 {s_hg}, {s_hg}, 28")
    a(f"v_lshrrev_b32 {v_t1}, 4, {v_lane}")
    a(f"s_lshr_b32 {s_kc}, 0x{KT:x}, {s_hg}")
    a(f"s_and_b32 {s_kc}, {s_kc}, 15")
    a(f"v_and_b32 {v_t2}, 7, {v_lane}")
    a(f"s_lshr_b32 {s_tmp}, s2, 6")
    a(f"s_lshl2_add_u32 {s_kc}, {s_tmp}, {s_kc}")
    a(f"v_lshrrev_b32 {v_t0}, 3, {v_lane}")
    a(f"s_add_u32 {s_kc}, {s_kc}, {s_xcd}")
    a(f"s_mul_i32 {s_t2}, {s_kc}, 205")
    a(f"v_xor_b32 {v_t2}, {v_t2}, {v_t1}")
    a(f"s_lshr_b32 {s_t2}, {s_t2}, 11")
    a(f"s_mul_i32 {s_t2}, {s_t2}, 10")
    a(f"v_mul_u32_u24 {v_t0}, 1280, {v_t0}")
    a(f"s_sub_u32 {s_kc}, {s_kc}, {s_t2}")
    a(f"s_lshr_b32 {s_xb}, {s_xcd}, 1")
    a(f"v_lshl_add_u32 {v_xo[0]}, {v_t2}, 4, {v_t0}")
    a(f"s_mul_i32 {s_xb}, {s_xb}, {3*RROWS*1280}")
    a(f"s_mul_i32 {s_tmp}, {s_tmp}, {RROWS*1280}")
    a(f"v_xor_b32 {v_xo[1]}, 64, {v_xo[0]}")
    a(f"s_add_u32 {s_xb}, {s_xb}, {s_tmp}")
    a(f"s_mul_i32 {s_wb}, {s_w}, {48*1280}")
    a(f"s_add_u32 {s_xb}, {s_xb}, {s_wb}")
    a(f"s_sub_u32 {s_xb}, {s_xb}, {(RROWS+16)*1280}")
    a(f"s_mul_i32 {s_m0x}, {s_w}, 6144")

    ORDER = [("w", 0), ("x", 0), ("w", 1), ("x", 1), ("x", 2), ("w", 2), ("x", 3), ("w", 3), ("x", 4), ("x", 5)]
    ORDER0 = [("x", j) for j in range(6)] + [("w", j) for j in range(4)]
    HS = P("HSPLIT", 5)

    def dma_head(kind):
        if "x" in kind:
            a(f"s_lshl_b32 {s_sox}, {s_kc}, 7")
            a(f"s_add_u32 {s_sox}, {s_sox}, {s_xb}")
        if "w" in kind:
            a(f"s_mul_i32 {s_sow}, {s_kc}, {64*3840}")
            a(f"s_add_u32 {s_sow}, {s_sow}, {s_wb}")
            a(f"s_add_u32 {s_kc}, {s_kc}, 1")
            a(f"s_cmp_eq_u32 {s_kc}, 10")
            a(f"s_cselect_b32 {s_kc}, 0, {s_kc}")

    def dma_part(c, lo, hi, order=ORDER, head=True):
        if c >= NCH:
            return
        sl = ((c + 1) % NS) * SLOT
        if lo == 0 and head:
            dma_head("xw")
        for kind, j in order[lo:hi]:
            if kind == "w":
                a(f"s_add_u32 m0, {s_m0w}, {sl + j*1024}")
                a(f"s_add_u32 {s_so}, {s_sow}, {j*4*3840}")
                a(f"buffer_load_dwordx4 {v_wo[j>>1]}, {sW(4)}, {s_so} offen lds")
            else:
                if j == 1:
                    a(f"s_add_u32 {s_so}, {s_sox}, {8*1280}")
                a(f"s_add_u32 m0, {s_m0x}, {sl + j*1024}")
                if j < 2:
                    a(f"s_max_i32 {s_so}, {s_so if j else s_sox}, 0")
                else:
                    a(f"s_add_u32 {s_so}, {s_sox}, {j*8*1280}")
                a(f"buffer_load_dwordx4 {v_xo[j&1]}, {sX(4)}, {s_so} offen lds")

    dma_head("x")
    stamp(a, "setup")
    a("s_waitcnt lgkmcnt(0)")
    stamp(a, "karg")
    dma_part(0, 0, 6, ORDER0, False)
    a(f"v_lshlrev_b32 {v_t0}, 1, {v_t1}")
    a(f"s_lshr_b32 {s_hg}, 0x64317520, {s_hg}")
    a(f"v_sub_u32 {v_t0}, {v_lane}, {v_t0}")
    a(f"s_and_b32 {s_hg}, {s_hg}, 7")
    a(f"v_and_b32 {v_t0}, 15, {v_t0}")
    a(f"s_and_b32 {s_tmp}, {s_xcd}, 1")
    a(f"v_mul_u32_u24 {v_t1}, 3840, {v_t1}")
    a(f"s_lshl3_add_u32 {s_hg}, {s_tmp}, {s_hg}")
    for jj in range(2):
        if jj:
            a(f"v_xor_b32 {v_t0}, 8, {v_t0}")
        a(f"v_mul_u32_u24 {v_t2}, 13, {v_t0}")
        if jj == 0:
            a(f"s_mul_i32 {s_tmp}, {s_hg}, 80")
        a(f"v_lshrrev_b32 {v_t2}, 6, {v_t2}")
        if jj == 0:
            a(f"s_add_u32 {s_wb}, {s_wb}, {s_tmp}")
        a(f"v_mul_u32_u24 {v_t2}, 1200, {v_t2}")
        if jj == 0:
            a(f"s_lshl_b32 {s_m0w}, {s_w}, 12")
        a(f"v_lshl_add_u32 {v_t2}, {v_t0}, 4, {v_t2}")
        if jj == 0:
            a(f"s_add_u32 {s_m0w}, {s_m0w}, {XREG}")
        a(f"v_add_u32 {v_t3}, 1, {v_t0}")
        if jj == 0:
            a(f"s_mov_b32 {sW+2}, 0x{640*3840:x}")
        a(f"v_and_b32 {v_t3}, 16, {v_t3}")
        if jj == 0:
            a(f"s_mov_b32 {sW+3}, 0x20000")
        a(f"v_lshl_add_u32 {v_t2}, {v_t3}, 24, {v_t2}")
        a(f"v_add_u32 {v_wo[jj]}, {v_t1}, {v_t2}")
        if jj == 0:
            dma_head("w")
        dma_part(0, 6 + 2 * jj, 8 + 2 * jj, ORDER0, False)
    dma_part(1, 0, HS)
    stamp(a, "issued")
    a(f"s_mov_b32 {s_lw}, {s_w}")
    common_ids()
    main_ids()
    lane_consts()
    att_consts()
    for c in range(NCH):
        outst = HS if c + 1 < NCH else 0
        a(f"s_waitcnt vmcnt({outst})")
        stamp(a, f"w{c}")
        a("s_barrier")
        stamp(a, f"c{c}")
        dma_part(c + 1, HS, 10)
        dma_part(c + 2, 0, HS)
        stamp(a, f"i{c}")
    a(f"s_cmp_eq_u32 {s_w}, 4")
    a("s_cbranch_scc1 K_NOSMP")
    a(f"v_mov_b32 {v_t0}, {ZW2*4}")
    a(f"global_load_dword {v_smp}, {v_t0}, {DBG(2)} {SC_POLL}")
    a.label("K_NOSMP")
    a(f"s_cmp_eq_u32 {s_n}, -1")
    a("s_cbranch_scc1 K_NOLT")
    wo_voff(v_wv)
    wo_blocks(v_wv, s_lw, 0, s_sox, s_sow, s_tmp)
    a("s_waitcnt vmcnt(10)")
    a("s_branch K_JOIN")
    if P("LTCH", 0):
        a(f"s_mul_i32 {s_tmp}, {s_lw}, 160")
        a(f"v_add_u32 {v_t0}, {s_tmp}, {v_lane}")
        a(f"v_mul_u32_u24 {v_t0}, 1280, {v_t0}")
        a(f"s_lshl_b32 {s_t2}, {s_ct}, 7")
        a(f"v_add_u32 {v_t0}, {s_t2}, {v_t0}")
        for k in range(3):
            a(f"s_mov_b32 {s_tmp}, {k*64*1280}")
            if k == 2:
                a("s_mov_b32 exec_hi, 0")
            a(f"buffer_load_dword {v_pf}, {v_t0}, {sWO(4)}, {s_tmp} offen")
        a("s_mov_b64 exec, -1")
        a("s_waitcnt vmcnt(3)")
        a("s_branch K_JOIN")
    a.label("K_NOLT")
    a("s_waitcnt vmcnt(0)")
    stamp(a, "loopend")
    a("s_branch K_JOIN")

    V.release(mV2)
    S.release(mS2)
    a.label("K_SLOW")
    slow_head()
    common_ids()
    a(f"s_cmp_lt_u32 {s_i}, 8")
    a("s_cbranch_scc1 K_AUX")
    main_ids()
    lane_consts()
    s_mh, s_nh = S.many(2)
    a(f"s_lshr_b32 {s_mh}, {s_w}, 1")
    a(f"s_and_b32 {s_nh}, {s_w}, 1")
    v_aa = [V.many(2) for _ in range(2)]
    v_ba = [V.many(4) for _ in range(2)]
    v_wa = V.a()
    a(f"v_lshrrev_b32 {v_t0}, 1, {v_row}")
    a(f"v_xor_b32 {v_t0}, {v_t0}, {v_g}")
    a(f"v_lshlrev_b32 {v_t0}, 4, {v_t0}")
    a(f"v_lshl_add_u32 {v_t0}, {v_row}, 7, {v_t0}")
    a(f"s_mul_i32 {s_tmp}, {s_mh}, {MH*2048}")
    a(f"v_add_u32 {v_aa[0][0]}, {s_tmp}, {v_t0}")
    a(f"v_xor_b32 {v_aa[0][1]}, 64, {v_aa[0][0]}")
    for ks in range(2):
        a(f"v_add_u32 {v_aa[1][ks]}, {2*SLOT}, {v_aa[0][ks]}")
    a(f"v_and_b32 {v_t0}, 1, {v_g}")
    a(f"v_lshl_or_b32 {v_t0}, {v_t0}, 2, {v_r}")
    a(f"v_lshl_add_u32 {v_t1}, {v_g}, 3, {v_r}")
    a(f"v_lshlrev_b32 {v_t1}, 8, {v_t1}")
    a(f"v_lshl_add_u32 {v_t1}, {v_c}, 3, {v_t1}")
    a(f"v_add_u32 {v_t1}, {XREG}, {v_t1}")
    a(f"s_lshl_b32 {s_tmp}, {s_nh}, 2")
    a(f"v_add_u32 {v_t0}, {s_tmp}, {v_t0}")
    for tt in range(4):
        a(f"v_add_u32 {v_t2}, {tt}, {v_t0}")
        a(f"v_and_b32 {v_t2}, 7, {v_t2}")
        a(f"v_lshl_add_u32 {v_ba[0][tt]}, {v_t2}, 5, {v_t1}")
        a(f"v_add_u32 {v_ba[1][tt]}, {2*SLOT}, {v_ba[0][tt]}")
    a(f"v_mul_u32_u24 {v_wa}, {PITCH}, {v_row}")
    a(f"v_lshl_add_u32 {v_wa}, {v_g}, 3, {v_wa}")
    a(f"s_mul_i32 {s_tmp}, {s_mh}, {MH*TP}")
    a(f"s_lshl_b32 {s_t2}, {s_nh}, 7")
    a(f"s_add_u32 {s_tmp}, {s_tmp}, {s_t2}")
    a(f"s_add_u32 {s_tmp}, {s_tmp}, {QKV_BASE}")
    a(f"v_add_u32 {v_wa}, {s_tmp}, {v_wa}")
    a("s_waitcnt lgkmcnt(0)")
    v_wt = V.a()
    a(f"s_mul_i32 {s_tmp}, {s_w}, 160")
    a(f"v_add_u32 {v_wt}, {s_tmp}, {v_lane}")
    a(f"v_mul_u32_u24 {v_wt}, 1280, {v_wt}")
    a(f"s_lshl_b32 {s_t2}, {s_ct}, 7")
    a(f"s_and_b32 {s_t2}, {s_t2}, 0x7ff")
    a(f"v_add_u32 {v_wt}, {s_t2}, {v_wt}")
    att_consts()
    acc = [V.many(4, 4) for _ in range(MH)]
    v_p0, v_p1 = V.many(2)
    s_pre = S.a()
    a(f"v_and_b32 {v_p0}, -16, {v_os}")
    a(f"v_and_b32 {v_p1}, -16, {v_ot}")
    a(f"s_mul_i32 {s_pre}, {s_rt}, {MT-1}")
    a(f"s_add_u32 {s_pre}, {s_pre}, {s_w}")
    a(f"s_mul_i32 {s_pre}, {s_pre}, 20480")
    OPC = [int(x) for x in os.environ.get("OPC", "").split(",") if x]

    def opre(k):
        if k == 2:
            a(f"s_cmp_eq_u32 {s_w}, 3")
            a("s_cbranch_scc1 K_OPRE")
        a(f"buffer_store_dwordx4 {v_b0(4)}, {v_p0}, {sO(4)}, {s_pre} offen {SC_ST}")
        a(f"s_mov_b64 exec, {s_g0(2)}")
        a(f"buffer_store_dwordx4 {v_b0(4)}, {v_p1}, {sO(4)}, {s_pre} offen {SC_ST}")
        a("s_mov_b64 exec, -1")
        a(f"s_add_u32 {s_pre}, {s_pre}, {4*20480}")
        if k == 2:
            a.label("K_OPRE")

    stamp(a, "issued")

    fa = [V.many(MH, 4) for _ in range(2)]
    fb = [V.many(4, 4) for _ in range(2)]

    def read_ops(c, ks):
        sl = (c + 1) % NS
        sp, so = sl >> 1, (sl & 1) * SLOT
        B, A = [], []
        for tt in range(4):
            B.append([f"ds_read_b64_tr_b16 {(fb[ks][tt]+2*h)(2)}, {v_ba[sp][tt]} offset:{so + ks*8192 + h*1024}"
                      for h in range(2)])
        for m in range(MH):
            A.append(f"ds_read_b128 {fa[ks][m](4)}, {v_aa[sp][ks]} offset:{so + m*2048}")
        return B[0] + [A[0]] + B[1] + [A[1]] + B[2] + [A[2]] + B[3] + A[3:]

    def mfma_block(ks, first, fillers, post=None):
        k = 0
        idx = 0
        order = [(m, tt) for m in range(MH) for tt in range(4)]
        if P("MORD", 2) == 1:
            order = [(m, tt) for tt in range(4) for m in range(MH)]
        if P("MORD", 2) == 2:
            order = [(m, tt if m % 2 == 0 else 3 - tt) for m in range(MH) for tt in range(4)]
        if P("MORD", 2) == 3:
            order = [(m if tt % 2 == 0 else MH - 1 - m, tt) for tt in range(4) for m in range(MH)]
        for m, tt in order:
            if True:
                a(f"{MFMA} {acc[m][tt](4)}, {fb[ks][tt](4)}, {fa[ks][m](4)}, {'0' if first else acc[m][tt](4)}")
                if k < len(fillers):
                    a(fillers[k])
                    k += 1
                if post:
                    post(idx)
                idx += 1
        assert k == len(fillers)

    tmpw = V.many(4, 2)

    def wr_tile(idx):
        m, tt = idx // 4, idx % 4
        t = tmpw[idx % 4]
        a(f"v_cvt_pk_bf16_f32 {t}, {acc[m][tt]}, {acc[m][tt]+1}")
        a(f"v_cvt_pk_bf16_f32 {t+1}, {acc[m][tt]+2}, {acc[m][tt]+3}")
        a(f"ds_write_b64 {v_wa}, {t(2)} offset:{m*TP + tt*32}")

    if P("CPRIO", 2):
        a(f"s_setprio {P('CPRIO', 2)}")
    a("s_barrier")
    stamp(a, "c0")
    for line in read_ops(0, 0):
        a(line)
    for c in range(NCH):
        a.comment("chunk %d" % c)
        if c == 5:
            stamp(a, "c5")
        if c in (3, 8):
            stamp(a, f"k{c}")
        TCH = [int(x) for x in os.environ.get("WOT", "").split(",") if x]
        if c in TCH:
            k = TCH.index(c)
            a(f"s_cmp_eq_u32 {s_n}, -1")
            a(f"s_cbranch_scc1 K_NOT{c}")
            a(f"s_mov_b32 {s_tmp}, {k*64*1280}")
            if k == 2:
                a("s_mov_b32 exec_hi, 0")
            a(f"buffer_load_dword {v_pf}, {v_wt}, {sWO(4)}, {s_tmp} offen")
            if k == 2:
                a("s_mov_b64 exec, -1")
            a.label(f"K_NOT{c}")
        for k, cc in enumerate(OPC):
            if cc == c:
                opre(k)
        a("s_waitcnt lgkmcnt(0)")
        if c == NCH - 1 and P("LASTR", 1):
            M0 = P("LASTM", 4)
            seq = [(m, tt, 0) for m in range(M0) for tt in range(4)]
            seq += [(m, tt, 1) for m in range(M0) for tt in range(4)]
            for m in range(M0, MH):
                seq += [(m, tt, 0) for tt in range(4)] + [(m, tt, 1) for tt in range(4)]
            fill = read_ops(c, 1)
            done = []
            for pos, (m, tt, ks) in enumerate(seq):
                if pos == 4 * M0:
                    a("s_waitcnt lgkmcnt(0)")
                    stamp(a, "loopend")
                a(f"{MFMA} {acc[m][tt](4)}, {fb[ks][tt](4)}, {fa[ks][m](4)}, {acc[m][tt](4)}")
                if pos < len(fill):
                    a(fill[pos])
                if ks == 1:
                    done.append((len(a.lines), m * 4 + tt))
                if done and len(a.lines) - done[0][0] >= 8:
                    wr_tile(done.pop(0)[1])
            a("s_nop 7")
            for _, idx in done:
                wr_tile(idx)
            continue
        mfma_block(0, c == 0, read_ops(c, 1))
        a("s_waitcnt lgkmcnt(0)")
        if c < NCH - 1:
            a("s_barrier")
            mfma_block(1, False, read_ops(c + 1, 0))
        else:
            stamp(a, "loopend")
            LAG = 8
            mfma_block(1, False, [], post=lambda idx: wr_tile(idx - LAG) if idx >= LAG else None)
            a("s_nop 3")
            for idx in range(4 * MH - LAG, 4 * MH):
                wr_tile(idx)
    a("s_waitcnt vmcnt(0) lgkmcnt(0)")

    if P("CPRIO", 2):
        a("s_setprio 0")
    a.label("K_JOIN")
    a("s_barrier")
    stamp(a, "join")
    V.release(mV2)
    S.release(mS2)
    NU = 3
    U = range(NU)
    qf = V.many(NU, 4)
    kf = V.many(NU + 1, 4)
    vf = [V.a(2 * (NU + 1), 4) for _ in range(2)]
    sc = [V.many(2, 4) for _ in U]
    pf = V.many(NU, 4)
    oc = [V.many(2, 4) for _ in U]
    ee = V.many(NU, 2)
    mx, sm = V.many(NU, 2), V.many(NU, 2)
    mt = V.many(NU)
    st = V.many(NU, 4)
    Q = LgkmQueue(a)

    def rdk(t):
        a(f"ds_read_b64 {kf[t](2)}, {v_lo} offset:{t*TP + KO}"); Q.issue(("k", t))
        a(f"ds_read_b64 {(kf[t]+2)(2)}, {v_hi} offset:{t*TP + KO}"); Q.issue(("k", t))

    rdk(0)
    for u in U:
        a(f"ds_read_b64 {qf[u](2)}, {v_lo} offset:{(u+1)*TP + QO}"); Q.issue(("q", u))
        a(f"ds_read_b64 {(qf[u]+2)(2)}, {v_hq} offset:{(u+1)*TP + QO}"); Q.issue(("q", u))
        rdk(u + 1)
    vrd = [f"ds_read_b64_tr_b16 {(vf[dt]+2*t)(2)}, {v_va} offset:{t*TP + VO + 32*dt}" for t in range(NU + 1) for dt in range(2)]
    assert P("ZSP", 1)
    for u in U:
        Q.need(("q", u), ("k", u + 1))
        a(f"{MFMA} {sc[u][0](4)}, {kf[u](4)}, {qf[u](4)}, {(v_bp if u == 0 else v_b0)(4)}")
        a(f"{MFMA} {sc[u][1](4)}, {kf[u+1](4)}, {qf[u](4)}, {v_b1(4)}")
    stamp(a, "a1")
    for l in vrd:
        a(l)
    for u in U:
        s0, s1 = sc[u]
        a(f"v_max3_f32 {ee[u]}, {s0}, {s0+1}, {s1}")
        a(f"v_max3_f32 {ee[u]+1}, {s0+2}, {s0+3}, {s1+2}")
        a(f"v_max_f32 {ee[u]}, {ee[u]}, {s1+1}")
        a(f"v_max_f32 {ee[u]+1}, {ee[u]+1}, {s1+3}")
    RL = P("RLOG", 1)
    if RL:
        for rep in range(2):
            for u in U:
                a(f"v_cvt_pk_bf16_f32 {ee[u]+1}, {ee[u]}, {ee[u]+1}")
            for u in U:
                a(f"v_lshlrev_b32 {ee[u]}, 16, {ee[u]+1}")
                a(f"v_and_b32 {ee[u]+1}, 0xffff0000, {ee[u]+1}")
            if rep == 0:
                for u in U:
                    a(f"v_pk_mul_f32 {ee[u](2)}, {ee[u](2)}, {s_sc(2)}")
    for u in U:
        a(f"v_max_f32 {mx[u]}, {ee[u]}, {ee[u]+1}")

    def xreduce(regs, tmps, op):
        A, B, C = regs
        ta, tb, tc = tmps
        a(f"v_mov_b32 {tc}, {C}")
        a(f"v_permlane16_swap_b32 {A}, {B}")
        a("s_nop 0")
        a(f"v_permlane16_swap_b32 {C}, {tc}")
        a(f"{op} {A}, {A}, {B}")
        a(f"{op} {C}, {C}, {tc}")
        a(f"v_mov_b32 {B}, {A}")
        a(f"v_mov_b32 {tc}, {C}")
        a("s_nop 0")
        a(f"v_permlane32_swap_b32 {A}, {B}")
        a(f"v_permlane32_swap_b32 {C}, {tc}")
        a(f"{op} {A}, {A}, {B}")
        a(f"v_mov_b32 {B}, {A}")
        a(f"{op} {C}, {C}, {tc}")
        a("s_nop 0")
        a(f"v_permlane16_swap_b32 {A}, {B}")

    xreduce(mx, mt, "v_max_f32")
    for u in U:
        a(f"v_pk_add_f32 {ee[u](2)}, {ee[u](2)}, {mx[u](2)} op_sel_hi:[1,0] neg_lo:[0,1] neg_hi:[0,1]")
    for u in U:
        a(f"v_pk_mul_f32 {ee[u](2)}, {ee[u](2)}, {s_c(2)}")
    for u in U:
        a(f"v_exp_f32 {ee[u]}, {ee[u]}")
        a(f"v_exp_f32 {ee[u]+1}, {ee[u]+1}")
    a("s_nop 0")
    for u in U:
        a(f"v_add_f32 {sm[u]}, {ee[u]}, {ee[u]+1}")
    stamp(a, "a2")
    xreduce(sm, mt, "v_add_f32")
    for u in U:
        a(f"v_rcp_f32 {sm[u]}, {sm[u]}")
    a("s_waitcnt lgkmcnt(0)")
    for u in U:
        a(f"v_pk_mul_f32 {ee[u](2)}, {ee[u](2)}, {sm[u](2)} op_sel_hi:[1,0]")
    for u in U:
        a(f"v_cvt_pk_bf16_f32 {ee[u]}, {ee[u]}, {ee[u]+1}")
    for u in U:
        for k in range(4):
            a(f"v_perm_b32 {pf[u]+k}, {ee[u]}, {ee[u]}, {v_ps+k}")
        if u > 0:
            for dt in range(2):
                a(f"{MFMA} {oc[u-1][dt](4)}, {(vf[dt]+2*(u-1))(4)}, {pf[u-1](4)}, 0")
    a("s_nop 0")
    for dt in range(2):
        a(f"{MFMA} {oc[NU-1][dt](4)}, {(vf[dt]+2*(NU-1))(4)}, {pf[NU-1](4)}, 0")
    if P("ODENSE", 1):
        stamp(a, "a3")
        a("s_nop 1")
        for u in U:
            a(f"v_cvt_pk_bf16_f32 {st[u]}, {oc[u][0]}, {oc[u][0]+1}")
            a(f"v_cvt_pk_bf16_f32 {st[u]+1}, {oc[u][0]+2}, {oc[u][0]+3}")
            a(f"v_cvt_pk_bf16_f32 {st[u]+2}, {oc[u][1]}, {oc[u][1]+1}")
            a(f"v_cvt_pk_bf16_f32 {st[u]+3}, {oc[u][1]+2}, {oc[u][1]+3}")
            a(f"ds_write_b64 {v_ow}, {st[u](2)} offset:{u*1024}")
        a(f"s_mov_b64 exec, {s_g0(2)}")
        for u in U:
            a(f"ds_write_b64 {v_ox}, {(st[u]+2)(2)} offset:{u*256}")
        a("s_mov_b64 exec, -1")
        a("s_waitcnt lgkmcnt(0)")
        stamp(a, "a4")
        a("s_barrier")
        stamp(a, "a5")
        a(f"ds_read_b128 {st[0](4)}, {v_or}")
        a(f"ds_read_b128 {st[1](4)}, {v_or} offset:8192")
        a("s_waitcnt lgkmcnt(1)")
        a(f"buffer_store_dwordx4 {st[0](4)}, {v_os}, {sO(4)}, {s_oo[0]} offen {SC_ST}")
        a("s_waitcnt lgkmcnt(0)")
        a(f"buffer_store_dwordx4 {st[1](4)}, {v_ot}, {sO(4)}, {s_oo[0]} offen {SC_ST}")
    else:
        a(f"s_cmp_ge_u32 {s_w}, 6")
        a(f"s_cselect_b32 {s_oo[2]}, 0x{O_BYTES:x}, {s_oo[2]}")
        for u in U:
            a(f"v_cvt_pk_bf16_f32 {st[u]}, {oc[u][0]}, {oc[u][0]+1}")
            a(f"v_cvt_pk_bf16_f32 {st[u]+1}, {oc[u][0]+2}, {oc[u][0]+3}")
            a(f"v_cvt_pk_bf16_f32 {st[u]+2}, {oc[u][1]}, {oc[u][1]+1}")
            a(f"v_cvt_pk_bf16_f32 {st[u]+3}, {oc[u][1]+2}, {oc[u][1]+3}")
            a(f"buffer_store_dwordx2 {st[u](2)}, {v_os}, {sO(4)}, {s_oo[u]} offen {SC_ST}")
        a(f"s_mov_b64 exec, {s_g0(2)}")
        for u in U:
            a(f"buffer_store_dwordx2 {(st[u]+2)(2)}, {v_ot}, {sO(4)}, {s_oo[u]} offen {SC_ST}")
        a("s_mov_b64 exec, -1")
    a.label("K_ATT_DONE")
    stamp(a, "attdone")
    a(f"s_cmp_eq_u32 {s_n}, -1")
    a("s_cbranch_scc1 K_NOS6")
    a(f"s_cmp_lt_u32 {s_w}, 4")
    a("s_cbranch_scc1 K_P2_EARLY")
    a(f"s_cmp_lg_u32 {s_w}, 6")
    a("s_cbranch_scc1 K_NOS6")
    zpoll(2)
    mb_sample(v_t0)
    a.label("K_NOS6")
    a(f"s_cmp_lg_u32 {s_w}, 5")
    a("s_cbranch_scc1 K_NOFL")
    zpoll(0)
    a(f"v_mov_b32 {v_t1}, 1")
    a(f"s_mov_b32 exec_lo, {s_fl}")
    a("s_mov_b32 exec_hi, 0")
    a("s_setprio 3")
    a("s_waitcnt vmcnt(0)")
    a("s_barrier")
    a(f"global_store_dword {v_fo}, {v_t1}, {WS(2)} {SC_FLAG}")
    a("s_setprio 0")
    a("s_mov_b64 exec, -1")
    a("s_branch K_FLAGGED")
    a.label("K_NOFL")
    a("s_waitcnt vmcnt(0)")
    a("s_barrier")
    stamp(a, "drained")
    a.label("K_FLAGGED")
    a(f"s_cmp_eq_u32 {s_n}, -1")
    a("s_cbranch_scc1 K_END")
    a(f"s_cmp_ge_u32 {s_w}, 6")
    a("s_cbranch_scc1 K_P2_HELP")
    wo_voff(v_wv)
    a(f"s_sub_u32 {s_tg}, {s_w}, 4")
    wo_blocks(v_wv, s_tg, 1, s_oo[0], s_oo[1], s_tmp, P("THR2", 14))
    a(f"s_add_u32 {s_tg}, {s_tg}, 2")
    wo_blocks(v_wv, s_tg, 1, s_oo[0], s_oo[1], s_tmp, P("THR2", 14))
    a(f"v_mov_b32 {v_t0}, {YB}")
    a(f"v_mov_b32 {v_t1}, 2")
    a("s_waitcnt vmcnt(0)")
    a("s_mov_b64 exec, 1")
    a(f"ds_add_u32 {v_t0}, {v_t1} offset:44")
    a("s_mov_b64 exec, -1")
    a("s_branch K_P2_HELP")

    seg_aux0 = len(a.lines)
    S.release(mS)
    V.release(mV)
    a.label("K_AUX")
    GA, UP, DN = 0, 40960, 81920
    KEYS = 122880
    KSEL = KEYS + 1024
    PRE = KSEL + 64
    HB = PRE + 1024
    WV = HB + 1024
    assert WV + 4096 <= STG
    s_j = S.a()
    s_pm = S.a(8)
    s_pg = S.a(2)
    sR, sGW = sW, sO
    sG, sU, sD = S.many(3, 4)
    s_so, s_m0, s_k1, s_k2 = S.many(4)
    s_t3 = S.a(3)
    a(f"s_load_dwordx8 {s_pm(8)}, s[0:1], 32")
    a(f"s_load_dwordx2 {s_pg(2)}, s[0:1], 64")
    a(f"s_mov_b32 {s_fl}, 4")
    a(f"s_mul_i32 {s_j}, {s_xcd}, 7")
    a(f"s_add_u32 {s_j}, {s_j}, {s_i}")
    a(f"s_sub_u32 {s_j}, {s_j}, 1")
    a(f"s_cmp_lt_u32 {s_j}, {NSL}")
    a(f"s_cselect_b32 {s_j}, {s_j}, 63")
    a(f"s_cmp_eq_u32 {s_i}, 0")
    a(f"s_cselect_b32 {s_j}, 63, {s_j}")
    v_row, v_xo, v_c16 = V.many(3)
    xr = V.a(160)
    wr, gw = V.many(2, 4), V.many(2, 4)
    a(f"s_lshl_b32 {s_tmp}, {s_xcd}, 8")
    a(f"s_lshl_b32 {s_so}, {s_w}, 5")
    a(f"s_add_u32 {s_tmp}, {s_tmp}, {s_so}")
    a(f"v_lshrrev_b32 {v_row}, 3, {v_lane}")
    a(f"v_add_u32 {v_row}, {s_tmp}, {v_row}")
    a(f"v_and_b32 {v_c16}, 7, {v_lane}")
    a(f"v_lshlrev_b32 {v_c16}, 4, {v_c16}")
    a(f"v_mul_u32_u24 {v_xo}, 1280, {v_row}")
    a(f"v_add_u32 {v_xo}, {v_xo}, {v_c16}")
    a("s_waitcnt lgkmcnt(0)")
    srd(a, sR, s_pm, 1280)
    srd(a, sGW, s_pg, 1280)
    if P("WOPF", 0):
        a(f"s_cmp_lg_u32 {s_w}, 6")
        a("s_cbranch_scc1 K_AUX_NOPF")
        a(f"s_mul_i32 {s_tmp}, s2, {100*128}")
        a(f"v_lshl_add_u32 {v_t0}, {v_lane}, 7, {s_tmp}")
        a(f"s_mov_b32 {s_tmp}, {64*128}")
        a(f"buffer_load_dword {v_pf}, {v_t0}, {sWO(4)}, 0 offen")
        a("s_mov_b32 exec_hi, 15")
        a(f"buffer_load_dword {v_pf}, {v_t0}, {sWO(4)}, {s_tmp} offen")
        a("s_mov_b64 exec, -1")
        a.label("K_AUX_NOPF")

    def wo_touch():
        a(f"s_mul_i32 {s_tmp}, {s_w}, 80")
        a(f"v_add_u32 {v_t0}, {s_tmp}, {v_lane}")
        a(f"v_mul_u32_u24 {v_t0}, 1280, {v_t0}")
        a(f"s_lshl_b32 {s_t2}, {s_i}, 7")
        a(f"v_add_u32 {v_t0}, {s_t2}, {v_t0}")
        a(f"buffer_load_dword {v_pf}, {v_t0}, {sWO(4)}, 0 offen")
        a(f"v_add_u32 {v_t0}, {64*1280}, {v_t0}")
        a(f"s_mul_i32 {s_tmp}, {s_w}, 20")
        a(f"s_sub_u32 {s_tmp}, {s_tmp}, 16")
        a(f"v_add_u32 {v_t1}, {s_tmp}, {v_lane}")
        a(f"v_lshrrev_b32 {v_t2}, 1, {v_t1}")
        a(f"s_mul_i32 {s_tmp}, {s_i}, 80")
        a(f"v_add_u32 {v_t2}, {s_tmp}, {v_t2}")
        a(f"v_mul_u32_u24 {v_t2}, 1280, {v_t2}")
        a(f"v_and_b32 {v_t1}, 1, {v_t1}")
        a(f"v_lshl_add_u32 {v_t2}, {v_t1}, 7, {v_t2}")
        a(f"v_add_u32 {v_t2}, 1024, {v_t2}")
        a(f"v_cmp_gt_u32 vcc, 16, {v_lane}")
        a("s_nop 1")
        a(f"v_cndmask_b32 {v_t0}, {v_t2}, {v_t0}, vcc")
        a("s_mov_b32 exec_hi, 15")
        a(f"buffer_load_dword {v_pf}, {v_t0}, {sWO(4)}, 0 offen")
        a("s_mov_b64 exec, -1")

    a("s_cmp_lg_u32 s2, 63")
    a("s_cbranch_scc1 K_AUX_NOZ")
    srd(a, sG, WS, YFL + 2048, FL_OFF)
    a(f"v_lshlrev_b32 {v_t0}, 4, v0")
    for e in range(4):
        a(f"v_mov_b32 {xr+e}, 0")
    for k in range(6):
        a(f"s_mov_b32 {s_tmp}, {k*8192}")
        a(f"buffer_store_dwordx4 {xr(4)}, {v_t0}, {sG(4)}, {s_tmp} offen {SC_FLAG}")
    a(f"v_mov_b32 {v_t0}, {ZW2*4}")
    a(f"v_mov_b32 {v_t1}, 1")
    a("s_waitcnt vmcnt(0)")
    a("s_barrier")
    a(f"s_cmp_lg_u32 {s_w}, 0")
    a("s_cbranch_scc1 K_AUX_NOZ")
    a("s_mov_b64 exec, 1")
    a(f"global_store_dword {v_t0}, {v_t1}, {DBG(2)} {SC_FLAG}")
    a("s_mov_b64 exec, -1")
    a.label("K_AUX_NOZ")
    a(f"s_cmp_lg_u32 {s_i}, 0")
    a("s_cbranch_scc1 K_AUX_FFN0")
    a(f"v_lshlrev_b32 {v_t0}, 4, {v_lane}")
    a(f"s_cmp_ge_u32 {s_w}, 2")
    a("s_cbranch_scc1 K_AUX_R1")
    a(f"s_cmp_eq_u32 {s_w}, 1")
    a("s_cbranch_scc1 K_AUX_R0")
    a(f"s_mov_b32 m0, {WV}")
    a("s_nop 0")
    a(f"buffer_load_dwordx4 {v_t0}, {sR(4)}, 0 offen lds")
    a(f"buffer_load_dwordx4 {v_t0}, {sR(4)}, 0 offen offset:1024 lds")
    a("s_branch K_AUX_R1")
    a.label("K_AUX_R0")
    a(f"s_mov_b32 m0, {WV + 2048}")
    a("s_nop 0")
    a(f"buffer_load_dwordx4 {v_t0}, {sGW(4)}, 0 offen lds")
    a(f"buffer_load_dwordx4 {v_t0}, {sGW(4)}, 0 offen offset:1024 lds")
    a.label("K_AUX_R1")
    s_h = [0, s_so, s_m0, s_k1]
    for hh in range(1, 4):
        a(f"s_mov_b32 {s_h[hh]}, {10240*hh}")
    a(f"v_add_u32 {v_c16}, {WV}, {v_c16}")
    for j in range(10):
        for hh in range(4):
            a(f"buffer_load_dwordx4 {(xr+16*j+4*hh)(4)}, {v_xo}, {sX(4)}, {s_h[hh]} offen offset:{j*128}")
        if j == 1:
            a("s_waitcnt vmcnt(8)")
            a("s_barrier")
    a(f"v_mov_b32 {v_t0}, {ZW2*4}")
    a(f"global_load_dword {v_smp}, {v_t0}, {DBG(2)} {SC_POLL}")
    ar, ag = V.many(4), V.many(4)
    for i in range(4):
        a(f"v_mov_b32 {ar[i]}, 0")
        a(f"v_mov_b32 {ag[i]}, 0")

    def dots(acc_, off, first):
        def rd(j):
            a(f"ds_read_b128 {wr[j&1](4)}, {v_c16} offset:{off + j*128}")
        rd(0)
        for j in range(10):
            if j < 9:
                rd(j + 1)
            if first:
                a(f"s_waitcnt vmcnt({37 - 4*j if j < 9 else 0}) lgkmcnt({1 if j < 9 else 0})")
            else:
                a(f"s_waitcnt lgkmcnt({1 if j < 9 else 0})")
            for e in range(4):
                for hh in range(4):
                    a(f"v_dot2c_f32_bf16 {acc_[hh]}, {xr+16*j+4*hh+e}, {wr[j&1]+e}")
        a("s_nop 2")
        for dpp in ("quad_perm:[1,0,3,2]", "quad_perm:[2,3,0,1]", "row_half_mirror"):
            for v in acc_:
                a(f"v_add_f32_dpp {v}, {v}, {v} {dpp} row_mask:0xf bank_mask:0xf")

    dots(ar, 0, True)
    v_kw = gw[0]
    a(f"v_and_b32 {v_kw}, 255, {v_row}")
    a(f"v_lshlrev_b32 {v_kw}, 2, {v_kw}")
    a(f"v_add_u32 {v_kw}, {KEYS}, {v_kw}")
    for hh in range(4):
        bf16r(a, v_t0, ar[hh])
        a(f"v_ashrrev_i32 {v_t1}, 31, {v_t0}")
        a(f"v_or_b32 {v_t1}, 0x80000000, {v_t1}")
        a(f"v_xor_b32 {v_t0}, {v_t0}, {v_t1}")
        a(f"v_and_b32 {v_t0}, 0xffff0000, {v_t0}")
        a(f"v_sub_u32 {v_t1}, 0x{0x87ff - 8*hh:x}, {v_row}")
        a(f"v_or_b32 {ar[hh]}, {v_t0}, {v_t1}")
        a(f"ds_write_b32 {v_kw}, {ar[hh]} offset:{32*hh}")
    a("s_waitcnt lgkmcnt(0)")
    a("s_barrier")
    vk = V.a(4)
    a(f"s_cmp_lg_u32 {s_w}, 0")
    a("s_cbranch_scc1 K_AUX_G0")
    a("s_setprio 3")
    a(f"v_lshlrev_b32 {v_t1}, 4, {v_lane}")
    a(f"v_add_u32 {v_t1}, {KEYS}, {v_t1}")
    a(f"ds_read_b128 {vk(4)}, {v_t1}")
    a("s_waitcnt lgkmcnt(0)")
    a(f"v_max_u32 {v_t0}, {vk}, {vk+1}")
    a(f"v_min_u32 {v_t1}, {vk}, {vk+1}")
    a(f"v_max_u32 {v_t2}, {vk+2}, {vk+3}")
    a(f"v_min_u32 {v_t3}, {vk+2}, {vk+3}")
    a(f"v_max_u32 {v_t1}, {v_t1}, {v_t3}")
    a(f"v_min_u32 {v_t3}, {v_t0}, {v_t2}")
    a(f"v_max_u32 {v_t0}, {v_t0}, {v_t2}")
    a(f"v_max_u32 {v_t2}, {v_t1}, {v_t3}")
    wave_max_u32(a, v_t0, v_t1, s_k1, s_t3)
    a(f"v_cmp_ne_u32 vcc, {s_k1}, {v_t0}")
    a("s_nop 1")
    a(f"v_cndmask_b32 {v_t0}, {v_t2}, {v_t0}, vcc")
    wave_max_u32(a, v_t0, v_t1, s_k2, s_t3)
    a(f"v_mov_b32 {vk}, {s_k1}")
    a(f"v_mov_b32 {vk+1}, {s_k2}")
    zpoll(3)
    srd(a, sU, WS, YFL, FL_OFF)
    a(f"s_lshl_b32 {s_tmp}, {s_xcd}, 3")
    a(f"v_lshl_add_u32 {v_t1}, {v_lane}, 8, {s_tmp}")
    for k in range(3):
        a(f"s_mov_b32 {s_tmp}, {k*64*256}")
        a(f"buffer_store_dwordx2 {vk(2)}, {v_t1}, {sU(4)}, {s_tmp} offen offset:128 {SC_FLAG}")
    a("s_setprio 0")
    stamp(a, "pub")
    a.label("K_AUX_G0")
    dots(ag, 2048, False)
    for hh in range(4):
        a(f"ds_write_b32 {v_kw}, {ag[hh]} offset:{PRE - KEYS + 32*hh}")
    a("s_waitcnt lgkmcnt(0)")
    a("s_barrier")
    a(f"s_cmp_lg_u32 {s_w}, 5")
    a("s_cbranch_scc1 K_AUX_FFN0")
    srd(a, sG, WS, 8192, G_OFF)
    a(f"v_lshlrev_b32 {v_t1}, 4, {v_lane}")
    a(f"v_add_u32 {v_t2}, {PRE}, {v_t1}")
    a(f"ds_read_b128 {vk(4)}, {v_t2}")
    a("s_waitcnt lgkmcnt(0)")
    for e in range(4):
        bf16r(a, vk + e, vk + e)
        sigmoid(a, vk + e, vk + e, v_t3)
        bf16r(a, vk + e, vk + e)
    a(f"s_lshl_b32 {s_tmp}, {s_xcd}, 10")
    a(f"buffer_store_dwordx4 {vk(4)}, {v_t1}, {sG(4)}, {s_tmp} offen {SC_ST}")
    zpoll(4)
    srd(a, sU, WS, YFL, FL_OFF)
    a(f"s_lshl_b32 {s_tmp}, {s_xcd}, 2")
    a(f"v_lshl_add_u32 {v_t0}, {v_lane}, 8, {s_tmp}")
    a(f"v_mov_b32 {v_t1}, 1")
    a("s_waitcnt vmcnt(0)")
    for k in range(3):
        a(f"s_mov_b32 {s_tmp}, {k*64*256}")
        a(f"buffer_store_dword {v_t1}, {v_t0}, {sU(4)}, {s_tmp} offen offset:192 {SC_FLAG}")
    a.label("K_AUX_FFN0")
    a(f"s_cmp_lg_u32 {s_j}, 63")
    a("s_cbranch_scc1 K_AUX_FFN1")
    a(f"s_cmp_eq_u32 {s_i}, 0")
    a("s_cbranch_scc1 K_AUX_NB")
    a("s_barrier")
    a.label("K_AUX_NB")
    if P("RTCH", 0):
        wo_touch()
    a(f"s_cmp_lg_u32 {s_w}, 6")
    a("s_cbranch_scc1 K_P2")
    zpoll(6)
    a(f"v_mov_b32 {v_smp}, 0")
    a("s_branch K_P2")
    a.label("K_AUX_FFN1")
    srd(a, sG, s_pm + 2, 640 * 3456)
    srd(a, sU, s_pm + 4, 640 * 3456)
    v_go, v_do = V.many(2)
    a(f"v_lshrrev_b32 {v_t0}, 2, {v_lane}")
    a(f"v_mul_u32_u24 {v_go}, 3456, {v_t0}")
    a(f"v_and_b32 {v_t0}, 3, {v_lane}")
    a(f"v_lshl_add_u32 {v_go}, {v_t0}, 4, {v_go}")
    a(f"s_mul_i32 {s_tmp}, {s_w}, {5*55296}")
    a(f"s_lshl_b32 {s_so}, {s_j}, 6")
    a(f"s_add_u32 {s_tmp}, {s_tmp}, {s_so}")
    a(f"v_add_u32 {v_go}, {s_tmp}, {v_go}")
    a(f"s_mul_i32 {s_m0}, {s_w}, 5120")
    if P("FDELAY", 0):
        a(f"s_cmp_lg_u32 {s_w}, 7")
        a("s_cbranch_scc1 K_FD")
        zpoll(7)
        a.label("K_FD")
        a("s_barrier")
    for q in range(5):
        a(f"s_mov_b32 {s_so}, {q*55296}")
        a(f"s_add_u32 m0, {s_m0}, {GA + q*1024}")
        a("s_nop 0")
        a(f"buffer_load_dwordx4 {v_go}, {sG(4)}, {s_so} offen {FNT} lds")
        a(f"s_add_u32 m0, {s_m0}, {UP + q*1024}")
        a("s_nop 0")
        a(f"buffer_load_dwordx4 {v_go}, {sU(4)}, {s_so} offen {FNT} lds")
    srd(a, sU, WS, YP_BYTES, YP_OFF)
    a(f"s_cmp_ge_u32 {s_w}, 4")
    a("s_cbranch_scc1 K_FFN_C")
    a(f"s_mul_i32 {s_tmp}, {s_j}, 5120")
    a(f"s_mul_i32 {s_so}, {s_w}, 1280")
    a(f"s_add_u32 {s_tmp}, {s_tmp}, {s_so}")
    a(f"v_lshlrev_b32 {v_t0}, 4, {v_lane}")
    a(f"buffer_store_dwordx4 {xr(4)}, {v_t0}, {sU(4)}, {s_tmp} offen {SC_ST}")
    a("s_mov_b64 exec, 0xffff")
    a(f"buffer_store_dwordx4 {xr(4)}, {v_t0}, {sU(4)}, {s_tmp} offen offset:1024 {SC_ST}")
    a("s_mov_b64 exec, -1")
    a(f"s_sub_u32 {s_tmp}, {s_i}, 1")
    a(f"s_mul_i32 {s_tmp}, {s_tmp}, 92")
    a(f"s_mul_i32 {s_so}, {s_w}, 23")
    a(f"s_add_u32 {s_tmp}, {s_tmp}, {s_so}")
    a(f"v_lshrrev_b32 {v_t0}, 1, {v_lane}")
    a(f"v_add_u32 {v_t0}, {s_tmp}, {v_t0}")
    a(f"v_mul_u32_u24 {v_t0}, 1280, {v_t0}")
    a(f"v_and_b32 {v_t1}, 1, {v_lane}")
    a(f"v_lshl_add_u32 {v_t0}, {v_t1}, 7, {v_t0}")
    a(f"s_mov_b32 exec_hi, 0x{(1 << 14) - 1:x}")
    a(f"buffer_load_dword {v_pf}, {v_t0}, {sWO(4)}, 0 offen offset:1024")
    if P("T0", 1):
        a("s_mov_b32 exec_lo, 0x55555555")
        a(f"s_mov_b32 exec_hi, 0x{0x55555555 & ((1 << 14) - 1):x}")
        a(f"buffer_load_dword {v_pf}, {v_t0}, {sWO(4)}, 0 offen")
    a("s_mov_b64 exec, -1")
    a(f"s_waitcnt vmcnt({4 if P('T0', 1) else 3})")
    a("s_barrier")
    a("s_branch K_P2_EARLY")

    a.label("K_FFN_C")
    srd(a, sD, s_pm + 6, 1728 * 1280)
    s_c4 = s_k2
    wf, xf, df = xr, xr + 80, xr
    v_g, v_wa, v_da, v_ka, v_gy = V.many(5)
    a(f"s_sub_u32 {s_m0}, {s_w}, 4")
    a(f"s_mul_i32 {s_tmp}, {s_j}, 40960")
    a(f"s_mul_i32 {s_m0}, {s_m0}, 10240")
    a(f"s_add_u32 {s_tmp}, {s_tmp}, {s_m0}")
    a(f"v_lshl_add_u32 {v_do}, {v_lane}, 4, {s_tmp}")
    a(f"v_lshrrev_b32 {v_g}, 4, {v_lane}")
    a(f"v_bfe_u32 {v_t0}, {v_lane}, 2, 2")
    a(f"v_lshl_add_u32 {v_t0}, {v_g}, 3, {v_t0}")
    a(f"v_and_b32 {v_t1}, 3, {v_lane}")
    a(f"v_lshlrev_b32 {v_t1}, 3, {v_t1}")
    a(f"v_lshl_add_u32 {v_wa}, {v_t0}, 6, {v_t1}")
    a(f"s_bfe_u32 {s_tmp}, {s_w}, 0x10001")
    a(f"s_mul_i32 {s_tmp}, {s_tmp}, 40960")
    a(f"s_and_b32 {s_so}, {s_w}, 1")
    a(f"s_lshl_b32 {s_so}, {s_so}, 5")
    a(f"s_add_u32 {s_tmp}, {s_tmp}, {s_so}")
    a(f"s_add_u32 {s_tmp}, {s_tmp}, {GA}")
    a(f"v_add_u32 {v_wa}, {s_tmp}, {v_wa}")
    a(f"v_mul_u32_u24 {v_da}, 1280, {v_t0}")
    a(f"s_and_b32 {s_tmp}, {s_w}, 3")
    a(f"s_mul_i32 {s_tmp}, {s_tmp}, 320")
    a(f"s_add_u32 {s_tmp}, {s_tmp}, {DN}")
    a(f"v_add3_u32 {v_da}, {v_da}, {v_t1}, {s_tmp}")
    a(f"v_mov_b32 {v_ka}, {KSEL}")
    a(f"v_mov_b32 {v_gy}, {YB}")
    for q in range(10):
        a(f"s_mov_b32 {s_so}, {q*1024}")
        a(f"s_add_u32 m0, {s_m0}, {DN + q*1024}")
        a("s_nop 0")
        a(f"buffer_load_dwordx4 {v_do}, {sD(4)}, {s_so} offen {FNTD} lds")
    a("s_waitcnt vmcnt(10)")
    a("s_barrier")
    stamp(a, "dmad")
    for q in range(20):
        for h in range(2):
            a(f"ds_read_b64_tr_b16 {(wf+4*q+2*h)(2)}, {v_wa} offset:{q*2048 + h*256}")
    a("s_setprio 3")
    a("s_waitcnt lgkmcnt(0)")
    a("s_barrier")

    def fgate(name, off, val):
        a(f"s_mov_b32 {s_tmp}, {SPIN*8}")
        a.label(f"K_FG{name}")
        a(f"ds_read_b32 {v_t0}, {v_gy} offset:{off}")
        a("s_sleep 1")
        a(f"s_sub_u32 {s_tmp}, {s_tmp}, 1")
        a("s_waitcnt lgkmcnt(0)")
        a(f"v_readfirstlane_b32 {s_t2}, {v_t0}")
        a("s_nop 3")
        a(f"s_cselect_b32 {s_t2}, {val}, {s_t2}")
        a(f"s_cmp_lt_u32 {s_t2}, {val}")
        a(f"s_cbranch_scc1 K_FG{name}")

    a(f"s_cmp_lg_u32 {s_w}, 7")
    a("s_cbranch_scc1 K_AUX_POLLED")
    zpoll(5)
    a(f"v_and_b32 {v_t1}, 15, {v_lane}")
    a(f"v_lshl_add_u32 {v_t1}, {v_t1}, 2, {s_mb}")
    a(f"s_mov_b32 {s_tmp}, {SPIN}")
    a.label("K_AUX_POLL")
    a(f"global_load_dword {v_t0}, {v_t1}, {WS(2)} offset:128 {SC_POLL}")
    a("s_waitcnt vmcnt(0)")
    a(f"v_cmp_eq_u32 vcc, 0, {v_t0}")
    a("s_cbranch_vccz K_AUX_GOT")
    a(f"s_sleep {P('KSLEEP', 6)}")
    a(f"s_sub_u32 {s_tmp}, {s_tmp}, 1")
    a(f"s_cmp_lg_u32 {s_tmp}, 0")
    a("s_cbranch_scc1 K_AUX_POLL")
    a.label("K_AUX_GOT")
    wave_top2(a, v_t0, v_t1, s_k1, s_k2, s_t3)
    a(f"v_mov_b32 {vk}, {s_k1}")
    a(f"v_mov_b32 {vk+1}, {s_k2}")
    a(f"v_mov_b32 {v_t1}, 1")
    a(f"ds_write_b64 {v_ka}, {vk(2)}")
    a(f"ds_write_b32 {v_gy}, {v_t1} offset:48")
    a.label("K_AUX_POLLED")
    fgate("K", 48, 1)
    stamp(a, "polled")
    a(f"ds_read_b64 {vk(2)}, {v_ka}")
    a(f"v_and_b32 {v_t0}, 1, {v_lane}")
    a(f"v_cmp_eq_u32 vcc, 1, {v_t0}")
    a("s_waitcnt lgkmcnt(0)")
    a(f"v_cndmask_b32 {v_t2}, {vk}, {vk+1}, vcc")
    a(f"v_and_b32 {v_t1}, 0x7ff, {v_t2}")
    a(f"v_sub_u32 {v_t1}, 2047, {v_t1}")
    a(f"v_mul_u32_u24 {v_xo}, 1280, {v_t1}")
    a(f"v_lshl_add_u32 {v_xo}, {v_g}, 4, {v_xo}")
    a("s_mov_b32 exec_lo, 0x00030003")
    a("s_mov_b32 exec_hi, 0x00030003")
    for q in range(20):
        a(f"buffer_load_dwordx4 {(xf+4*q)(4)}, {v_xo}, {sX(4)}, 0 offen offset:{q*64}")
    a("s_mov_b64 exec, -1")
    pacc = V.many(2, 4)
    v_pa, v_hr, v_hs, v_hw, v_yo = V.many(5)
    a(f"v_and_b32 {v_t0}, 1, {v_lane}")
    a(f"v_lshlrev_b32 {v_pa}, 6, {v_t0}")
    a(f"v_lshl_add_u32 {v_pa}, {v_g}, 4, {v_pa}")
    a(f"s_and_b32 {s_tmp}, {s_w}, 3")
    a(f"s_lshl_b32 {s_tmp}, {s_tmp}, 7")
    a(f"v_add3_u32 {v_hr}, {v_pa}, {s_tmp}, {v_ka}")
    a(f"v_add_u32 {v_pa}, {PRE - KSEL}, {v_hr}")
    a(f"v_add_u32 {v_hr}, {HB - KSEL}, {v_hr}")
    a(f"v_lshrrev_b32 {v_t0}, 5, {v_lane}")
    a(f"v_bfe_u32 {v_t1}, {v_lane}, 4, 1")
    a(f"v_lshl_add_u32 {v_t1}, {v_t1}, 1, {v_t0}")
    a(f"v_lshlrev_b32 {v_t1}, 6, {v_t1}")
    a(f"v_and_b32 {v_t2}, 15, {v_lane}")
    a(f"v_lshl_add_u32 {v_t1}, {v_t2}, 2, {v_t1}")
    a(f"v_add_u32 {v_hs}, {PRE}, {v_t1}")
    a(f"v_lshlrev_b32 {v_t2}, 1, {v_lane}")
    a(f"s_add_u32 {s_tmp}, {s_tmp}, {HB}")
    a(f"v_add_u32 {v_hw}, {s_tmp}, {v_t2}")
    a(f"v_and_b32 {v_t0}, 1, {v_lane}")
    a(f"v_mul_u32_u24 {v_t0}, 2560, {v_t0}")
    a(f"v_lshl_add_u32 {v_yo}, {v_g}, 4, {v_t0}")
    a(f"s_mul_i32 {s_tmp}, {s_j}, 5120")
    a(f"s_and_b32 {s_so}, {s_w}, 3")
    a(f"s_mul_i32 {s_so}, {s_so}, 640")
    a(f"s_add_u32 {s_so}, {s_so}, {s_tmp}")
    a(f"v_mov_b32 {v_t1}, 1")
    for q in range(20):
        if q % 4 == 0:
            a(f"s_waitcnt vmcnt({16 - q})")
        a(f"{MFMA} {pacc[q&1](4)}, {(wf+4*q)(4)}, {(xf+4*q)(4)}, {'0' if q < 2 else pacc[q&1](4)}")
    a("s_nop 7")
    for r in range(4):
        a(f"v_add_f32 {pacc[0]+r}, {pacc[0]+r}, {pacc[1]+r}")
    a("s_mov_b32 exec_lo, 0x00030003")
    a("s_mov_b32 exec_hi, 0x00030003")
    a(f"ds_write_b128 {v_pa}, {pacc[0](4)}")
    a("s_mov_b64 exec, 1")
    a(f"ds_add_u32 {v_gy}, {v_t1} offset:52")
    a("s_mov_b64 exec, -1")
    a(f"s_cmp_lg_u32 {s_w}, 6")
    a("s_cbranch_scc1 K_NOS6B")
    mb_sample(v_t2)
    a.label("K_NOS6B")
    fgate("P", 52, 4)
    hv = V.a(4)
    stamp(a, "pre")
    a(f"ds_read_b32 {hv}, {v_hs}")
    a(f"ds_read_b32 {hv+2}, {v_hs} offset:256")
    for q in range(7):
        for h in range(2):
            a(f"ds_read_b64_tr_b16 {(df+4*q+2*h)(2)}, {v_da} offset:{q*32 + h*5120}")
    a("s_waitcnt lgkmcnt(14)")
    bf16r(a, hv, hv)
    bf16r(a, hv + 2, hv + 2)
    sigmoid(a, hv + 1, hv, hv + 1)
    a(f"v_mul_f32 {hv}, {hv}, {hv+1}")
    bf16r(a, hv, hv)
    a(f"v_mul_f32 {hv}, {hv}, {hv+2}")
    a(f"v_cvt_pk_bf16_f32 {hv}, {hv}, {hv}")
    a(f"ds_write_b16 {v_hw}, {hv}")
    a("s_waitcnt lgkmcnt(0)")
    a(f"ds_read_b128 {hv(4)}, {v_hr}")
    for q in range(7, 10):
        for h in range(2):
            a(f"ds_read_b64_tr_b16 {(df+4*q+2*h)(2)}, {v_da} offset:{q*32 + h*5120}")
    a("s_waitcnt lgkmcnt(6)")
    for q in range(10):
        if q >= 7:
            a(f"s_waitcnt lgkmcnt({2 * (9 - q)})")
        a(f"{MFMA} {(xf+4*q)(4)}, {(df+4*q)(4)}, {hv(4)}, 0")
    a("s_mov_b32 exec_lo, 0x00030003")
    a("s_mov_b32 exec_hi, 0x00030003")
    for q in range(10):
        a(f"buffer_store_dwordx4 {(xf+4*q)(4)}, {v_yo}, {sU(4)}, {s_so} offen offset:{q*64} {SC_ST}")
    a("s_mov_b64 exec, -1")
    a(f"s_lshl_b32 {s_tmp}, {s_j}, 3")
    a(f"s_add_u32 {s_tmp}, {s_tmp}, {s_w}")
    a(f"s_lshl_b32 {s_tmp}, {s_tmp}, 2")
    a(f"s_add_u32 {s_tmp}, {s_tmp}, {FL_OFF + YFL - 16}")
    a(f"v_mov_b32 {v_t0}, {s_tmp}")
    a(f"v_mov_b32 {v_t1}, 1")
    a("s_waitcnt vmcnt(0)")
    stamp(a, "ydone")
    a("s_mov_b64 exec, 1")
    a(f"global_store_dword {v_t0}, {v_t1}, {WS(2)} {SC_FLAG}")
    a("s_mov_b64 exec, -1")
    a("s_branch K_P2")
    seg_aux1 = len(a.lines)

    S.release(mS)
    V.release(mV)
    sG, sY, sOut = sW, S.a(4), S.a(4)
    s_so, s_tg, s_row0, s_c10 = S.many(4)
    s_sel = S.a(4)
    s_k1, s_k2 = S.many(2)
    s_t3 = S.a(3)
    s_os = S.many(5)
    v_l3, v_g, v_xo, v_go, v_fa, v_da, v_sr, v_yb = V.many(8)
    xv = V.a(8)
    gv = V.a(2)
    vsel = V.a(4)
    bx = V.a(16)
    om = V.many(2)
    mV3 = V.mark()
    RM = P("RMIX", 0)

    def epi_pre():
        L = []
        for j in range(2):
            L += [f"v_sub_f32 {om[j]}, 1.0, {gv+j}", f"v_cvt_pk_bf16_f32 {om[j]}, {om[j]}, {om[j]}", f"v_lshlrev_b32 {om[j]}, 16, {om[j]}"]
        for i in range(8):
            L += [f"v_lshlrev_b32 {bx+2*i}, 16, {xv+i}", f"v_and_b32 {bx+2*i+1}, 0xffff0000, {xv+i}"]
        for i in range(16):
            L.append(f"v_mul_f32 {bx+i}, {bx+i}, {om[i//8]}")
        if RM:
            for i in range(8):
                L.append(f"v_cvt_pk_bf16_f32 {bx+2*i+1}, {bx+2*i}, {bx+2*i+1}")
            for i in range(8):
                L += [f"v_lshlrev_b32 {bx+2*i}, 16, {bx+2*i+1}", f"v_and_b32 {bx+2*i+1}, 0xffff0000, {bx+2*i+1}"]
        return L
    v_r, v_c, v_sw, v_wo = V.many(4)
    v_oo = V.many(2)
    PERM = [0, 2, 5, 7, 1, 3, 4, 6]
    HGT = [[8 * (u & 1) + PERM[4 * (u >> 1) + i] for i in range(4)] for u in range(4)]
    vn, vn2, vt = V.many(4), V.many(4), V.many(4)

    def p2_common():
        a(f"s_lshl_b32 {s_row0}, {s_rt2}, 7")
        a(f"v_lshrrev_b32 {v_l3}, 3, {v_lane}")
        a(f"v_lshrrev_b32 {v_g}, 4, {v_lane}")
        a(f"v_mov_b32 {v_yb}, {YB}")
        a(f"s_lshl_b32 {s_tg}, {s_rt2}, 3")
        a(f"s_add_u32 {s_tg}, {s_tg}, {s_w}")
        a(f"s_mul_i32 {s_tmp}, {s_tg}, 20480")
        a(f"s_lshl_b32 {s_t2}, {s_ct}, 7")
        a(f"s_add_u32 {s_tmp}, {s_tmp}, {s_t2}")
        a(f"v_and_b32 {v_t0}, 7, {v_lane}")
        a(f"v_lshlrev_b32 {v_t0}, 4, {v_t0}")
        a(f"v_mul_u32_u24 {v_t2}, 1280, {v_l3}")
        a(f"v_add3_u32 {v_xo}, {v_t0}, {v_t2}, {s_tmp}")
        a(f"s_lshl_b32 {s_tmp}, {s_tg}, 6")
        a(f"v_lshl_add_u32 {v_go}, {v_l3}, 2, {s_tmp}")
        a(f"s_mov_b32 {s_c10}, 10240")
        srd(a, sO, WS, O_BYTES, O_OFF)
        srd(a, sG, WS, 8192, G_OFF)
        srd(a, sOut, s_po, X_BYTES)
        a(f"v_mul_u32_u24 {v_t1}, {SP}, {v_l3}")
        a(f"v_add_u32 {v_t1}, {v_t0}, {v_t1}")
        a(f"s_mul_i32 {s_tmp}, {s_w}, {16*SP}")
        a(f"s_add_u32 {s_tmp}, {s_tmp}, {STG}")
        a(f"v_add_u32 {v_sr}, {s_tmp}, {v_t1}")

    def p2_gemm_setup():
        a(f"v_bfe_u32 {v_r}, {v_lane}, 2, 2")
        a(f"v_and_b32 {v_c}, 3, {v_lane}")
        a(f"s_add_u32 {s_tmp}, {s_tg}, {s_w}")
        a(f"s_mul_i32 {s_tmp}, {s_tmp}, 20480")
        a(f"v_lshl_add_u32 {v_oo[0]}, {v_lane}, 4, {s_tmp}")
        a(f"v_add_u32 {v_oo[1]}, 20480, {v_oo[0]}")
        a(f"v_lshl_add_u32 {v_t0}, {v_g}, 2, {v_r}")
        a(f"v_bfe_u32 {v_t1}, {v_t0}, 1, 2")
        a(f"v_lshlrev_b32 {v_t0}, 7, {v_t0}")
        a(f"v_lshl_add_u32 {v_t0}, {v_c}, 3, {v_t0}")
        assert WO_L == 0
        for t in range(4):
            a(f"v_xor_b32 {v_t2}, {t}, {v_t1}")
            a(f"v_lshl_add_u32 {vn[t]}, {v_t2}, 5, {v_t0}")
            a(f"v_add_u32 {vn2[t]}, 40960, {vn[t]}")
        a(f"v_lshrrev_b32 {v_t1}, 1, {v_r}")
        a(f"v_mul_u32_u24 {v_t0}, 40, {v_g}")
        a(f"v_add3_u32 {v_t0}, {v_t0}, 16, {v_r}")
        a(f"v_lshlrev_b32 {v_t0}, 7, {v_t0}")
        a(f"v_lshl_add_u32 {v_t0}, {v_c}, 3, {v_t0}")
        for t in range(4):
            a(f"v_xor_b32 {v_t2}, {t}, {v_t1}")
            a(f"v_lshl_add_u32 {vt[t]}, {v_t2}, 5, {v_t0}")

    def p2_gemm_setup2():
        a(f"v_and_b32 {v_t0}, 15, {v_lane}")
        a(f"v_mul_u32_u24 {v_t0}, {SP}, {v_t0}")
        a(f"v_lshl_add_u32 {v_t0}, {v_g}, 3, {v_t0}")
        a(f"s_mul_i32 {s_tmp}, {s_w}, {32*SP}")
        a(f"s_add_u32 {s_tmp}, {s_tmp}, {STG}")
        a(f"v_add_u32 {v_sw}, {s_tmp}, {v_t0}")
        for u in range(5):
            a(f"s_mov_b32 {s_os[u]}, {u*4096}")

    def lgate(name, off, val, sleep=0):
        a(f"s_mov_b32 {s_tmp}, {SPIN*8}")
        a.label(f"K_P2_G{name}")
        a(f"ds_read_b32 {v_t0}, {v_yb} offset:{off}")
        if sleep:
            a(f"s_sleep {sleep}")
        a(f"s_sub_u32 {s_tmp}, {s_tmp}, 1")
        a("s_waitcnt lgkmcnt(0)")
        a(f"v_readfirstlane_b32 {s_t2}, {v_t0}")
        a("s_nop 3")
        a(f"s_cselect_b32 {s_t2}, {val}, {s_t2}")
        a(f"s_cmp_lt_u32 {s_t2}, {val}")
        a(f"s_cbranch_scc1 K_P2_G{name}")

    def xloads():
        a(f"buffer_load_dwordx4 {xv(4)}, {v_xo}, {sX(4)}, 0 offen")
        a(f"buffer_load_dwordx4 {(xv+4)(4)}, {v_xo}, {sX(4)}, {s_c10} offen")

    def gloads():
        a(f"buffer_load_dword {gv}, {v_go}, {sG(4)}, 0 offen {SC_LD}")
        a(f"buffer_load_dword {gv+1}, {v_go}, {sG(4)}, 0 offen offset:32 {SC_LD}")
        a(f"ds_read_b128 {vsel(4)}, {v_yb}")

    a.label("K_P2_EARLY")
    p2_common()
    p2_gemm_setup()
    p2_gemm_setup2()
    a("s_waitcnt vmcnt(0)")
    a("s_barrier")
    stamp(a, "drained")
    a(f"s_cmp_lt_u32 {s_i}, 8")
    a("s_cbranch_scc1 K_P2_AUXW0")
    a.label("K_P2_GEMM")
    a(f"s_setprio {P('GPRIO', 2)}")
    stamp(a, "p2in")
    NB = P("P2NB", 5)
    RO = P("P2RO", 6)
    OA = P("P2OA", 5)
    of = [V.many(2, 4) for _ in range(RO)]
    acc = [V.many(4, 4) for _ in range(2)]
    fb = [V.many(4, 4) for _ in range(NB)]
    Q = LgkmQueue(a)

    SORD = [(0, 0), (1, 0), (0, 1), (1, 1), (0, 2), (1, 2), (0, 3), (1, 3), (0, 4), (1, 4),
            (2, 0), (3, 0), (2, 1), (3, 1), (2, 2), (3, 2), (2, 3), (3, 3), (2, 4), (3, 4)]
    spin = Asm()
    s_rdy, s_sh0, s_sh1 = s_sel + 2, s_sel + 3, s_k2
    VQ = []

    def bits(s):
        u, i = SORD[s]
        return (1 << (4 * u + i)) if i < 4 else (15 << (4 * u))

    def fetch_mask(r_):
        r_(f"ds_read_b32 {v_t0}, {v_yb} offset:32")
        r_("s_waitcnt lgkmcnt(0)")
        r_(f"v_readfirstlane_b32 {s_t2}, {v_t0}")
        r_("s_nop 3")
        r_(f"s_lshr_b32 {s_rdy}, {s_t2}, {s_sh0}")
        r_(f"s_lshr_b32 {s_t2}, {s_t2}, {s_sh1}")
        r_(f"s_and_b32 {s_rdy}, {s_rdy}, {s_t2}")

    def need_ready(s):
        a(f"s_andn2_b32 {s_t2}, {bits(s)}, {s_rdy}")
        a(f"s_cbranch_scc1 K_SP{s}")
        a.label(f"K_SPR{s}")
        spin.label(f"K_SP{s}")
        if s == 0 and P("SP0", 0):
            spin(f"s_sleep {P('SP0', 0)}")
        fetch_mask(spin)
        spin(f"s_andn2_b32 {s_t2}, {bits(s)}, {s_rdy}")
        spin(f"s_cbranch_scc1 K_SP{s}")
        spin(f"s_branch K_SPR{s}")

    def oload(s, track=True):
        u, i = SORD[s]
        for m in range(2):
            if i < 4:
                a(f"buffer_load_dwordx4 {of[s % RO][m](4)}, {v_oo[m]}, {sO(4)}, {s_os[u]} offen offset:{i*1024} {SC_LD}")
            else:
                a(f"buffer_load_dwordx4 {of[s % RO][m](4)}, {v_oo[m]}, {sO(4)}, {s_os[4]} offen offset:{u*1024} {SC_LD}")
            if track:
                VQ.append(s)

    def vwait(tag):
        last = max(i for i, t in enumerate(VQ) if t == tag)
        a(f"s_waitcnt vmcnt({len(VQ) - 1 - last})")
        del VQ[:last + 1]

    def read_list(s):
        u, i = SORD[s]
        b = s % NB
        L = []
        for t in range(4):
            if i < 4:
                ps = 4 * u + i
                n_, off = (vn, ps * 5120) if ps < 8 else (vn2, (ps - 8) * 5120)
            else:
                n_, off = vt, u * 20480
            L.append(((s, t), f"ds_read_b64_tr_b16 {fb[b][t](2)}, {n_[t]} offset:{off}"))
            L.append(((s, t), f"ds_read_b64_tr_b16 {(fb[b][t]+2)(2)}, {n_[t^2]} offset:{off + 2560}"))
        return L

    EP = epi_pre()
    a(f"s_lshl_b32 {s_tmp}, {s_rt2}, 3")
    a(f"s_mul_i32 {s_t2}, {s_tmp}, 187")
    a(f"s_lshr_b32 {s_t2}, {s_t2}, 11")
    a(f"s_add_u32 {s_t2}, {s_t2}, 1")
    a(f"s_mul_i32 {s_t2}, {s_t2}, 11")
    a(f"s_add_u32 {s_tmp}, {s_tg}, {s_w}")
    a(f"s_cmp_ge_u32 {s_tmp}, {s_t2}")
    a(f"s_cselect_b32 {s_sh0}, 16, 0")
    a(f"s_add_u32 {s_tmp}, {s_tmp}, 1")
    a(f"s_cmp_ge_u32 {s_tmp}, {s_t2}")
    a(f"s_cselect_b32 {s_sh1}, 16, 0")
    a(f"s_mov_b32 {s_rdy}, 0")
    PR = P("P2PR", 3)
    for s in range(PR):
        for tag, l in read_list(s):
            a(l)
            Q.issue(tag)
    for s in range(OA):
        need_ready(s)
        if s == 0:
            stamp(a, "p2goA")
        oload(s)
    for s in range(PR, NB):
        for tag, l in read_list(s):
            a(l)
            Q.issue(tag)
    XS = P("P2XS", 6)
    for s in range(20):
        if s == XS:
            lgate("S", 40, 1)
            xloads()
            gloads()
            VQ.extend(["x"] * 4)
            Q.drain(emit=False)
            Q.issue("sel")
        if s - 1 + NB == 10:
            lgate("W", 44, 4)
            Q.drain(emit=False)
            stamp(a, "p2w2")
        vwait(s)
        rl = read_list(s - 1 + NB) if (s >= 1 and s - 1 + NB < 20) else []
        k = 0
        for t in range(4):
            Q.need((s, t))
            for m in range(2):
                a(f"{MFMA} {acc[m][t](4)}, {fb[s % NB][t](4)}, {of[s % RO][m](4)}, {'0' if s == 0 else acc[m][t](4)}")
                if k < len(rl):
                    a(rl[k][1])
                    Q.issue(rl[k][0])
                    k += 1
                for _ in range(2 if not rl else 1):
                    if "x" not in VQ and s > XS and EP:
                        a(EP.pop(0))
        if s + OA < 20:
            need_ready(s + OA)
            if s + OA == 19:
                stamp(a, "p2go")
            oload(s + OA)
    assert not EP and OA <= RO
    seg_f0 = seg_f1 = len(a.lines)
    stamp(a, "p2mm")
    a("s_nop 3")
    for t in range(4):
        for m in range(2):
            tr = fb[m][t]
            a(f"v_cvt_pk_bf16_f32 {tr}, {acc[m][t]}, {acc[m][t]+1}")
            a(f"v_cvt_pk_bf16_f32 {tr+1}, {acc[m][t]+2}, {acc[m][t]+3}")
            a(f"ds_write_b64 {v_sw}, {tr(2)} offset:{m*16*SP + t*32}")

    seg_h0 = len(a.lines)
    a.label("K_P2")
    a(f"s_cmp_ge_u32 {s_w}, 4")
    a("s_cbranch_scc1 K_P2_HELP")
    p2_common()
    p2_gemm_setup()
    p2_gemm_setup2()
    a("s_branch K_P2_AUXW")
    a.label("K_P2_AUXW0")
    if P("WDEF", 0) == 1:
        lgate("WD", 48, 1, 2)
    if P("WDEF", 0) == 2:
        lgate("WD", 52, 4, 2)
    a.label("K_P2_AUXW")
    wo_voff(v_wo)
    wo_blocks(v_wo, s_w, 0, s_k1, s_k2, s_so, P("THR", 6))
    wo_blocks(v_wo, s_w, 1, s_k1, s_k2, s_so, P("THR", 6))
    a(f"v_mov_b32 {v_t1}, 1")
    a("s_waitcnt vmcnt(0)")
    a("s_mov_b64 exec, 1")
    a(f"ds_add_u32 {v_yb}, {v_t1} offset:44")
    a("s_mov_b64 exec, -1")
    lgate("WA", 44, 4)
    a("s_branch K_P2_GEMM")
    V.release(mV3)
    a.label("K_P2_HELP")
    a(f"s_setprio {P('HPRIO', 3)}")
    a(f"s_lshl_b32 {s_tg}, {s_rt2}, 3")
    a(f"s_mul_i32 {s_k1}, {s_tg}, 187")
    a(f"s_lshr_b32 {s_k1}, {s_k1}, 11")
    a(f"s_add_u32 {s_tmp}, {s_tg}, 7")
    a(f"s_mul_i32 {s_k2}, {s_tmp}, 187")
    a(f"s_lshr_b32 {s_k2}, {s_k2}, 11")
    a(f"s_sub_u32 {s_k2}, {s_k2}, {s_k1}")
    a(f"s_lshl_b32 {s_k2}, {s_k2}, 4")
    a(f"s_or_b32 {s_k2}, {s_k2}, 15")
    a(f"v_and_b32 {v_fa}, {s_k2}, {v_lane}")
    a(f"v_lshl_add_u32 {v_fa}, {v_fa}, 2, {s_mb}")
    a(f"s_cmp_lg_u32 {s_w}, 7")
    a("s_cbranch_scc1 K_P2_N7")
    zpoll(1)
    a(f"global_load_dword {v_smp}, {v_fa}, {WS(2)} {SC_POLL}")
    a.label("K_P2_N7")
    p2_common()
    srd(a, sY, WS, YP_BYTES, YP_OFF)
    vs = V.a(4)
    yq = V.many(14, 4)
    v_one = V.a()
    a(f"v_mov_b32 {v_one}, 1")
    a(f"s_cmp_eq_u32 {s_w}, 7")
    a("s_cbranch_scc1 K_P2_FLAGS")
    xloads()
    a(f"s_cmp_lg_u32 {s_w}, 6")
    a("s_cbranch_scc1 K_P2_HW")
    a(f"s_mov_b32 {s_tmp}, {SPIN}")
    a.label("K_P2_DPOLL")
    a(f"v_cmp_eq_u32 vcc, 0, {v_smp}")
    a("s_cbranch_vccz K_P2_DOK")
    a(f"s_cmp_eq_u32 {s_tmp}, {SPIN}")
    a("s_cbranch_scc1 K_P2_DNS")
    a(f"s_sleep {P('DSLEEP', 12)}")
    a.label("K_P2_DNS")
    mb_sample(v_da)
    a(f"s_sub_u32 {s_tmp}, {s_tmp}, 1")
    a("s_waitcnt vmcnt(0)")
    a(f"s_cmp_lg_u32 {s_tmp}, 0")
    a("s_cbranch_scc1 K_P2_DPOLL")
    a.label("K_P2_DOK")
    a(f"v_cmp_gt_u32 vcc, 16, {v_lane}")
    a("s_nop 1")
    a(f"v_cndmask_b32 {v_t0}, 0, {v_smp}, vcc")
    wave_top2(a, v_t0, v_t1, s_k1, s_k2, s_t3)
    for t, sk in enumerate((s_k1, s_k2)):
        a(f"s_and_b32 {s_tmp}, {sk}, 0x7ff")
        a(f"s_sub_u32 {s_tmp}, 2047, {s_tmp}")
        a(f"v_mov_b32 {vs+t}, {s_tmp}")
        a(f"v_mov_b32 {v_t2}, {sk}")
        a(f"v_and_b32 {v_t2}, 0xffff0000, {v_t2}")
        a(f"v_ashrrev_i32 {v_t3}, 31, {v_t2}")
        a(f"v_not_b32 {v_t3}, {v_t3}")
        a(f"v_or_b32 {v_t3}, 0x80000000, {v_t3}")
        a(f"v_xor_b32 {v_t2}, {v_t2}, {v_t3}")
        a(f"v_and_b32 {v_t2}, 0xffff0000, {v_t2}")
        sigmoid(a, v_t2, v_t2, v_t3)
        bf16r(a, vs + 2 + t, v_t2)
    a(f"ds_write_b128 {v_yb}, {vs(4)}")
    a(f"ds_write_b32 {v_yb}, {v_one} offset:40")
    a.label("K_P2_HW")
    lgate("S2", 40, 1, 1)
    gloads()
    a(f"s_cmp_eq_u32 {s_w}, 6")
    a("s_cbranch_scc1 K_P2_E")
    a("s_waitcnt lgkmcnt(0)")
    a(f"s_cmp_eq_u32 {s_w}, 4")
    a("s_cselect_b64 vcc, -1, 0")
    a("s_nop 1")
    a(f"v_cndmask_b32 {v_t0}, {vsel+1}, {vsel}, vcc")
    a(f"v_cndmask_b32 {v_t3}, {vsel+3}, {vsel+2}, vcc")
    a("s_nop 0")
    a(f"v_readfirstlane_b32 {s_k1}, {v_t0}")
    a("s_nop 3")
    a(f"s_sub_u32 {s_tmp}, {s_k1}, {s_row0}")
    a(f"s_cmp_lt_u32 {s_tmp}, 128")
    a("s_cbranch_scc0 K_P2_E")
    a(f"v_min_u32 {v_t1}, {NSL-1}, {v_lane}")
    a(f"v_lshlrev_b32 {v_t1}, 5, {v_t1}")
    a(f"v_add_u32 {v_t1}, {FL_OFF + YFL}, {v_t1}")
    lgate("Y", 32, P("YG", 0x01000000), 1)
    a(f"s_mov_b32 {s_tmp}, {SPIN}")
    a.label("K_P2_YPOLL")
    a(f"global_load_dwordx4 {vs(4)}, {v_t1}, {WS(2)} {SC_POLL}")
    a(f"s_sub_u32 {s_tmp}, {s_tmp}, 1")
    a("s_waitcnt vmcnt(0)")
    a(f"v_and_b32 {v_t0}, {vs}, {vs+1}")
    a(f"v_and_b32 {v_t0}, {v_t0}, {vs+2}")
    a(f"v_and_b32 {v_t0}, {v_t0}, {vs+3}")
    a(f"v_cmp_ne_u32 vcc, 1, {v_t0}")
    a("s_cbranch_vccz K_P2_YGO")
    a(f"s_sleep {P('YSLEEP', 8)}")
    a(f"s_cmp_lg_u32 {s_tmp}, 0")
    a("s_cbranch_scc1 K_P2_YPOLL")
    a.label("K_P2_YGO")
    a(f"v_and_b32 {v_t0}, 15, {v_lane}")
    a(f"v_lshlrev_b32 {v_t0}, 4, {v_t0}")
    a(f"v_mul_u32_u24 {v_t2}, 5120, {v_g}")
    a(f"s_sub_u32 {s_k2}, {s_w}, 4")
    a(f"s_mul_i32 {s_t2}, {s_k2}, 2560")
    a(f"s_lshl_b32 {s_tmp}, {s_ct}, 8")
    a(f"s_add_u32 {s_tmp}, {s_tmp}, {s_t2}")
    a(f"v_add3_u32 {v_t1}, {v_t0}, {v_t2}, {s_tmp}")
    NQ = (NSL + 3) // 4
    for q in range(NQ):
        a(f"s_mov_b32 {s_so}, {q*20480}")
        a(f"buffer_load_dwordx4 {yq[q](4)}, {v_t1}, {sY(4)}, {s_so} offen {SC_LD}")
    for q in range(1, NQ):
        a(f"s_waitcnt vmcnt({NQ-1-q})")
        for e in range(4):
            a(f"v_add_f32 {vs+e}, {(vs if q > 1 else yq[0])+e}, {yq[q]+e}")
    for swap in ("v_permlane16_swap_b32", "v_permlane32_swap_b32"):
        for e in range(4):
            a(f"v_mov_b32 {yq[0]+e}, {vs+e}")
        a("s_nop 0")
        for e in range(4):
            a(f"{swap} {vs+e}, {yq[0]+e}")
        for e in range(4):
            a(f"v_add_f32 {vs+e}, {vs+e}, {yq[0]+e}")
    for e in range(4):
        bf16r(a, vs + e, vs + e)
        a(f"v_mul_f32 {vs+e}, {v_t3}, {vs+e}")
        bf16r(a, vs + e, vs + e)
    a(f"s_lshl_b32 {s_tmp}, {s_k2}, 8")
    a(f"s_add_u32 {s_tmp}, {s_tmp}, {YB + 256}")
    a(f"v_add_u32 {v_t0}, {s_tmp}, {v_t0}")
    a(f"ds_write_b128 {v_t0}, {vs(4)}")
    a("s_branch K_P2_E")
    a.label("K_P2_FLAGS")
    a("s_mov_b32 exec_hi, 0")
    a("s_waitcnt vmcnt(0)")
    a(f"s_mov_b32 {s_tmp}, {SPIN}")
    a.label("K_P2_FCHK")
    a(f"v_cmp_eq_u32 vcc, 1, {v_smp}")
    a("s_nop 1")
    a(f"v_mov_b32 {v_t0}, vcc_lo")
    a(f"ds_write_b32 {v_yb}, {v_t0} offset:32")
    a("s_cmp_eq_u32 vcc_lo, -1")
    a("s_cbranch_scc1 K_P2_FGO")
    a("s_cmp_lg_u32 vcc_lo, 0")
    a("s_cbranch_scc1 K_P2_FS")
    a(f"s_sleep {P('FSLEEP0', 16)}")
    a.label("K_P2_FS")
    a(f"s_sleep {P('FSLEEP', 6)}")
    a(f"global_load_dword {v_smp}, {v_fa}, {WS(2)} {SC_POLL}")
    a(f"s_sub_u32 {s_tmp}, {s_tmp}, 1")
    a("s_waitcnt vmcnt(0)")
    a("s_cbranch_scc0 K_P2_FCHK")
    a(f"v_mov_b32 {v_t0}, -1")
    a(f"ds_write_b32 {v_yb}, {v_t0} offset:32")
    a.label("K_P2_FGO")
    a("s_mov_b64 exec, -1")
    xloads()
    lgate("S3", 40, 1, 1)
    gloads()
    a.label("K_P2_E")
    a("s_setprio 0")
    a("s_waitcnt vmcnt(0)")
    for l in epi_pre():
        a(l)
    a("s_branch K_P2_E2")
    seg_h1 = len(a.lines)

    V.release(mV3)
    a.label("K_P2_E2")
    av = V.a(8)
    yt = V.a(12)
    ta = V.a(4)
    a("s_waitcnt lgkmcnt(0)")
    for k in range(2):
        a(f"v_readfirstlane_b32 {s_sel+k}, {vsel+k}")
    s_r16 = S.a()
    a(f"s_lshl_b32 {s_r16}, {s_tg}, 4")
    a("s_barrier")
    stamp(a, "p2e")
    a(f"ds_read_b128 {av(4)}, {v_sr}")
    a(f"ds_read_b128 {(av+4)(4)}, {v_sr} offset:{8*SP}")
    rare = Asm()
    for t in range(2):
        a(f"s_sub_u32 {s_tmp}, {s_sel+t}, {s_r16}")
        a(f"s_cmp_lt_u32 {s_tmp}, 16")
        a(f"s_cbranch_scc1 K_YROW{t}")
        a.label(f"K_NOY{t}")
        r_ = rare
        r_.label(f"K_YROW{t}")
        r_(f"v_and_b32 {v_t0}, 7, {v_lane}")
        r_(f"v_lshlrev_b32 {v_t0}, 5, {v_t0}")
        r_(f"v_add_u32 {v_t0}, {YB + 256 + t*256}, {v_t0}")
        r_(f"ds_read_b128 {yt(4)}, {v_t0}")
        r_(f"ds_read_b128 {(yt+4)(4)}, {v_t0} offset:16")
        r_(f"s_and_b32 {s_t2}, {s_tmp}, 7")
        r_(f"v_cmp_eq_u32 vcc, {s_t2}, {v_l3}")
        r_(f"s_cmp_ge_u32 {s_tmp}, 8")
        r_(f"s_cbranch_scc1 K_YR1_{t}")
        for j in range(2):
            if j:
                r_.label(f"K_YR1_{t}")
            r_("s_waitcnt lgkmcnt(0)")
            for i in range(8):
                tt_ = yt + 8 + (i & 3)
                if i & 1:
                    r_(f"v_and_b32 {tt_}, 0xffff0000, {xv+4*j+i//2}")
                else:
                    r_(f"v_lshlrev_b32 {tt_}, 16, {xv+4*j+i//2}")
                r_(f"v_add_f32 {tt_}, {tt_}, {yt+i}")
                bf16r(r_, tt_, tt_)
                r_(f"v_mul_f32 {tt_}, {tt_}, {om[j]}")
                if RM:
                    bf16r(r_, tt_, tt_)
                r_(f"v_cndmask_b32 {bx+8*j+i}, {bx+8*j+i}, {tt_}, vcc")
            r_(f"s_branch K_NOY{t}")
    OSC = os.environ.get("OUT_SC", "sc1")
    for j in range(2):
        a(f"s_waitcnt lgkmcnt({1-j})")
        for i in range(4):
            r = av + 4 * j + i
            t = ta + 2 * (i & 1)
            a(f"v_lshlrev_b32 {t}, 16, {r}")
            a(f"v_and_b32 {t+1}, 0xffff0000, {r}")
            if RM:
                a(f"v_mul_f32 {t}, {t}, {gv+j}")
                a(f"v_mul_f32 {t+1}, {t+1}, {gv+j}")
                a(f"v_cvt_pk_bf16_f32 {t+1}, {t}, {t+1}")
                a(f"v_lshlrev_b32 {t}, 16, {t+1}")
                a(f"v_and_b32 {t+1}, 0xffff0000, {t+1}")
                a(f"v_add_f32 {t}, {t}, {bx+8*j+2*i}")
                a(f"v_add_f32 {t+1}, {t+1}, {bx+8*j+2*i+1}")
            else:
                a(f"v_fma_f32 {t}, {t}, {gv+j}, {bx+8*j+2*i}")
                a(f"v_fma_f32 {t+1}, {t+1}, {gv+j}, {bx+8*j+2*i+1}")
            a(f"v_cvt_pk_bf16_f32 {r}, {t}, {t+1}")
        a(f"buffer_store_dwordx4 {(av+4*j)(4)}, {v_xo}, {sOut(4)}, {'0' if j == 0 else s_c10} offen {OSC}")
    a.label("K_END")
    stamp_flush(a, 0, WS, "K_STX")
    a.label("K_EXIT")
    a("s_endpgm")
    L = a.lines
    a.lines = L[:seg_aux0] + L[seg_aux1:seg_f0] + L[seg_f1:seg_h0] + L[seg_h1:] + rare.lines + spin.lines + L[seg_f0:seg_f1] \
        + L[seg_h0:seg_h1] + L[seg_aux0:seg_aux1]
    a.label("K_CODE_END")
    return V.high, S.high


def kd(name, vg, sg):
    vg = (vg + 7) // 8 * 8
    return """.amdhsa_kernel %s
  .amdhsa_next_free_vgpr %d
  .amdhsa_next_free_sgpr %d
  .amdhsa_accum_offset %d
  .amdhsa_group_segment_fixed_size 0
  .amdhsa_kernarg_size 96
  .amdhsa_user_sgpr_count 2
  .amdhsa_user_sgpr_kernarg_segment_ptr 1
  .amdhsa_system_sgpr_workgroup_id_x 1
.end_amdhsa_kernel""" % (name, vg, 100 if STAMP else max(sg, 16), vg)


def main():
    a = Asm()
    for l in HEADER:
        a.raw(l)
    a.raw("; @launch grid=(256,1,1) block=(512,1,1) lds=%d" % LDS_BYTES)
    a.raw('.amdgcn_target "amdgcn-amd-amdhsa--gfx950"')
    a.raw(".text")
    v1, s1 = gen(a)
    a.raw('.section .rodata,"a"')
    a.raw(".p2align 6")
    a.raw(kd(KNAME, v1, s1))
    out = sys.argv[1] if len(sys.argv) > 1 else os.path.join(os.path.dirname(os.path.abspath(__file__)), "..", NAME + ".s")
    open(out, "w").write(a.text())
    print("wrote", out, "v%d s%d" % (v1, s1))


if __name__ == "__main__":
    main()
```

```python
import re

_R = re.compile(r"\b([vs])(\d+)\b|\b([vs])\[(\d+):(\d+)\]")


def regs(tok):
    out = set()
    for m in _R.finditer(tok):
        if m.group(1):
            out.add((m.group(1), int(m.group(2))))
        else:
            out |= {(m.group(3), i) for i in range(int(m.group(4)), int(m.group(5)) + 1)}
    if "vcc" in tok:
        out.add(("s", "vcc"))
    return out


TRANS = ("v_exp_f32", "v_rcp_f32", "v_log_f32", "v_rsq_f32", "v_sqrt_f32")


def parse(line):
    s = line.split(";")[0].strip()
    if not s or s.endswith(":"):
        return None
    p = s.split(None, 1)
    op = p[0]
    ops = [t.strip() for t in p[1].split(",")] if len(p) > 1 else []
    d = dict(op=op, w=set(), r=set(), c=set(), kind="other", n=1)
    if op == "s_nop":
        d["n"] = int(ops[0]) + 1
    elif op.startswith("v_mfma"):
        d.update(kind="mfma", w=regs(ops[0]), r=regs(ops[1]) | regs(ops[2]), c=regs(ops[3]))
    elif op.startswith("v_permlane"):
        x = regs(ops[0]) | regs(ops[1])
        d.update(kind="perml", w=x, r=x)
    elif op.startswith("v_readfirstlane") or op.startswith("v_readlane"):
        d.update(kind="rdl", w=regs(ops[0]), r=regs(ops[1]))
    elif op.startswith("v_"):
        r = set()
        for t in ops[1:]:
            r |= regs(t)
        if op.startswith("v_fmac") or op.startswith("v_dot2c"):
            r |= regs(ops[0])
        d.update(kind="trans" if op in TRANS else "valu", w=regs(ops[0]), r=r)
        if "dpp" in op or "quad_perm" in s or "row_" in s:
            d["dpp"] = True
    elif op.startswith("ds_read"):
        d.update(kind="mem", w=regs(ops[0]), r=regs(ops[1]))
    elif op.startswith("ds_"):
        r = set()
        for t in ops:
            r |= regs(t)
        d.update(kind="mem", r=r)
    elif op.startswith("buffer_store") or op.startswith("global_store"):
        r = set()
        for t in ops:
            r |= regs(t)
        data = regs(ops[0] if op.startswith("buffer") else ops[1])
        d.update(kind="mem", r=r, wide=data if ("x4" in op or "x3" in op) else set())
    elif op.startswith("buffer_load") or op.startswith("global_load"):
        r = set()
        lds = " lds" in s
        for t in (ops if lds else ops[1:]):
            r |= regs(t)
        d.update(kind="mem", w=set() if lds else regs(ops[0]), r=r)
    elif op.startswith("s_"):
        d.update(kind="salu")
    return d


def need(p, c):
    isv = lambda x: x["kind"] in ("valu", "trans", "perml", "rdl")
    n = 0
    if p["kind"] == "mfma":
        if c["kind"] == "mfma":
            if p["w"] & c["r"]:
                n = max(n, 8)
            if p["w"] & c["c"] and p["w"] != c["c"]:
                n = max(n, 6)
            if p["w"] & c["w"] and p["w"] != c["c"]:
                n = max(n, 8)
        elif p["w"] & (c["r"] | c["w"]):
            n = max(n, 8)
        if isv(c) and p["c"] & c["w"]:
            n = max(n, 3)
    if isv(p):
        vw = {x for x in p["w"] if x[0] == "v"}
        sw = {x for x in p["w"] if x[0] == "s"}
        if c["kind"] == "mfma" and vw & (c["r"] | c["c"]):
            n = max(n, 2)
        if c["kind"] == "perml" and vw & c["r"]:
            n = max(n, 2)
        if c.get("dpp") and vw & c["r"]:
            n = max(n, 2)
        if c["kind"] == "rdl" and vw & c["r"]:
            n = max(n, 1)
        if p["kind"] == "trans" and isv(c) and c["kind"] != "trans" and vw & c["r"]:
            n = max(n, 1)
        if sw and isv(c) and sw & c["r"]:
            n = max(n, 2)
        if sw and c["kind"] == "mem" and sw & c["r"]:
            n = max(n, 5)
    if p.get("wide") and p["wide"] & c["w"]:
        n = max(n, 2)
    return n


def fix(lines, report=None):
    out, hist = [], []
    t = 0
    added = 0
    for ln in lines:
        c = parse(ln)
        if c is None:
            out.append(ln)
            continue
        w = 0
        for p, tp in hist[-24:]:
            w = max(w, need(p, c) - (t - tp))
        if w > 0:
            out.append("    s_nop %d" % (w - 1))
            t += w
            added += w
        out.append(ln)
        t += c["n"]
        hist.append((c, t))
    if report is not None:
        report.append(added)
    return out
```

```python
from common import *
import hz

KNAME = NAME + "_kernel"
SC_POLL = os.environ.get("SC_POLL", "sc1")
SC_FLAG = os.environ.get("SC_FLAG", "sc1")
SC_ST = os.environ.get("SC_ST", "sc1")
SC_LD = os.environ.get("SC_LD", "sc1")
FNT = os.environ.get("FNT", "")
FNTD = os.environ.get("FNTD", FNT)
FL_OFF = 0x80000
YFL = 160 * 256
AGG = YFL + 2048
AGS = P('AGS', 3)
ZBYTES = (AGG + (64 << AGS) + 8191) // 8192 * 8192
GW0 = 24
MT = 12
MH = 6
RROWS = (MT - 1) * 16
XREG = MT * 2048
SLOT = XREG + 16384
LA = 2
NS = 3
NCH = 10
PITCH = 272
TP = 16 * PITCH
QKV_BASE = 2 * SLOT
WO_L = 0
STG = 140288
SP = 144
YB = STG + 8 * 16 * SP
LDS_BYTES = 4 * SLOT
QO, KO, VO = 0, 80, 160
SPIN = 0x20000
ZW2 = 48
ZW = 16


def gen(a):
    if P("PAL", 1):
        a.raw(".p2align 12")
    a.raw(".p2align 8")
    a.raw(f".globl {KNAME}")
    a.raw(f".type {KNAME},@function")
    a.label(KNAME)
    S = RA("s", 3, 82 if STAMP else 100)
    V = RA("v", 1, 256)
    s_tmp = S.a()
    s_px = S.a(2)
    s_po = S.a(2)
    s_pws = S.a(4)
    sX, sW, sO, sWO = S.many(4, 4)
    s_xcd, s_i, s_w, s_rt, s_hg, s_t2, s_n = S.many(7)
    s_half = S.a()
    s_fl = S.a()
    s_pc = S.a(2)
    v_lane, v_t0, v_t1, v_t2, v_t3, v_pf, v_smp, v_fo = V.many(8)
    DBG, WS = s_pws, s_pws + 2

    def row_lanes(v2):
        a(f"v_lshrrev_b32 {v_t1}, 4, {v_lane}")
        a(f"v_and_b32 {v_t2}, 7, {v_lane}")
        a(f"v_lshrrev_b32 {v_t0}, 3, {v_lane}")
        a(f"v_xor_b32 {v_t2}, {v_t2}, {v_t1}")
        a(f"v_mul_u32_u24 {v_t0}, 1280, {v_t0}")
        a(f"v_lshl_add_u32 {v2[0]}, {v_t2}, 4, {v_t0}")
        a(f"v_xor_b32 {v2[1]}, 64, {v2[0]}")

    def x_base(s_d, s_k):
        a(f"s_lshl_b32 {s_d}, {s_rt2}, 3")
        a(f"s_lshl1_add_u32 {s_d}, {s_k}, {s_d}")
        a(f"s_mul_i32 {s_d}, {s_d}, 20480")
        a(f"s_lshl_b32 {s_t2}, {s_ct}, 7")
        a(f"s_add_u32 {s_d}, {s_d}, {s_t2}")

    def x_dma(v2, s_b, s_k):
        a(f"s_lshl_b32 {s_t2}, {s_k}, 12")
        for j in range(4):
            a(f"s_add_u32 m0, {s_t2}, {STG + j*1024}")
            a(f"s_add_u32 {s_tmp}, {s_b}, {j*10240}")
            a(f"buffer_load_dwordx4 {v2[j&1]}, {sX(4)}, {s_tmp} offen lds")

    s_rt2, s_ct = S.many(2)
    s_mb = S.a()
    s_role = S.a()
    a("s_cmp_ge_u32 s2, 256")
    a("s_cbranch_scc1 K_EXIT")
    a(f"s_load_dwordx2 {sX(2)}, s[0:1], 0")
    a(f"s_load_dwordx2 {sW(2)}, s[0:1], 8")
    a(f"v_readfirstlane_b32 {s_w}, v0")
    a(f"s_load_dwordx4 {s_pws(4)}, s[0:1], 80")
    a(f"s_load_dwordx2 {sWO(2)}, s[0:1], 16")
    a(f"s_load_dwordx2 {s_po(2)}, s[0:1], 72")
    stamp_init(a)
    a(f"s_and_b32 {s_xcd}, s2, 7")
    a(f"v_and_b32 {v_lane}, 63, v0")
    a(f"s_mov_b32 {sX+2}, 0x{X_BYTES:x}")
    a(f"s_mov_b32 {sX+3}, 0x20000")
    a(f"s_lshr_b32 {s_w}, {s_w}, 6")
    a("s_cmp_lt_u32 s2, 64")
    a("s_cbranch_scc1 K_SLOW")
    a(f"s_cmp_lt_u32 {s_w}, 4")
    a("s_cbranch_scc1 K_FAST")
    a.label("K_SLOW")

    WARM = {"M": [x.split("+") for x in os.environ.get("WARM_M", "attd+p2g,atts+early,help+flags,spin").split(",")],
            "A": [x.split("+") for x in os.environ.get("WARM_A", "p2g,gen,help+flags,spin").split(",")],
            }
    wpts = set()

    def page():
        if P("PAGES", 1):
            a.raw(".p2align 12")

    def wpoint(name, skip=False, align=False, asm=None):
        o = asm or a
        if skip and not (P("PAGES", 1) or P("WARMUP", 1)):
            return
        if skip:
            o(f"s_branch WS_{name}")
        if align and P("PAGES", 1):
            o.raw(".p2align 12")
        o.label(f"WP_{name}")
        o(f"s_setpc_b64 {s_pc(2)}")
        if skip:
            o.label(f"WS_{name}")
        wpts.add(name)

    def warm(key, s_sel, first=0):
        if not P("WARMUP", 1):
            return
        ch = WARM[key]
        for k, names in enumerate(ch):
            if k + 1 < len(ch):
                a(f"s_cmp_lg_u32 {s_sel}, {first + k}")
                a(f"s_cbranch_scc1 K_WARM{key}{k}")
            for n in names:
                if n:
                    a(f"s_call_b64 {s_pc(2)}, WP_{n}")
            if k + 1 < len(ch):
                a(f"s_branch K_WARM{key}X")
                a.label(f"K_WARM{key}{k}")
        a.label(f"K_WARM{key}X")

    def slow_head():
        a(f"s_getpc_b64 {s_pc(2)}")
        a.label("K_PC")
        NL = f"((K_CODE_END-{KNAME}+1023)/1024)"
        a("s_bfe_u32 s3, s2, 0x30003")
        a(f"s_mul_i32 s3, s3, {NL}")
        a(f"s_sub_u32 {s_pc}, {s_pc}, K_PC-{KNAME}")
        a(f"s_subb_u32 {s_pc+1}, {s_pc+1}, 0")
        a(f"v_subrev_u32 {v_t1}, 256, v0")
        a(f"v_add_u32 {v_t0}, s3, {v_t1}")
        a(f"v_lshlrev_b32 {v_t0}, 7, {v_t0}")
        a(f"v_min_u32 {v_t0}, K_CODE_END-{KNAME}-4, {v_t0}")
        a(f"v_cmp_gt_u32 vcc, {NL}, {v_t1}")
        a("s_and_saveexec_b64 %s, vcc" % s_px(2))
        a("s_cbranch_execz K_NOPF")
        a(f"global_load_dword {v_pf}, {v_t0}, {s_pc(2)}")
        a.label("K_NOPF")
        a("s_mov_b64 exec, -1")
        a(f"v_mov_b32 {v_t0}, 0")
        a(f"v_mov_b32 {v_t1}, {YB + 32}")
        for k in range(5):
            a(f"ds_write2_b32 {v_t1}, {v_t0}, {v_t0} offset0:{2*k} offset1:{2*k+1}")

    def common_ids():
        a(f"v_mov_b32 {v_smp}, 0")
        a(f"s_lshr_b32 {s_i}, s2, 3")
        a(f"s_xor_b32 {s_w}, {s_w}, 4")
        a(f"s_mov_b32 {sWO+2}, 0x{640*1280:x}")
        a(f"s_mov_b32 {sWO+3}, 0x20000")
        a(f"s_lshr_b32 {s_n}, {s_i}, 3")
        a(f"s_lshl_b32 {s_n}, {s_n}, 2")
        a(f"s_and_b32 {s_tmp}, {s_i}, 3")
        a(f"s_add_u32 {s_n}, {s_n}, {s_tmp}")
        a(f"s_add_u32 {s_n}, {s_n}, 4")
        a(f"s_bitcmp1_b32 {s_i}, 2")
        a(f"s_cselect_b32 {s_n}, -1, {s_n}")
        a(f"s_cmp_lt_u32 {s_i}, 8")
        a(f"s_cselect_b32 {s_n}, {s_i}, {s_n}")
        a(f"s_lshl_b32 {s_rt2}, {s_xcd}, 1")
        a(f"s_cmp_ge_u32 {s_n}, 10")
        a(f"s_addc_u32 {s_rt2}, {s_rt2}, 0")
        a(f"s_sub_u32 {s_ct}, {s_n}, 10")
        a(f"s_cmp_ge_u32 {s_n}, 10")
        a(f"s_cselect_b32 {s_ct}, {s_ct}, {s_n}")
        a(f"s_mul_i32 {s_mb}, {s_xcd}, 20")
        a(f"s_add_u32 {s_mb}, {s_mb}, {s_n}")
        a(f"s_and_b32 {s_mb}, {s_mb}, 255")
        a(f"s_lshl_b32 {s_mb}, {s_mb}, 8")
        a(f"s_add_u32 {s_mb}, {s_mb}, {FL_OFF}")

    mS, mV = S.mark(), V.mark()

    def zaddr(v):
        a(f"v_and_b32 {v}, 7, {v_lane}")
        a(f"v_lshlrev_b32 {v}, 2, {v}")

    def zsample(v):
        a(f"global_load_dword {v_smp}, {v}, {DBG(2)} offset:{ZW2*4} {SC_POLL}")

    def zpoll(k):
        zaddr(v_t2)
        a(f"s_mov_b32 {s_tmp}, {SPIN}")
        a.label(f"K_ZPOLL{k}")
        a(f"v_cmp_eq_u32 vcc, 0, {v_smp}")
        a(f"s_cbranch_vccz K_ZOK{k}")
        a(f"s_sub_u32 {s_tmp}, {s_tmp}, 1")
        a(f"s_cbranch_scc1 K_ZOK{k}")
        zsample(v_t2)
        a("s_waitcnt vmcnt(0)")
        a(f"s_branch K_ZPOLL{k}")
        a.label(f"K_ZOK{k}")

    def mb_sample(vaddr):
        a(f"v_and_b32 {vaddr}, 1, {v_lane}")
        a(f"v_lshl_add_u32 {vaddr}, {vaddr}, 2, {s_mb}")
        a(f"global_load_dword {v_smp}, {vaddr}, {WS(2)} offset:128 {SC_POLL}")

    def wo_voff(v_wo):
        a(f"v_lshrrev_b32 {v_t0}, 3, {v_lane}")
        a(f"v_mul_u32_u24 {v_t0}, 1280, {v_t0}")
        a(f"v_lshrrev_b32 {v_t1}, 4, {v_lane}")
        a(f"v_lshlrev_b32 {v_t1}, 1, {v_t1}")
        a(f"v_and_b32 {v_t2}, 7, {v_lane}")
        a(f"v_xor_b32 {v_t1}, {v_t1}, {v_t2}")
        a(f"v_lshl_add_u32 {v_t0}, {v_t1}, 4, {v_t0}")
        a(f"s_lshl_b32 {s_t2}, {s_ct}, 7")
        a(f"v_add_u32 {v_wo}, {s_t2}, {v_t0}")

    def wo_blocks(v_wo, s_k, late, s_src, s_dst, s_o, thr=0):
        a(f"s_lshl_b32 {s_src}, {s_k}, 2")
        a(f"s_lshr_b32 {s_src}, 0x{0x6431 if late else 0x7520:x}, {s_src}")
        a(f"s_and_b32 {s_src}, {s_src}, 7")
        a(f"s_mul_i32 {s_src}, {s_src}, 51200")
        a(f"s_mul_i32 {s_dst}, {s_k}, 5120")
        for b in range(2):
            for r in range(5):
                a(f"s_add_u32 {s_o}, {s_src}, {b*8*51200 + r*10240}")
                a(f"s_add_u32 m0, {s_dst}, {WO_L + late*40960 + b*20480 + r*1024}")
                a(f"s_waitcnt vmcnt({thr-1})" if thr else "s_nop 0")
                a(f"buffer_load_dwordx4 {v_wo}, {sWO(4)}, {s_o} offen lds")

    s_pos = s_half

    def main_ids():
        a(f"s_lshr_b32 {s_rt}, {s_xcd}, 1")
        a(f"s_mul_i32 {s_rt}, {s_rt}, 3")
        a(f"s_lshr_b32 {s_tmp}, {s_i}, 3")
        a(f"s_add_u32 {s_rt}, {s_rt}, {s_tmp}")
        a(f"s_sub_u32 {s_rt}, {s_rt}, 1")
        a(f"s_and_b32 {s_pos}, {s_i}, 3")
        a(f"s_and_b32 {s_tmp}, {s_i}, 4")
        a(f"s_lshl_b32 {s_tmp}, {s_tmp}, 1")
        a(f"s_add_u32 {s_pos}, {s_pos}, {s_tmp}")
        a(f"s_and_b32 {s_tmp}, {s_xcd}, 1")
        a(f"s_lshl_b32 {s_tmp}, {s_tmp}, 2")
        a(f"s_add_u32 {s_pos}, {s_pos}, {s_tmp}")

    v_row, v_g, v_r, v_c = V.many(4)
    v_lo, v_hi, v_va, v_os, v_ot, v_wv = V.many(6)
    v_hq = V.many(2)
    v_vt = V.many(4)
    v_b0, v_b1, v_bp, v_ps = V.many(4, 4)
    s_tg = S.a()
    s_c = S.a(2)
    s_sc = S.a(2)
    s_oo = S.many(2)
    RL = P("RLOG", 1)

    def lane_consts():
        a(f"v_and_b32 {v_row}, 15, {v_lane}")
        a(f"v_lshrrev_b32 {v_g}, 4, {v_lane}")
        a(f"v_bfe_u32 {v_r}, {v_lane}, 2, 2")
        a(f"v_and_b32 {v_c}, 3, {v_lane}")

    def att_consts():
        v_neg = v_wv
        srd(a, sO, WS, O_BYTES, O_OFF)
        a(f"s_and_b32 {s_tmp}, {s_w}, 3")
        a(f"s_mul_i32 {s_tmp}, {s_tmp}, 3")
        a(f"s_lshr_b32 {s_t2}, {s_w}, 2")
        a(f"s_lshl1_add_u32 {s_tmp}, {s_t2}, {s_tmp}")
        a(f"s_mul_i32 {s_tg}, {s_rt}, {MT-1}")
        a(f"s_add_u32 {s_tg}, {s_tg}, {s_tmp}")
        a(f"s_mul_i32 {s_tmp}, {s_tmp}, {TP}")
        a(f"s_add_u32 {s_tmp}, {s_tmp}, {QKV_BASE}")
        a(f"v_mul_u32_u24 {v_hi}, {PITCH}, {v_row}")
        a(f"v_lshl_add_u32 {v_lo}, {v_g}, 3, {v_hi}")
        a(f"v_add_u32 {v_lo}, {s_tmp}, {v_lo}")
        a(f"v_add3_u32 {v_hi}, {v_hi}, 32, {s_tmp}")
        a(f"v_cmp_eq_u32 vcc, 0, {v_g}")
        a(f"v_add_u32 {v_t0}, {240 - 32}, {v_hi}")
        a(f"v_add_u32 {v_t1}, {QO}, {v_hi}")
        a(f"v_add_u32 {v_t2}, {QO + 40}, {v_hi}")
        a(f"v_cndmask_b32 {v_hq[0]}, {v_t0}, {v_t1}, vcc")
        a(f"v_cndmask_b32 {v_hq[1]}, {v_t0}, {v_t2}, vcc")
        a(f"v_lshl_add_u32 {v_va}, {v_g}, 2, {v_r}")
        a(f"v_mul_u32_u24 {v_va}, {PITCH}, {v_va}")
        a(f"v_add_u32 {v_t3}, {s_tmp}, {v_va}")
        a(f"v_lshl_add_u32 {v_va}, {v_c}, 3, {v_t3}")
        a(f"v_add_u32 {v_t0}, 240, {v_t3}")
        a(f"v_add_u32 {v_t1}, {VO + 32}, {v_t3}")
        a(f"v_add_u32 {v_t2}, {VO + 72}, {v_t3}")
        for u in range(4):
            a(f"v_cmp_eq_u32 vcc, {u}, {v_c}")
            a("s_nop 1")
            a(f"v_cndmask_b32 {v_vt[u]}, {v_t0}, {v_t2 if u & 1 else v_t1}, vcc")
        a(f"s_lshl_b32 {s_tmp}, {s_pos}, 10")
        a(f"v_lshl_add_u32 {v_os}, {v_lane}, 4, {s_tmp}")
        a(f"s_lshl_b32 {s_tmp}, {s_pos}, 8")
        a(f"s_add_u32 {s_tmp}, {s_tmp}, 16384")
        a(f"v_lshl_add_u32 {v_ot}, {v_row}, 4, {s_tmp}")
        a(f"v_and_b32 {v_t0}, 1, {v_g}")
        a(f"v_lshl_add_u32 {v_ot}, {v_t0}, 3, {v_ot}")
        a(f"s_cmp_lt_u32 {s_w}, 4")
        a(f"s_cselect_b32 {s_tmp}, 0, 0x800000")
        a(f"s_add_u32 {s_tmp}, {s_tmp}, 20480")
        a(f"v_lshrrev_b32 {v_t0}, 1, {v_g}")
        a(f"v_mad_u32_u24 {v_ot}, {v_t0}, {s_tmp}, {v_ot}")
        a(f"s_mul_i32 {s_oo[0]}, {s_tg}, 20480")
        a(f"s_add_u32 {s_oo[1]}, {s_oo[0]}, {20480}")
        a(f"v_mov_b32 {v_neg}, 0x{NEG:x}")
        a(f"v_lshlrev_b32 {v_t0}, 2, {v_g}")
        a(f"v_sub_u32 {v_t0}, {v_row}, {v_t0}")
        a(f"s_cmp_eq_u32 {s_tg}, 0")
        a(f"s_cselect_b32 {s_tmp}, 0x{NEG:x}, 0")
        for r in range(4):
            a(f"v_subrev_u32 {v_t1}, {r}, {v_t0}")
            a(f"v_and_b32 {v_t2}, 0x80000001, {v_t1}")
            a(f"v_cmp_eq_u32 vcc, 0, {v_t2}")
            a("s_nop 1")
            a(f"v_cndmask_b32 {v_b1+r}, {v_neg}, 0, vcc")
            a(f"v_cmp_eq_u32 vcc, 0x80000000, {v_t2}")
            a("s_nop 1")
            a(f"v_cndmask_b32 {v_b0+r}, {v_neg}, 0, vcc")
            a(f"v_add_f32 {v_bp+r}, {s_tmp}, {v_b0+r}")
        for p, vb in enumerate((v_b0, v_b1)):
            for k in range(2):
                lo = 0x0c0c0000 | ((2 * k + 1) << 8) | (2 * k)
                hi = 0x00000c0c | ((2 * k + 1) << 24) | ((2 * k) << 16)
                a(f"v_mov_b32 {v_t1}, 0x0c0c0c0c")
                a(f"v_mov_b32 {v_t2}, 0x{lo:x}")
                a(f"v_cmp_eq_u32 vcc, 0, {vb+2*k}")
                a(f"v_mov_b32 {v_t3}, 0x{hi:x}")
                a("s_nop 0")
                a(f"v_cndmask_b32 {v_t1}, {v_t1}, {v_t2}, vcc")
                a(f"v_cmp_eq_u32 vcc, 0, {vb+2*k+1}")
                a("s_nop 1")
                a(f"v_cndmask_b32 {v_ps+2*p+k}, {v_t1}, {v_t3}, vcc")
        a(f"s_mov_b32 {s_c}, 0x{LOG2E if RL == 1 else SCALE_L2E:x}")
        a(f"s_mov_b32 {s_c+1}, {s_c}")
        a(f"s_mov_b32 {s_sc}, 0x{f32bits(20 ** -0.5):x}")
        a(f"s_mov_b32 {s_sc+1}, {s_sc}")

    def flag_consts():
        a(f"s_mul_i32 {s_tmp}, {s_rt}, 11")
        a(f"s_add_u32 {s_t2}, {s_tmp}, 10")
        a(f"s_lshr_b32 {s_tmp}, {s_tmp}, 3")
        a(f"s_lshr_b32 {s_t2}, {s_t2}, 3")
        a(f"s_min_u32 {s_t2}, {s_t2}, 15")
        a(f"s_sub_u32 {s_t2}, {s_t2}, {s_tmp}")
        a(f"s_add_u32 {s_t2}, {s_t2}, 1")
        a(f"s_mul_i32 {s_t2}, {s_t2}, 10")
        a(f"s_bfm_b32 {s_fl}, {s_t2}, 0")
        a(f"v_mul_u32_u24 {v_t0}, 205, {v_lane}")
        a(f"v_lshrrev_b32 {v_t0}, 11, {v_t0}")
        a(f"v_add_u32 {v_t0}, {s_tmp}, {v_t0}")
        a(f"v_mul_u32_u24 {v_t0}, {8*187}, {v_t0}")
        a(f"v_lshrrev_b32 {v_t0}, 11, {v_t0}")
        a(f"v_sub_u32 {v_t0}, {s_rt}, {v_t0}")
        a(f"v_and_b32 {v_t0}, 1, {v_t0}")
        a(f"v_lshlrev_b32 {v_t0}, 6, {v_t0}")
        a(f"v_lshl_add_u32 {v_t0}, {v_lane}, 8, {v_t0}")
        a(f"s_mul_i32 {s_tmp}, {s_tmp}, 2560")
        a(f"s_lshl_b32 {s_t2}, {s_pos}, 2")
        a(f"s_add_u32 {s_tmp}, {s_tmp}, {s_t2}")
        a(f"s_add_u32 {s_tmp}, {s_tmp}, {FL_OFF}")
        a(f"v_add_u32 {v_fo}, {s_tmp}, {v_t0}")

    mV2 = V.mark()
    mS2 = S.mark()
    slow_head()
    a(f"s_mov_b32 {s_role}, 1")
    a(f"s_lshl_b32 {s_tmp}, {s_w}, 8")
    a(f"s_add_u32 {s_tmp}, {s_tmp}, s2")
    a(f"s_lshr_b32 {s_tmp}, {s_tmp}, 3")
    a(f"s_cmp_lg_u32 {s_tmp}, {5*32}")
    a("s_cbranch_scc1 K_COMMON")
    a(f"s_mul_i32 {s_tmp}, s2, {ZBYTES // 8}")
    a(f"s_add_u32 {s_tmp}, {s_tmp}, {FL_OFF + 3072}")
    a(f"v_lshl_add_u32 {v_pf}, {v_lane}, 4, {s_tmp}")
    a(f"v_mov_b64 {v_b0(2)}, 0")
    a(f"v_mov_b64 {(v_b0+2)(2)}, 0")
    a("s_waitcnt lgkmcnt(0)")
    for k in range(ZBYTES // 8192):
        a(f"global_store_dwordx4 {v_pf}, {v_b0(4)}, {WS(2)} offset:{k*1024 - 3072} {SC_FLAG}")
    a(f"s_lshl_b32 {s_tmp}, s2, 2")
    a(f"v_mov_b32 {v_t0}, {s_tmp}")
    a(f"v_mov_b32 {v_t1}, 1")
    a("s_mov_b64 exec, 1")
    a("s_waitcnt vmcnt(0)")
    a(f"global_store_dword {v_t0}, {v_t1}, {DBG(2)} offset:{ZW2*4} {SC_FLAG}")
    a("s_mov_b64 exec, -1")
    stamp(a, "zdone")
    a("s_branch K_COMMON")
    a.label("K_FAST")
    stamp(a, "role")
    v_xo = V.many(2)
    v_wo = V.many(2)
    s_lw, s_xb, s_wb, s_m0x, s_m0w, s_sox, s_sow, s_kc, s_so, s_cnt = S.many(10)
    PERM8 = [0, 2, 5, 7, 1, 3, 4, 6]
    KT = sum(((P('ROTH', 3) * PERM8[k]) % 10) << (4 * k) for k in range(8))
    a(f"s_lshr_b32 {s_hg}, s2, 1")
    a(f"s_and_b32 {s_hg}, {s_hg}, 28")
    a(f"v_lshrrev_b32 {v_t1}, 4, {v_lane}")
    a(f"s_lshr_b32 {s_kc}, 0x{KT:x}, {s_hg}")
    a(f"s_and_b32 {s_kc}, {s_kc}, 15")
    a(f"v_and_b32 {v_t2}, 7, {v_lane}")
    a(f"s_lshr_b32 {s_tmp}, s2, 6")
    a(f"s_lshl2_add_u32 {s_kc}, {s_tmp}, {s_kc}")
    a(f"v_lshrrev_b32 {v_t0}, 3, {v_lane}")
    a(f"s_add_u32 {s_kc}, {s_kc}, {s_xcd}")
    a(f"s_mul_i32 {s_t2}, {s_kc}, 205")
    a(f"v_xor_b32 {v_t2}, {v_t2}, {v_t1}")
    a(f"s_lshr_b32 {s_t2}, {s_t2}, 11")
    a(f"s_mul_i32 {s_t2}, {s_t2}, 10")
    a(f"v_mul_u32_u24 {v_t0}, 1280, {v_t0}")
    a(f"s_sub_u32 {s_kc}, {s_kc}, {s_t2}")
    a(f"s_lshr_b32 {s_xb}, {s_xcd}, 1")
    a(f"v_lshl_add_u32 {v_xo[0]}, {v_t2}, 4, {v_t0}")
    a(f"s_mul_i32 {s_xb}, {s_xb}, {3*RROWS*1280}")
    a(f"s_mul_i32 {s_tmp}, {s_tmp}, {RROWS*1280}")
    a(f"v_xor_b32 {v_xo[1]}, 64, {v_xo[0]}")
    a(f"s_add_u32 {s_xb}, {s_xb}, {s_tmp}")
    a(f"s_mul_i32 {s_wb}, {s_w}, {48*1280}")
    a(f"s_add_u32 {s_xb}, {s_xb}, {s_wb}")
    a(f"s_sub_u32 {s_xb}, {s_xb}, {(RROWS+16)*1280}")
    a(f"s_mul_i32 {s_m0x}, {s_w}, 6144")
    a(f"s_add_u32 {s_m0x}, {s_m0x}, {SLOT}")

    ORDER = [("w", 0), ("x", 0), ("w", 1), ("x", 1), ("x", 2), ("w", 2), ("x", 3), ("w", 3), ("x", 4), ("x", 5)]
    ORDER0 = [("x", j) for j in range(6)] + [("w", j) for j in range(4)]
    HS = P("HSPLIT", 5)

    def dma_head(kind):
        if "s" in kind:
            a(f"s_cmp_ge_u32 {s_m0x}, {2*SLOT}")
            a(f"s_cselect_b32 {s_so}, {-2*SLOT}, {s_tmp}")
            a(f"s_add_u32 {s_m0x}, {s_m0x}, {s_so}")
            a(f"s_add_u32 {s_m0w}, {s_m0w}, {s_so}")
        if "x" in kind:
            a(f"s_lshl_b32 {s_sox}, {s_kc}, 7")
            a(f"s_add_u32 {s_sox}, {s_sox}, {s_xb}")
        if "w" in kind:
            a(f"s_mul_i32 {s_sow}, {s_kc}, {64*3840}")
            a(f"s_add_u32 {s_sow}, {s_sow}, {s_wb}")
            a(f"s_add_u32 {s_kc}, {s_kc}, 1")
            a(f"s_cmp_eq_u32 {s_kc}, 10")
            a(f"s_cselect_b32 {s_kc}, 0, {s_kc}")

    def dma_part(lo, hi, order=ORDER):
        for kind, j in order[lo:hi]:
            if kind == "w":
                a(f"s_add_u32 m0, {s_m0w}, {j*1024}")
                a(f"s_add_u32 {s_so}, {s_sow}, {j*4*3840}")
                a(f"buffer_load_dwordx4 {v_wo[j>>1]}, {sW(4)}, {s_so} offen lds")
            else:
                if j == 1:
                    a(f"s_add_u32 {s_so}, {s_sox}, {8*1280}")
                a(f"s_add_u32 m0, {s_m0x}, {j*1024}")
                if j < 2:
                    a(f"s_max_i32 {s_so}, {s_so if j else s_sox}, 0")
                else:
                    a(f"s_add_u32 {s_so}, {s_sox}, {j*8*1280}")
                a(f"buffer_load_dwordx4 {v_xo[j&1]}, {sX(4)}, {s_so} offen lds")

    dma_head("x")
    stamp(a, "setup")
    a("s_waitcnt lgkmcnt(0)")
    stamp(a, "karg")
    dma_part(0, 6, ORDER0)
    stamp(a, "x6")
    a(f"v_lshlrev_b32 {v_t0}, 1, {v_t1}")
    a(f"s_lshr_b32 {s_hg}, 0x64317520, {s_hg}")
    a(f"v_sub_u32 {v_t0}, {v_lane}, {v_t0}")
    a(f"s_and_b32 {s_hg}, {s_hg}, 7")
    a(f"v_and_b32 {v_t0}, 15, {v_t0}")
    a(f"s_and_b32 {s_tmp}, {s_xcd}, 1")
    a(f"v_mul_u32_u24 {v_t1}, 3840, {v_t1}")
    a(f"s_lshl3_add_u32 {s_hg}, {s_tmp}, {s_hg}")
    for jj in range(2):
        if jj:
            a(f"v_xor_b32 {v_t0}, 8, {v_t0}")
        a(f"v_mul_u32_u24 {v_t2}, 13, {v_t0}")
        if jj == 0:
            a(f"s_mul_i32 {s_tmp}, {s_hg}, 80")
        a(f"v_lshrrev_b32 {v_t2}, 6, {v_t2}")
        if jj == 0:
            a(f"s_add_u32 {s_wb}, {s_wb}, {s_tmp}")
        a(f"v_mul_u32_u24 {v_t2}, 1200, {v_t2}")
        if jj == 0:
            a(f"s_lshl_b32 {s_m0w}, {s_w}, 12")
        a(f"v_lshl_add_u32 {v_t2}, {v_t0}, 4, {v_t2}")
        if jj == 0:
            a(f"s_add_u32 {s_m0w}, {s_m0w}, {SLOT + XREG}")
        a(f"v_add_u32 {v_t3}, 1, {v_t0}")
        if jj == 0:
            a(f"s_mov_b32 {sW+2}, 0x{640*3840:x}")
        a(f"v_and_b32 {v_t3}, 16, {v_t3}")
        if jj == 0:
            a(f"s_mov_b32 {sW+3}, 0x20000")
        a(f"v_lshl_add_u32 {v_t2}, {v_t3}, 24, {v_t2}")
        a(f"v_add_u32 {v_wo[jj]}, {v_t1}, {v_t2}")
        if jj == 0:
            dma_head("w")
        dma_part(6 + 2 * jj, 8 + 2 * jj, ORDER0)
    stamp(a, "wi1")
    a(f"s_mov_b32 {s_tmp}, {SLOT}")
    dma_head("sxw")
    HS1, HS2 = P("HS1", HS), P("HS2", HS)
    assert HS1 <= HS2
    dma_part(0, HS1)
    if HS2 > HS1:
        a("s_bitcmp0_b32 s2, 5")
        a("s_cbranch_scc1 K_ISS")
        dma_part(HS1, HS2)
        a.label("K_ISS")
    stamp(a, "issued")
    a(f"s_mov_b32 {s_lw}, {s_w}")
    a(f"s_mov_b32 {s_role}, 0")
    a.label("K_COMMON")
    common_ids()
    a(f"s_cmp_lt_u32 {s_i}, 8")
    a("s_cbranch_scc1 K_AUX")
    main_ids()
    lane_consts()
    a("s_waitcnt lgkmcnt(0)")
    att_consts()
    flag_consts()
    a(f"s_cmp_eq_u32 {s_role}, 1")
    a("s_cbranch_scc1 K_CONS")
    wo_voff(v_wv)
    a(f"s_mov_b32 {s_cnt}, {NCH - 1}")
    a(f"s_mov_b32 {s_tmp}, {SLOT}")
    for k, hs in enumerate((HS1, HS2) if HS2 > HS1 else (HS1,)):
        if k == 0 and HS2 > HS1:
            a("s_bitcmp1_b32 s2, 5")
            a("s_cbranch_scc1 K_LOOP1")
        a.label(f"K_LOOP{k}")
        a(f"s_waitcnt vmcnt({hs})")
        a("s_barrier")
        dma_part(hs, 10)
        a(f"s_sub_u32 {s_cnt}, {s_cnt}, 1")
        a(f"s_cmp_eq_u32 {s_cnt}, 0")
        a("s_cbranch_scc1 K_LOOPX")
        dma_head("sxw")
        dma_part(0, hs)
        a(f"s_branch K_LOOP{k}")
    a.label("K_LOOPX")
    zaddr(v_t0)
    a("s_waitcnt vmcnt(0)")
    stamp(a, "w9")
    a("s_barrier")
    stamp(a, "c9")
    a(f"s_cmp_lt_u32 {s_w}, 6")
    a("s_cbranch_scc1 K_NOSMP")
    zsample(v_t0)
    a.label("K_NOSMP")
    a(f"s_cmp_eq_u32 {s_n}, -1")
    a("s_cbranch_scc1 K_JOIN_S")
    a(f"s_cmp_lg_u32 {s_w}, 7")
    a("s_cbranch_scc1 K_WOE")
    a("s_barrier")
    a.label("K_WOE")
    wo_blocks(v_wv, s_lw, 0, s_sox, s_sow, s_tmp)
    a(f"s_cmp_lg_u32 {s_w}, 7")
    a("s_cbranch_scc1 K_JOIN_S")
    a(f"s_mov_b32 {s_lw}, 0")
    a.label("K_XD")
    x_base(s_sox, s_lw)
    x_dma(v_xo, s_sox, s_lw)
    a(f"s_add_u32 {s_lw}, {s_lw}, 1")
    a(f"s_cmp_lt_u32 {s_lw}, 4")
    a("s_cbranch_scc1 K_XD")
    a("s_branch K_W7")

    V.release(mV2)
    S.release(mS2)
    page()
    a.label("K_CONS")
    s_mh, s_nh, s_cnt = S.many(3)
    a(f"s_lshr_b32 {s_mh}, {s_w}, 1")
    a(f"s_and_b32 {s_nh}, {s_w}, 1")
    v_aa = [V.many(2) for _ in range(2)]
    v_ba = [V.many(4) for _ in range(2)]
    v_wa = V.a()
    a(f"v_lshrrev_b32 {v_t0}, 1, {v_row}")
    a(f"v_xor_b32 {v_t0}, {v_t0}, {v_g}")
    a(f"v_lshlrev_b32 {v_t0}, 4, {v_t0}")
    a(f"v_lshl_add_u32 {v_t0}, {v_row}, 7, {v_t0}")
    a(f"s_mul_i32 {s_tmp}, {s_mh}, {MH*2048}")
    a(f"v_add_u32 {v_aa[0][0]}, {s_tmp}, {v_t0}")
    a(f"v_xor_b32 {v_aa[0][1]}, 64, {v_aa[0][0]}")
    for ks in range(2):
        a(f"v_add_u32 {v_aa[1][ks]}, {2*SLOT}, {v_aa[0][ks]}")
    a(f"v_and_b32 {v_t0}, 1, {v_g}")
    a(f"v_lshl_or_b32 {v_t0}, {v_t0}, 2, {v_r}")
    a(f"v_lshl_add_u32 {v_t1}, {v_g}, 3, {v_r}")
    a(f"v_lshlrev_b32 {v_t1}, 8, {v_t1}")
    a(f"v_lshl_add_u32 {v_t1}, {v_c}, 3, {v_t1}")
    a(f"v_add_u32 {v_t1}, {XREG}, {v_t1}")
    a(f"s_lshl_b32 {s_tmp}, {s_nh}, 2")
    a(f"v_add_u32 {v_t0}, {s_tmp}, {v_t0}")
    for tt in range(4):
        a(f"v_add_u32 {v_t2}, {tt}, {v_t0}")
        a(f"v_and_b32 {v_t2}, 7, {v_t2}")
        a(f"v_lshl_add_u32 {v_ba[0][tt]}, {v_t2}, 5, {v_t1}")
        a(f"v_add_u32 {v_ba[1][tt]}, {2*SLOT}, {v_ba[0][tt]}")
    a(f"v_mul_u32_u24 {v_wa}, {PITCH}, {v_row}")
    a(f"v_lshl_add_u32 {v_wa}, {v_g}, 3, {v_wa}")
    a(f"s_mul_i32 {s_tmp}, {s_mh}, {MH*TP}")
    a(f"s_lshl_b32 {s_t2}, {s_nh}, 7")
    a(f"s_add_u32 {s_tmp}, {s_tmp}, {s_t2}")
    a(f"s_add_u32 {s_tmp}, {s_tmp}, {QKV_BASE}")
    a(f"v_add_u32 {v_wa}, {s_tmp}, {v_wa}")
    acc = [V.many(4, 4) for _ in range(MH)]
    for m in range(MH):
        for tt in range(4):
            for h in range(2):
                a(f"v_mov_b64 {(acc[m][tt]+2*h)(2)}, 0")
    a(f"s_mov_b32 {s_cnt}, 3")
    warm("M", s_w)
    stamp(a, "issued")

    fa = [V.many(MH, 4) for _ in range(2)]
    fb = [V.many(4, 4) for _ in range(2)]

    def read_ops(c, ks):
        sl = (c + 1) % NS
        sp, so = sl >> 1, (sl & 1) * SLOT
        B, A = [], []
        for tt in range(4):
            B.append([f"ds_read_b64_tr_b16 {(fb[ks][tt]+2*h)(2)}, {v_ba[sp][tt]} offset:{so + ks*8192 + h*1024}"
                      for h in range(2)])
        for m in range(MH):
            A.append(f"ds_read_b128 {fa[ks][m](4)}, {v_aa[sp][ks]} offset:{so + m*2048}")
        return B[0] + [A[0]] + B[1] + [A[1]] + B[2] + [A[2]] + B[3] + A[3:]

    def mfma_block(ks, fillers):
        order = [(m, tt if m % 2 == 0 else 3 - tt) for m in range(MH) for tt in range(4)]
        fillers = list(fillers)
        for m, tt in order:
            a(f"{MFMA} {acc[m][tt](4)}, {fb[ks][tt](4)}, {fa[ks][m](4)}, {acc[m][tt](4)}")
            if fillers:
                a(fillers.pop(0))
        assert not fillers

    tmpw = V.many(4, 2)

    def wr_tile(idx):
        m, tt = idx // 4, idx % 4
        t = tmpw[idx % 4]
        a(f"v_cvt_pk_bf16_f32 {t}, {acc[m][tt]}, {acc[m][tt]+1}")
        a(f"v_cvt_pk_bf16_f32 {t+1}, {acc[m][tt]+2}, {acc[m][tt]+3}")
        a(f"ds_write_b64 {v_wa}, {t(2)} offset:{m*TP + tt*32}")

    if P("CPRIO", 2):
        a(f"s_setprio {P('CPRIO', 2)}")
    a("s_barrier")
    stamp(a, "c0")
    for line in read_ops(0, 0):
        a(line)
    a.label("K_CLOOP")
    for c in range(3):
        a("s_waitcnt lgkmcnt(0)")
        mfma_block(0, read_ops(c, 1))
        a("s_waitcnt lgkmcnt(0)")
        a("s_barrier")
        mfma_block(1, read_ops(c + 1, 0) + ([f"s_sub_u32 {s_cnt}, {s_cnt}, 1", f"s_cmp_lg_u32 {s_cnt}, 0"] if c == 2 else []))
    a("s_cbranch_scc1 K_CLOOP")
    c = NCH - 1
    a("s_waitcnt lgkmcnt(0)")
    M0 = P("LASTM", 4)
    seq = [(m, tt, 0) for m in range(M0) for tt in range(4)]
    seq += [(m, tt, 1) for m in range(M0) for tt in range(4)]
    for m in range(M0, MH):
        seq += [(m, tt, 0) for tt in range(4)] + [(m, tt, 1) for tt in range(4)]
    fill = read_ops(c, 1)
    done = []
    for pos, (m, tt, ks) in enumerate(seq):
        if pos == 4 * M0:
            a("s_waitcnt lgkmcnt(0)")
            stamp(a, "loopend")
        a(f"{MFMA} {acc[m][tt](4)}, {fb[ks][tt](4)}, {fa[ks][m](4)}, {acc[m][tt](4)}")
        if pos < len(fill):
            a(fill[pos])
        if ks == 1:
            done.append((len(a.lines), m * 4 + tt))
        if done and len(a.lines) - done[0][0] >= 8:
            wr_tile(done.pop(0)[1])
    a("s_nop 7")
    for _, idx in done:
        wr_tile(idx)
    a(f"s_setprio {P('DPRIO', 0)}")
    wpoint("attd", skip=True, align=True)
    a("s_waitcnt lgkmcnt(0)")

    def attention(NT):
        V.release(mV2)
        S.release(mS2)
        b = Asm()
        U = range(2 * NT)
        qf = V.many(2 * NT, 4)
        kf = [V.many(NT + 1, 4) for _ in range(2)]
        vf = [V.a(2 * (NT + 1), 4) for _ in range(2)]
        vt = V.many(2 * NT, 4)
        sc = [V.many(2, 4) for _ in U]
        pf = V.many(2 * NT, 4)
        oc = V.many(2 * NT, 4)
        ot = V.a(4)
        ee = V.a(4 * NT, 2)
        E = V.many(2 * NT)
        mx, sm = V.a(2), V.a(4)
        st = V.many(NT, 4)
        Q = LgkmQueue(b)

        def rdk(h, t):
            b(f"ds_read_b64 {kf[h][t](2)}, {v_lo} offset:{t*TP + KO + 40*h}"); Q.issue(("k", h, t))
            b(f"ds_read_b64 {(kf[h][t]+2)(2)}, {v_hi} offset:{t*TP + KO + 40*h}"); Q.issue(("k", h, t))

        def smm(u):
            t, h = u >> 1, u & 1
            Q.need(("q", u), ("k", h, t), ("k", h, t + 1))
            b(f"{MFMA} {sc[u][0](4)}, {kf[h][t](4)}, {qf[u](4)}, {(v_bp if t == 0 else v_b0)(4)}")
            b(f"{MFMA} {sc[u][1](4)}, {kf[h][t+1](4)}, {qf[u](4)}, {v_b1(4)}")

        for u in U:
            t, h = u >> 1, u & 1
            if t == 0:
                rdk(h, 0)
            b(f"ds_read_b64 {qf[u](2)}, {v_lo} offset:{(t+1)*TP + QO + 40*h}"); Q.issue(("q", u))
            b(f"ds_read_b64 {(qf[u]+2)(2)}, {v_hq[h]} offset:{(t+1)*TP}"); Q.issue(("q", u))
            rdk(h, t + 1)
            if u >= 2:
                smm(u - 2)
        vrd = []
        for u in U:
            t, h = u >> 1, u & 1
            for tt in ([0, 1] if t == 0 else [2]):
                vrd.append(f"ds_read_b64_tr_b16 {(vf[h]+2*tt)(2)}, {v_va} offset:{tt*TP + VO + 40*h}")
            for k in range(2):
                vrd.append(f"ds_read_b64_tr_b16 {(vt[u]+2*k)(2)}, {v_vt[u]} offset:{(t+k)*TP}")
        for u in list(U)[-2:]:
            smm(u)
        stamp(b, "a1")
        sel = []
        for u in U:
            s0, s1 = sc[u]
            e = ee + 2 * u
            sel += [f"v_max3_f32 {e}, {s0}, {s0+1}, {s1}", f"v_max3_f32 {e+1}, {s0+2}, {s0+3}, {s1+2}",
                    f"v_max_f32 {e}, {e}, {s1+1}", f"v_max_f32 {e+1}, {e+1}, {s1+3}"]
        nv = 8 if NT == 1 else 4
        for l in vrd[:nv]:
            b(l)
        vrd = vrd[nv:]
        for l in sel:
            b(l)
            if vrd:
                b(vrd.pop(0))
        assert not vrd
        for u in U:
            b(f"v_cvt_pk_bf16_f32 {E[u]}, {ee+2*u}, {ee+2*u+1}")
        if RL == 1:
            for u in U:
                b(f"v_lshlrev_b32 {ee+2*u}, 16, {E[u]}")
                b(f"v_and_b32 {ee+2*u+1}, 0xffff0000, {E[u]}")
            for u in U:
                b(f"v_pk_mul_f32 {(ee+2*u)(2)}, {(ee+2*u)(2)}, {s_sc(2)}")
            for u in U:
                b(f"v_cvt_pk_bf16_f32 {E[u]}, {ee+2*u}, {ee+2*u+1}")
        sw16 = [f"v_permlane16_swap_b32 {E[2*k]}, {E[2*k+1]}" for k in range(NT)]
        sw32 = [f"v_permlane32_swap_b32 {E[k]}, {E[k+2]}" for k in range(2)] if NT == 2 else []
        for l in sw16 + sw32:
            b(l)
        for u in ([0, 2, 1, 3] if NT == 2 else U):
            b(f"v_lshlrev_b32 {ee+2*u}, 16, {E[u]}")
            b(f"v_and_b32 {ee+2*u+1}, 0xffff0000, {E[u]}")

        def cross(r, t, op):
            b(f"v_mov_b32 {t}, {r}")
            b(f"v_permlane32_swap_b32 {r}, {t}")
            b(f"{op} {r}, {r}, {t}")

        if NT == 2:
            b(f"v_max3_f32 {mx}, {ee}, {ee+1}, {ee+4}")
            b(f"v_max3_f32 {mx+1}, {ee+5}, {ee+2}, {ee+3}")
            b(f"v_max3_f32 {mx}, {mx}, {ee+6}, {ee+7}")
            b(f"v_max_f32 {mx}, {mx}, {mx+1}")
        else:
            b(f"v_max3_f32 {mx}, {ee}, {ee+1}, {ee+2}")
            b(f"v_max_f32 {mx}, {mx}, {ee+3}")
            cross(mx, mx + 1, "v_max_f32")
        b(f"v_mul_f32 {mx}, {s_c}, {mx}")
        for u in U:
            b(f"v_pk_fma_f32 {(ee+2*u)(2)}, {(ee+2*u)(2)}, {s_c(2)}, {mx(2)} op_sel_hi:[1,1,0] neg_lo:[0,0,1] neg_hi:[0,0,1]")
        for i in range(4 * NT):
            b(f"v_exp_f32 {ee+i}, {ee+i}")
        b(f"v_pk_add_f32 {sm(2)}, {ee(2)}, {(ee+2)(2)}")
        if NT == 2:
            b(f"v_pk_add_f32 {(sm+2)(2)}, {(ee+4)(2)}, {(ee+6)(2)}")
            b(f"v_pk_add_f32 {sm(2)}, {sm(2)}, {(sm+2)(2)}")
        b(f"v_add_f32 {sm}, {sm}, {sm+1}")
        if NT == 1:
            cross(sm, sm + 1, "v_add_f32")
        stamp(b, "a2")
        b(f"v_rcp_f32 {sm}, {sm}")
        b("s_waitcnt lgkmcnt(0)")
        for u in U:
            b(f"v_pk_mul_f32 {(ee+2*u)(2)}, {(ee+2*u)(2)}, {sm(2)} op_sel_hi:[1,0]")
        for u in ([0, 2, 1, 3] if NT == 2 else U):
            b(f"v_cvt_pk_bf16_f32 {E[u]}, {ee+2*u}, {ee+2*u+1}")
        for l in sw32 + sw16:
            b(l)

        def pv(u):
            t, h = u >> 1, u & 1
            b(f"{MFMA} {oc[u](4)}, {(vf[h]+2*t)(4)}, {pf[u](4)}, 0")
            b(f"{MFMA} {ot(4)}, {vt[u](4)}, {pf[u](4)}, {'0' if u == 0 else ot(4)}")

        def cvo(t):
            for h in range(2):
                o = oc[2 * t + h]
                b(f"v_cvt_pk_bf16_f32 {st[t]+2*h}, {o}, {o+1}")
                b(f"v_cvt_pk_bf16_f32 {st[t]+2*h+1}, {o+2}, {o+3}")
            b(f"buffer_store_dwordx4 {st[t](4)}, {v_os}, {sO(4)}, {s_oo[t]} offen {SC_ST}")

        for u in U:
            for k in range(4):
                b(f"v_perm_b32 {pf[u]+k}, {E[u]}, {E[u]}, {v_ps+k}")
            if u > 0:
                pv(u - 1)
        pv(2 * NT - 1)
        stamp(b, "a3")
        for t in range(NT):
            cvo(t)
        b(f"v_cvt_pk_bf16_f32 {mx}, {ot}, {ot+1}")
        b(f"v_cvt_pk_bf16_f32 {mx+1}, {ot+2}, {ot+3}")
        b(f"buffer_store_dwordx2 {mx(2)}, {v_ot}, {sO(4)}, {s_oo[0]} offen {SC_ST}")
        rep = []
        a.lines += hz.fix(b.lines, rep)
        print("attention NT=%d: %d lines, %d wait states added" % (NT, len(b.lines), rep[0]))

    W_DR = 48

    def arrive(name, inc):
        a(f"v_mov_b32 {v_t2}, {YB}")
        a(f"v_mov_b32 {v_t1}, {inc}")
        a("s_mov_b64 exec, 1")
        a("s_waitcnt vmcnt(0)" if name != "7" else "s_nop 0")
        a(f"ds_add_rtn_u32 {v_t0}, {v_t2}, {v_t1} offset:{W_DR}")
        a(f"s_mov_b32 exec_lo, {s_fl}")
        a(f"v_mov_b32 {v_t1}, 1")
        a("s_waitcnt lgkmcnt(0)")
        a(f"v_readfirstlane_b32 {s_t2}, {v_t0}")
        a("s_nop 3")
        a(f"s_and_b32 {s_t2}, {s_t2}, 0xff")
        a(f"s_cmp_lg_u32 {s_t2}, 7")
        a(f"s_cbranch_scc1 K_ARR{name}")
        a(f"global_store_dword {v_fo}, {v_t1}, {WS(2)} {SC_FLAG}")
        a.label(f"K_ARR{name}")
        a("s_mov_b64 exec, -1")

    a("s_barrier")
    stamp(a, "join")
    attention(2)
    stamp(a, "attdone")
    a(f"s_cmp_lg_u32 {s_n}, -1")
    a("s_cbranch_scc1 K_P2_EARLY")
    a.label("K_DRAIN")
    a("s_waitcnt vmcnt(0)")
    a("s_barrier")
    stamp(a, "drained")
    a("s_branch K_END")
    a.label("K_W7")
    stamp(a, "w7i")
    a("s_waitcnt vmcnt(26)")
    zpoll(5)
    arrive("7", 1)
    a(f"v_mov_b32 {v_t1}, 0x100")
    a("s_mov_b64 exec, 1")
    a("s_waitcnt vmcnt(0)")
    a(f"ds_add_u32 {v_t2}, {v_t1} offset:{W_DR}")
    a("s_mov_b64 exec, -1")
    stamp(a, "w7l")
    a("s_branch K_P2_HELP")
    a.label("K_FLAG")
    a("s_waitcnt vmcnt(0)")
    zpoll(0)
    a(f"v_mov_b32 {v_t1}, 1")
    a(f"s_mov_b32 exec_lo, {s_fl}")
    a("s_mov_b32 exec_hi, 0")
    a("s_setprio 3")
    a("s_barrier")
    a(f"global_store_dword {v_fo}, {v_t1}, {WS(2)} {SC_FLAG}")
    stamp(a, "flag")
    a("s_mov_b64 exec, -1")
    a("s_branch K_END")
    wpoint("atts")
    a.label("K_JOIN_S")
    a(f"s_setprio {P('SPRIO', 0)}")
    a("s_barrier")
    stamp(a, "join")
    a(f"s_cmp_eq_u32 {s_w}, 7")
    a("s_cbranch_scc1 K_FLAG")
    attention(1)
    stamp(a, "attdone")
    a(f"s_cmp_eq_u32 {s_n}, -1")
    a("s_cbranch_scc1 K_DRAIN")
    a(f"s_cmp_lg_u32 {s_w}, 6")
    a("s_cbranch_scc1 K_NOFL")
    a("s_waitcnt vmcnt(12)")
    zpoll(2)
    mb_sample(v_t0)
    a.label("K_NOFL")
    arrive("S", 0x101)
    stamp(a, "drained")
    a(f"s_cmp_ge_u32 {s_w}, 6")
    a("s_cbranch_scc1 K_P2_HELP")
    if P("LGATE", 1):
        a(f"s_mov_b32 {s_tmp}, {SPIN*8}")
        a.label("K_LG")
        a(f"ds_read_b32 {v_t0}, {v_t2} offset:{W_DR}")
        a(f"s_sub_u32 {s_tmp}, {s_tmp}, 1")
        a("s_waitcnt lgkmcnt(0)")
        a(f"v_readfirstlane_b32 {s_t2}, {v_t0}")
        a("s_nop 3")
        a(f"s_cselect_b32 {s_t2}, 8, {s_t2}")
        a(f"s_bitcmp0_b32 {s_t2}, 3")
        a("s_cbranch_scc1 K_LG")
    a(f"s_sub_u32 {s_tg}, {s_w}, 4")
    a.label("K_WOL")
    wo_blocks(v_wv, s_tg, 1, s_oo[0], s_oo[1], s_tmp, P("THR2", 14))
    a(f"s_add_u32 {s_tg}, {s_tg}, 2")
    a(f"s_cmp_lt_u32 {s_tg}, 4")
    a("s_cbranch_scc1 K_WOL")
    a(f"v_mov_b32 {v_t0}, {YB}")
    a(f"v_mov_b32 {v_t1}, 2")
    a("s_waitcnt vmcnt(0)")
    a("s_mov_b64 exec, 1")
    a(f"ds_add_u32 {v_t0}, {v_t1} offset:44")
    a("s_mov_b64 exec, -1")
    a("s_branch K_P2_HELP")

    seg_aux0 = len(a.lines)
    S.release(mS)
    V.release(mV)
    page()
    a.label("K_AUX")
    GA, UP, DN = 0, 40960, 81920
    KEYS = 122880
    PRE = KEYS + 256
    HB = PRE + 1024
    XS = HB + 1024
    XSP = 1344
    assert XS + 2 * XSP <= STG
    W_RT, W_K, W_P, W_D, W_R = 36, 48, 52, 56, 60
    s_j = S.a()
    s_pm = S.a(8)
    s_pg = S.a(2)
    sR, sGW = sW, sO
    sG, sU, sD = S.many(3, 4)
    s_so, s_m0, s_k1, s_k2 = S.many(4)
    s_t3 = S.a(3)
    a(f"s_load_dwordx8 {s_pm(8)}, s[0:1], 32")
    a(f"s_load_dwordx2 {s_pg(2)}, s[0:1], 64")
    a(f"s_mul_i32 {s_j}, {s_xcd}, 7")
    a(f"s_add_u32 {s_j}, {s_j}, {s_i}")
    a(f"s_sub_u32 {s_j}, {s_j}, 1")
    a(f"s_cmp_lt_u32 {s_j}, {NSL}")
    a(f"s_cselect_b32 {s_j}, {s_j}, 63")
    a(f"s_cmp_eq_u32 {s_i}, 0")
    a(f"s_cselect_b32 {s_j}, 63, {s_j}")
    v_row, v_xo, v_c16, v_gy, v_one = V.many(5)
    xr = V.a(160)
    vk = V.a(4)
    a(f"s_lshl_b32 {s_k1}, {s_xcd}, 8")
    a(f"s_lshl_b32 {s_tmp}, {s_i}, 5")
    a(f"s_add_u32 {s_k1}, {s_k1}, {s_tmp}")
    a(f"v_mov_b32 {v_gy}, {YB}")
    a(f"v_mov_b32 {v_one}, 1")

    def fgate(name, off, val, sleep=1):
        a(f"s_mov_b32 {s_tmp}, {SPIN*8}")
        a.label(f"K_FG{name}")
        a(f"ds_read_b32 {v_t0}, {v_gy} offset:{off}")
        a(f"s_sleep {sleep}")
        a(f"s_sub_u32 {s_tmp}, {s_tmp}, 1")
        a("s_waitcnt lgkmcnt(0)")
        a(f"v_readfirstlane_b32 {s_t2}, {v_t0}")
        a("s_nop 3")
        a(f"s_cselect_b32 {s_t2}, {val}, {s_t2}")
        a(f"s_cmp_lt_u32 {s_t2}, {val}")
        a(f"s_cbranch_scc1 K_FG{name}")

    def fadd(off, v=None):
        a("s_mov_b64 exec, 1")
        a(f"ds_add_u32 {v_gy}, {v or v_one} offset:{off}")
        a("s_mov_b64 exec, -1")

    a(f"s_cmp_lt_u32 {s_w}, 4")
    a("s_cbranch_scc1 K_AUX_LO")
    wr, gw = xr + 40, xr + 80
    a(f"s_lshl_b32 {s_tmp}, {s_w}, 3")
    a(f"s_add_u32 {s_tmp}, {s_tmp}, {s_k1}")
    a(f"s_sub_u32 {s_tmp}, {s_tmp}, 32")
    a(f"v_lshrrev_b32 {v_row}, 3, {v_lane}")
    a(f"v_add_u32 {v_row}, {s_tmp}, {v_row}")
    a(f"v_and_b32 {v_c16}, 7, {v_lane}")
    a(f"v_lshlrev_b32 {v_c16}, 4, {v_c16}")
    a(f"v_mul_u32_u24 {v_xo}, 1280, {v_row}")
    a(f"v_add_u32 {v_xo}, {v_xo}, {v_c16}")
    a("s_waitcnt lgkmcnt(0)")
    for j in range(10):
        a(f"buffer_load_dwordx4 {(xr+4*j)(4)}, {v_xo}, {sX(4)}, 0 offen offset:{j*128}")
    srd(a, sR, s_pm, 1280)
    srd(a, sGW, s_pg, 1280)
    for j in range(10):
        a(f"buffer_load_dwordx4 {(wr+4*j)(4)}, {v_c16}, {sR(4)}, 0 offen offset:{j*128}")
    for j in range(10):
        a(f"buffer_load_dwordx4 {(gw+4*j)(4)}, {v_c16}, {sGW(4)}, 0 offen offset:{j*128}")
    a("s_barrier")
    ar = V.many(4)
    for i in range(4):
        a(f"v_mov_b32 {ar[i]}, 0")
    v_kw = v_xo
    a(f"v_and_b32 {v_kw}, 31, {v_row}")
    a(f"v_lshlrev_b32 {v_kw}, 2, {v_kw}")
    a(f"v_add_u32 {v_kw}, {KEYS}, {v_kw}")
    a(f"v_sub_u32 {v_t2}, 0x87ff, {v_row}")
    a("s_setprio 2")
    for k, wv in enumerate((wr, gw)):
        a(f"s_waitcnt vmcnt({10 - 10*k})")
        for i in range(40):
            a(f"v_dot2c_f32_bf16 {ar[2*k + (i&1)]}, {xr+i}, {wv+i}")
    a("s_nop 2")
    a(f"v_add_f32 {ar[0]}, {ar[0]}, {ar[1]}")
    a(f"v_add_f32 {ar[2]}, {ar[2]}, {ar[3]}")
    for dpp in ("quad_perm:[1,0,3,2]", "quad_perm:[2,3,0,1]", "row_half_mirror"):
        a("s_nop 0")
        for v in (ar[0], ar[2]):
            a(f"v_add_f32_dpp {v}, {v}, {v} {dpp} row_mask:0xf bank_mask:0xf")
    bf16r(a, v_t0, ar[0])
    a(f"v_ashrrev_i32 {v_t1}, 31, {v_t0}")
    a(f"v_or_b32 {v_t1}, 0x80000000, {v_t1}")
    a(f"v_xor_b32 {v_t0}, {v_t0}, {v_t1}")
    a(f"v_and_b32 {v_t0}, 0xffff0000, {v_t0}")
    a(f"v_or_b32 {v_t0}, {v_t0}, {v_t2}")
    a(f"ds_write2_b32 {v_kw}, {v_t0}, {ar[2]} offset0:0 offset1:32")
    fadd(W_RT)
    a("s_setprio 0")
    stamp(a, "rdone")
    a(f"s_cmp_lg_u32 {s_j}, 63")
    a("s_cbranch_scc1 K_FFN_C")
    a(f"s_cmp_lg_u32 {s_w}, 6")
    a("s_cbranch_scc1 K_P2")
    zpoll(6)
    a(f"v_mov_b32 {v_smp}, 0")
    a("s_branch K_P2")

    a.label("K_AUX_LO")
    a("s_waitcnt lgkmcnt(0)")
    a(f"s_cmp_eq_u32 {s_w}, 0")
    a("s_cbranch_scc1 K_AUX_PUB")
    a(f"s_cmp_eq_u32 {s_j}, 63")
    a("s_cbranch_scc1 K_AUX_NOF")
    v_go, v_do = V.many(2)
    s_q, s_lb = s_k1, s_k2
    a(f"s_and_b32 {s_tmp}, {s_j}, {P('GUSWAP', 1)}")
    a(f"s_cmp_eq_u32 {s_tmp}, 0")
    a(f"s_cselect_b64 {sG(2)}, {(s_pm+2)(2)}, {(s_pm+4)(2)}")
    a(f"s_cselect_b64 {sU(2)}, {(s_pm+4)(2)}, {(s_pm+2)(2)}")
    a(f"s_cselect_b32 {s_lb}, {GA}, {UP}")
    for d in (sG, sU):
        a(f"s_mov_b32 {d+2}, 0x{640*3456:x}")
        a(f"s_mov_b32 {d+3}, 0x20000")
    a(f"v_lshrrev_b32 {v_t0}, 2, {v_lane}")
    a(f"v_mul_u32_u24 {v_go}, 3456, {v_t0}")
    a(f"v_and_b32 {v_t0}, 3, {v_lane}")
    a(f"v_lshl_add_u32 {v_go}, {v_t0}, 4, {v_go}")
    a(f"s_lshl_b32 {s_so}, {s_j}, 6")
    a(f"v_add_u32 {v_go}, {s_so}, {v_go}")
    FT = P("FTHR", 6)

    def stream(name, v, d, stride, lim):
        a.label(f"K_FS{name}")
        a(f"s_lshl_b32 {s_m0}, {s_q}, 10")
        a(f"s_mul_i32 {s_so}, {s_q}, {stride}")
        a(f"s_add_u32 m0, {s_m0}, {s_lb}")
        a(f"s_waitcnt vmcnt({FT-1})")
        a(f"buffer_load_dwordx4 {v}, {d(4)}, {s_so} offen lds")
        a(f"s_add_u32 {s_q}, {s_q}, 3")
        a(f"s_cmp_lt_u32 {s_q}, {lim}")
        a(f"s_cbranch_scc1 K_FS{name}")

    a(f"s_sub_u32 {s_q}, {s_w}, 1")
    stream("A0", v_go, sG, 55296, 3 * FT)
    a("s_barrier")
    stream("A", v_go, sG, 55296, 40)
    a(f"s_sub_u32 {s_q}, {s_q}, 40")
    a(f"s_xor_b32 {s_lb}, {s_lb}, {GA ^ UP}")
    srd(a, sD, s_pm + 6, 1728 * 1280)
    a(f"s_mul_i32 {s_tmp}, {s_j}, 40960")
    a(f"v_lshl_add_u32 {v_do}, {v_lane}, 4, {s_tmp}")
    stream("B", v_go, sU, 55296, 40)
    a(f"s_sub_u32 {s_q}, {s_q}, 40")
    a(f"s_mov_b32 {s_lb}, {DN}")
    stream("D0", v_do, sD, 1024, 3 * FT)
    a(f"s_waitcnt vmcnt({FT})")
    fadd(W_D)
    stamp(a, "dmad")
    stream("D", v_do, sD, 1024, 40)
    if P("WTCH", 1):
        a(f"s_mul_i32 {s_tmp}, {s_i}, 96")
        a(f"s_lshl_b32 {s_so}, {s_w}, 5")
        a(f"s_add_u32 {s_tmp}, {s_tmp}, {s_so}")
        a(f"s_sub_u32 {s_tmp}, {s_tmp}, 128")
        a(f"v_lshrrev_b32 {v_t0}, 1, {v_lane}")
        a(f"v_add_u32 {v_t0}, {s_tmp}, {v_t0}")
        a(f"v_mul_u32_u24 {v_t0}, 1280, {v_t0}")
        a(f"v_and_b32 {v_t1}, 1, {v_lane}")
        a(f"v_lshl_add_u32 {v_t0}, {v_t1}, 7, {v_t0}")
        a(f"buffer_load_dword {v_pf}, {v_t0}, {sWO(4)}, 0 offen offset:1024")
    a.label("K_AUX_WR")
    fgate("R", W_R, 4, 2)
    a("s_branch K_P2")

    a.label("K_AUX_NOF")
    a("s_cmp_lg_u32 s2, 63")
    a("s_cbranch_scc1 K_AUX_NOZ")
    a(f"s_cmp_lg_u32 {s_w}, 1")
    a("s_cbranch_scc1 K_AUX_NOZ")
    srd(a, sG, WS, ZBYTES, FL_OFF)
    a("s_barrier")
    fgate("Z", W_RT, 4, 2)
    zpoll(4)
    a(f"v_lshlrev_b32 {v_t2}, {AGS}, {v_lane}")
    a(f"s_mov_b32 {s_so}, {AGG}")
    a(f"s_mov_b32 {s_tmp}, {SPIN}")
    a("s_setprio 3")
    a.label("K_AGG_POLL")
    a(f"buffer_load_dwordx2 {vk(2)}, {v_t2}, {sG(4)}, {s_so} offen {SC_POLL}")
    a("s_waitcnt vmcnt(0)")
    a(f"v_min_u32 {v_t0}, {vk}, {vk+1}")
    a(f"v_cmp_eq_u32 vcc, 0, {v_t0}")
    a("s_cbranch_vccz K_AGG_GOT")
    a(f"s_sleep {P('ASLEEP', 2)}")
    a(f"s_sub_u32 {s_tmp}, {s_tmp}, 1")
    a(f"s_cmp_lg_u32 {s_tmp}, 0")
    a("s_cbranch_scc1 K_AGG_POLL")
    a.label("K_AGG_GOT")
    wave_max_u32(a, vk, v_t1, s_k1, s_t3)
    a(f"v_cmp_ne_u32 vcc, {s_k1}, {vk}")
    a("s_nop 1")
    a(f"v_cndmask_b32 {v_t0}, {vk+1}, {vk}, vcc")
    wave_max_u32(a, v_t0, v_t1, s_k2, s_t3)
    a(f"v_mov_b32 {vk}, {s_k1}")
    a(f"v_mov_b32 {vk+1}, {s_k2}")
    a(f"s_mov_b32 {sG+2}, {YFL}")
    a(f"v_lshlrev_b32 {v_t1}, 8, {v_lane}")
    for k in range(3):
        a(f"s_mov_b32 {s_tmp}, {k*64*256}")
        a(f"buffer_store_dwordx2 {vk(2)}, {v_t1}, {sG(4)}, {s_tmp} offen offset:128 {SC_FLAG}")
    a("s_setprio 0")
    stamp(a, "agg")
    a("s_branch K_AUX_NOK")
    a.label("K_AUX_NOZ")
    a("s_barrier")
    a.label("K_AUX_NOK")
    if P("WDEF", 1):
        fgate("WD", W_K, 1, 4)
    a("s_branch K_P2")

    a.label("K_AUX_PUB")
    srd(a, sG, WS, 8192, G_OFF)
    a(f"v_and_b32 {v_t1}, 31, {v_lane}")
    a(f"v_lshlrev_b32 {v_xo}, 2, {v_t1}")
    a(f"v_add_u32 {v_c16}, {KEYS}, {v_xo}")
    a(f"s_lshl_b32 {s_so}, {s_k1}, 2")
    a(f"s_lshl_b32 {s_tmp}, s2, {AGS}")
    a(f"s_add_u32 {s_tmp}, {s_tmp}, {FL_OFF + AGG}")
    a(f"v_mov_b32 {v_row}, {s_tmp}")
    zaddr(v_t3)
    a("s_barrier")
    a("s_setprio 3")
    fgate("RT", W_RT, 4, 0)
    a(f"ds_read2_b32 {vk(2)}, {v_c16} offset0:0 offset1:32")
    zsample(v_t3)
    a("s_waitcnt lgkmcnt(0)")
    bf16r(a, vk + 1, vk + 1)
    sigmoid(a, vk + 1, vk + 1, v_t3)
    bf16r(a, vk + 1, vk + 1)
    a("s_mov_b32 exec_hi, 0")
    a(f"buffer_store_dword {vk+1}, {v_xo}, {sG(4)}, {s_so} offen {SC_ST}")
    a("s_mov_b64 exec, -1")
    wave_top2(a, vk, v_t1, s_k1, s_k2, s_t3)
    a(f"v_mov_b32 {vk}, {s_k1}")
    a(f"v_mov_b32 {vk+1}, {s_k2}")
    a("s_waitcnt vmcnt(0)")
    zpoll(3)
    a("s_mov_b64 exec, 1")
    a(f"global_store_dwordx2 {v_row}, {vk(2)}, {WS(2)} {SC_FLAG}")
    a("s_mov_b64 exec, -1")
    stamp(a, "pub")
    a(f"v_and_b32 {v_t1}, 1, {v_lane}")
    a(f"v_lshl_add_u32 {v_t1}, {v_t1}, 2, {s_mb}")
    a(f"v_lshlrev_b32 {v_xo}, 4, {v_lane}")
    a(f"s_mov_b32 {s_tmp}, {SPIN}")
    a.label("K_AUX_POLL")
    a(f"s_sleep {P('KSLEEP', 6)}")
    a(f"global_load_dword {v_t0}, {v_t1}, {WS(2)} offset:128 {SC_POLL}")
    a("s_waitcnt vmcnt(0)")
    a(f"v_cmp_eq_u32 vcc, 0, {v_t0}")
    a("s_cbranch_vccz K_AUX_GOT")
    a(f"s_sub_u32 {s_tmp}, {s_tmp}, 1")
    a(f"s_cmp_lg_u32 {s_tmp}, 0")
    a("s_cbranch_scc1 K_AUX_POLL")
    a.label("K_AUX_GOT")
    stamp(a, "polled")
    a(f"v_readlane_b32 {s_k1}, {v_t0}, 0")
    a(f"v_readlane_b32 {s_k2}, {v_t0}, 1")
    a("s_nop 3")
    for t, sk in enumerate((s_k1, s_k2)):
        a(f"s_and_b32 {sk}, {sk}, 0x7ff")
        a(f"s_sub_u32 {sk}, 2047, {sk}")
        a(f"s_mul_i32 {sk}, {sk}, 1280")
        a(f"s_mov_b32 m0, {XS + t*XSP}")
        a("s_nop 0")
        a(f"buffer_load_dwordx4 {v_xo}, {sX(4)}, {sk} offen lds")
        a("s_mov_b64 exec, 0xffff")
        a(f"buffer_load_dwordx4 {v_xo}, {sX(4)}, {sk} offen offset:1024 lds")
        a("s_mov_b64 exec, -1")
    a("s_waitcnt vmcnt(0)")
    a(f"ds_write_b32 {v_gy}, {v_one} offset:{W_K}")
    a("s_setprio 0")
    stamp(a, "xsel")
    a("s_branch K_P2")

    page()
    a.label("K_FFN_C")
    srd(a, sU, WS, YP_BYTES, YP_OFF)
    wf, xf, df = xr, xr + 80, xr
    v_g, v_wa, v_da, v_xa = V.many(4)
    a(f"v_lshrrev_b32 {v_g}, 4, {v_lane}")
    a(f"v_bfe_u32 {v_t0}, {v_lane}, 2, 2")
    a(f"v_lshl_add_u32 {v_t0}, {v_g}, 3, {v_t0}")
    a(f"v_and_b32 {v_t1}, 3, {v_lane}")
    a(f"v_lshlrev_b32 {v_t1}, 3, {v_t1}")
    a(f"v_lshl_add_u32 {v_wa}, {v_t0}, 6, {v_t1}")
    a(f"s_bfe_u32 {s_tmp}, {s_w}, 0x10001")
    a(f"s_mul_i32 {s_tmp}, {s_tmp}, 40960")
    a(f"s_and_b32 {s_so}, {s_w}, 1")
    a(f"s_lshl_b32 {s_so}, {s_so}, 5")
    a(f"s_add_u32 {s_tmp}, {s_tmp}, {s_so}")
    a(f"s_add_u32 {s_tmp}, {s_tmp}, {GA}")
    a(f"v_add_u32 {v_wa}, {s_tmp}, {v_wa}")
    a(f"v_mul_u32_u24 {v_da}, 1280, {v_t0}")
    a(f"s_and_b32 {s_tmp}, {s_w}, 3")
    a(f"s_mul_i32 {s_tmp}, {s_tmp}, 320")
    a(f"s_add_u32 {s_tmp}, {s_tmp}, {DN}")
    a(f"v_add3_u32 {v_da}, {v_da}, {v_t1}, {s_tmp}")
    pacc = V.many(2, 4)
    v_pa, v_hr, v_hs, v_hw, v_yo = V.many(5)
    a(f"v_and_b32 {v_t0}, 1, {v_lane}")
    a(f"v_mul_u32_u24 {v_xa}, {XSP}, {v_t0}")
    a(f"v_lshl_add_u32 {v_xa}, {v_g}, 4, {v_xa}")
    a(f"v_add_u32 {v_xa}, {XS}, {v_xa}")
    a(f"v_lshlrev_b32 {v_pa}, 6, {v_t0}")
    a(f"v_lshl_add_u32 {v_pa}, {v_g}, 4, {v_pa}")
    a(f"s_and_b32 {s_tmp}, {s_w}, 3")
    a(f"s_lshl_b32 {s_tmp}, {s_tmp}, 7")
    a(f"v_add_u32 {v_hr}, {s_tmp}, {v_pa}")
    a(f"v_add_u32 {v_pa}, {PRE}, {v_hr}")
    a(f"v_add_u32 {v_hr}, {HB}, {v_hr}")
    a(f"v_lshrrev_b32 {v_t0}, 5, {v_lane}")
    a(f"v_bfe_u32 {v_t1}, {v_lane}, 4, 1")
    a(f"v_lshl_add_u32 {v_t1}, {v_t1}, 1, {v_t0}")
    a(f"v_lshlrev_b32 {v_t1}, 6, {v_t1}")
    a(f"v_and_b32 {v_t2}, 15, {v_lane}")
    a(f"v_lshl_add_u32 {v_t1}, {v_t2}, 2, {v_t1}")
    a(f"v_add_u32 {v_hs}, {PRE}, {v_t1}")
    a(f"v_lshlrev_b32 {v_t2}, 1, {v_lane}")
    a(f"s_add_u32 {s_tmp}, {s_tmp}, {HB}")
    a(f"v_add_u32 {v_hw}, {s_tmp}, {v_t2}")
    a(f"v_and_b32 {v_t0}, 1, {v_lane}")
    a(f"v_mul_u32_u24 {v_t0}, 2560, {v_t0}")
    a(f"v_lshl_add_u32 {v_yo}, {v_g}, 4, {v_t0}")
    a(f"s_mul_i32 {s_tmp}, {s_j}, 5120")
    a(f"s_and_b32 {s_so}, {s_w}, 3")
    a(f"s_mul_i32 {s_so}, {s_so}, 640")
    a(f"s_add_u32 {s_so}, {s_so}, {s_tmp}")
    a(f"v_lshlrev_b32 {v_t0}, 4, {v_lane}")
    a("s_mov_b32 exec_hi, 0xff")
    a(f"buffer_store_dwordx4 {xr(4)}, {v_t0}, {sU(4)}, {s_so} offen {SC_ST}")
    a(f"buffer_store_dwordx4 {xr(4)}, {v_t0}, {sU(4)}, {s_so} offen offset:2560 {SC_ST}")
    a("s_mov_b64 exec, -1")
    warm("A", s_w, 4)
    fgate("D", W_D, 3, 2)
    a("s_setprio 3")
    for q in range(20):
        for h in range(2):
            a(f"ds_read_b64_tr_b16 {(wf+4*q+2*h)(2)}, {v_wa} offset:{q*2048 + h*256}")
    a("s_waitcnt vmcnt(0) lgkmcnt(0)")
    fadd(W_R)
    fgate("K", W_K, 1)
    stamp(a, "fgo")
    for q in range(20):
        a(f"ds_read_b128 {(xf+4*q)(4)}, {v_xa} offset:{q*64}")
        if q >= 8:
            a("s_waitcnt lgkmcnt(8)")
            a(f"{MFMA} {pacc[q&1](4)}, {(wf+4*(q-8))(4)}, {(xf+4*(q-8))(4)}, {'0' if q < 10 else pacc[q&1](4)}")
    for q in range(12, 20):
        a(f"s_waitcnt lgkmcnt({19 - q})")
        a(f"{MFMA} {pacc[q&1](4)}, {(wf+4*q)(4)}, {(xf+4*q)(4)}, {pacc[q&1](4)}")
    a(f"v_mov_b32 {v_smp}, 1")
    a("s_nop 6")
    for r in range(4):
        a(f"v_add_f32 {pacc[0]+r}, {pacc[0]+r}, {pacc[1]+r}")
    a("s_mov_b32 exec_lo, 0x00030003")
    a("s_mov_b32 exec_hi, 0x00030003")
    a(f"ds_write_b128 {v_pa}, {pacc[0](4)}")
    fadd(W_P)
    a(f"s_cmp_lg_u32 {s_w}, 6")
    a("s_cbranch_scc1 K_NOS6B")
    mb_sample(v_t2)
    a.label("K_NOS6B")
    fgate("P", W_P, 7)
    hv = V.a(4)
    stamp(a, "pre")
    a(f"ds_read_b32 {hv}, {v_hs}")
    a(f"ds_read_b32 {hv+2}, {v_hs} offset:256")
    for q in range(7):
        for h in range(2):
            a(f"ds_read_b64_tr_b16 {(df+4*q+2*h)(2)}, {v_da} offset:{q*32 + h*5120}")
    a("s_waitcnt lgkmcnt(14)")
    bf16r(a, hv, hv)
    bf16r(a, hv + 2, hv + 2)
    sigmoid(a, hv + 1, hv, hv + 1)
    a(f"v_mul_f32 {hv}, {hv}, {hv+1}")
    bf16r(a, hv, hv)
    a(f"v_mul_f32 {hv}, {hv}, {hv+2}")
    a(f"v_cvt_pk_bf16_f32 {hv}, {hv}, {hv}")
    a(f"ds_write_b16 {v_hw}, {hv}")
    a("s_waitcnt lgkmcnt(0)")
    a(f"ds_read_b128 {hv(4)}, {v_hr}")
    for q in range(7, 10):
        for h in range(2):
            a(f"ds_read_b64_tr_b16 {(df+4*q+2*h)(2)}, {v_da} offset:{q*32 + h*5120}")
    a("s_waitcnt lgkmcnt(6)")
    for q in range(10):
        if q >= 7:
            a(f"s_waitcnt lgkmcnt({2 * (9 - q)})")
        a(f"{MFMA} {(xf+4*q)(4)}, {(df+4*q)(4)}, {hv(4)}, 0")
    a("s_mov_b32 exec_lo, 0x00030003")
    a("s_mov_b32 exec_hi, 0x00030003")
    for q in range(10):
        a(f"buffer_store_dwordx4 {(xf+4*q)(4)}, {v_yo}, {sU(4)}, {s_so} offen offset:{q*64} {SC_ST}")
    a("s_mov_b64 exec, -1")
    a(f"s_lshl_b32 {s_tmp}, {s_j}, 3")
    a(f"s_add_u32 {s_tmp}, {s_tmp}, {s_w}")
    a(f"s_lshl_b32 {s_tmp}, {s_tmp}, 2")
    a(f"s_add_u32 {s_tmp}, {s_tmp}, {FL_OFF + YFL - 16}")
    a(f"v_mov_b32 {v_t0}, {s_tmp}")
    a(f"v_mov_b32 {v_t1}, 1")
    a("s_waitcnt vmcnt(0)")
    stamp(a, "ydone")
    a("s_mov_b64 exec, 1")
    a(f"global_store_dword {v_t0}, {v_t1}, {WS(2)} {SC_FLAG}")
    a("s_mov_b64 exec, -1")
    a("s_branch K_P2")
    seg_aux1 = len(a.lines)

    S.release(mS)
    V.release(mV)
    sG, sY, sOut = sW, S.a(4), S.a(4)
    s_so, s_tg, s_row0, s_c20 = S.many(4)
    s_sel = S.a(2)
    s_k1, s_k2 = S.many(2)
    s_t3 = S.a(3)
    s_rdy, s_sh0, s_sh1, s_done, s_c16 = S.many(5)
    s_q4 = ["0"] + S.many(3)
    v_g, v_fa, v_da, v_yb = V.many(4)
    vsel = V.a(4)
    mV3 = V.mark()
    W_Y = 64
    v_r, v_c, v_wo, v_go, v_n0 = V.many(5)
    v_oo = V.many(2)
    v_so = V.many(2)
    v_sa = V.many(4)
    v_sr = V.a()
    xv = [V.many(2, 4) for _ in range(2)]
    s_ob = S.many(4)
    PERM = [0, 2, 5, 7, 1, 3, 4, 6]
    va, vt = V.many(4), V.many(4)
    gv, om = V.many(2, 2), V.many(2, 2)
    bx = [V.many(4, 4) for _ in range(2)]

    def p2_common():
        a(f"s_lshl_b32 {s_row0}, {s_rt2}, 7")
        a(f"v_lshrrev_b32 {v_g}, 4, {v_lane}")
        a(f"v_mov_b32 {v_yb}, {YB}")

    def p2_gemm_setup():
        p2_common()
        srd(a, sO, WS, O_BYTES, O_OFF)
        srd(a, sG, WS, 8192, G_OFF)
        srd(a, sOut, s_po, X_BYTES)
        a(f"s_lshl_b32 {s_tg}, {s_rt2}, 3")
        a(f"s_lshl1_add_u32 {s_tg}, {s_w}, {s_tg}")
        a(f"s_mov_b32 {s_c20}, 20480")
        a(f"v_bfe_u32 {v_r}, {v_lane}, 2, 2")
        a(f"v_and_b32 {v_c}, 3, {v_lane}")
        a(f"s_mul_i32 {s_tmp}, {s_tg}, 20480")
        a(f"v_lshl_add_u32 {v_oo[0]}, {v_lane}, 4, {s_tmp}")
        a(f"v_add_u32 {v_oo[1]}, 20480, {v_oo[0]}")
        a(f"v_and_b32 {v_t0}, 15, {v_lane}")
        a(f"s_lshl_b32 {s_tmp}, {s_tg}, 6")
        a(f"v_lshl_add_u32 {v_go}, {v_t0}, 2, {s_tmp}")
        a(f"v_lshl_add_u32 {v_t0}, {v_g}, 2, {v_r}")
        a(f"v_bfe_u32 {v_t1}, {v_t0}, 1, 2")
        a(f"v_lshlrev_b32 {v_t0}, 7, {v_t0}")
        a(f"v_lshl_add_u32 {v_t0}, {v_c}, 3, {v_t0}")
        assert WO_L == 0
        a(f"v_lshl_add_u32 {v_n0}, {v_t1}, 5, {v_t0}")
        a(f"v_lshrrev_b32 {v_t1}, 1, {v_r}")
        a(f"v_mul_u32_u24 {v_t0}, 40, {v_g}")
        a(f"v_add3_u32 {v_t0}, {v_t0}, 16, {v_r}")
        a(f"v_lshlrev_b32 {v_t0}, 7, {v_t0}")
        a(f"v_lshl_add_u32 {v_t0}, {v_c}, 3, {v_t0}")
        for t in range(4):
            a(f"v_xor_b32 {v_t2}, {t}, {v_t1}")
            a(f"v_lshl_add_u32 {vt[t]}, {v_t2}, 5, {v_t0}")
        row_lanes(v_so)
        x_base(s_ob[0], s_w)
        for j in range(1, 4):
            a(f"s_add_u32 {s_ob[j]}, {s_ob[0]}, {j*10240}")
        a(f"s_lshl_b32 {s_tmp}, {s_w}, 12")
        a(f"s_add_u32 {s_tmp}, {s_tmp}, {STG}")
        a(f"v_lshl_add_u32 {v_sr}, {v_lane}, 4, {s_tmp}")
        a(f"v_and_b32 {v_t0}, 15, {v_lane}")
        a(f"v_lshrrev_b32 {v_t1}, 1, {v_t0}")
        a(f"v_lshrrev_b32 {v_t2}, 5, {v_lane}")
        a(f"v_xor_b32 {v_t1}, {v_t1}, {v_t2}")
        a(f"v_lshlrev_b32 {v_t1}, 4, {v_t1}")
        a(f"v_lshl_add_u32 {v_t1}, {v_t0}, 7, {v_t1}")
        a(f"v_and_b32 {v_t2}, 1, {v_g}")
        a(f"v_lshl_add_u32 {v_t1}, {v_t2}, 3, {v_t1}")
        a(f"v_add_u32 {v_sa[0]}, {s_tmp}, {v_t1}")
        assert STG % 128 == 0
        for t in range(1, 4):
            a(f"v_xor_b32 {v_sa[t]}, {t*32}, {v_sa[0]}")
        a(f"s_lshl_b32 {s_tmp}, {s_rt2}, 3")
        a(f"s_mul_i32 {s_t2}, {s_tmp}, 187")
        a(f"s_lshr_b32 {s_t2}, {s_t2}, 11")
        a(f"s_add_u32 {s_t2}, {s_t2}, 1")
        a(f"s_mul_i32 {s_t2}, {s_t2}, 11")
        a(f"s_cmp_ge_u32 {s_tg}, {s_t2}")
        a(f"s_cselect_b32 {s_sh0}, 16, 0")
        a(f"s_add_u32 {s_tmp}, {s_tg}, 1")
        a(f"s_cmp_ge_u32 {s_tmp}, {s_t2}")
        a(f"s_cselect_b32 {s_sh1}, 16, 0")
        a(f"s_mov_b32 {s_rdy}, 0")
        a(f"s_mov_b32 {s_done}, 0")
        a(f"s_mov_b32 {s_c16}, 16384")
        if not P("DYN", 1):
            for u in range(1, 4):
                a(f"s_mov_b32 {s_q4[u]}, {u*4096}")

    def x_unpack():
        for m in range(2):
            for t in range(4):
                a(f"ds_read_b64 {(xv[m][t>>1]+2*(t&1))(2)}, {v_sa[t]} offset:{m*2048}")
        for m in range(2):
            a(f"s_waitcnt lgkmcnt({4 - 4*m})")
            for p_ in range(2):
                x_ = xv[m][p_]
                for i in range(4):
                    d = bx[m][2*p_ + (i >> 1)] + 2 * (i & 1)
                    a(f"v_lshlrev_b32 {d}, 16, {x_+i}")
                    a(f"v_and_b32 {d+1}, 0xffff0000, {x_+i}")

    def lgate(name, off, val, sleep=0, o=None):
        o = o or a
        o(f"s_mov_b32 {s_tmp}, {SPIN*8}")
        o.label(f"K_P2_G{name}")
        o(f"ds_read_b32 {v_t0}, {v_yb} offset:{off}")
        if sleep:
            o(f"s_sleep {sleep}")
        o(f"s_sub_u32 {s_tmp}, {s_tmp}, 1")
        o("s_waitcnt lgkmcnt(0)")
        o(f"v_readfirstlane_b32 {s_t2}, {v_t0}")
        o("s_nop 3")
        o(f"s_cselect_b32 {s_t2}, {val}, {s_t2}")
        o(f"s_cmp_lt_u32 {s_t2}, {val}")
        o(f"s_cbranch_scc1 K_P2_G{name}")

    wpoint("early")
    a.label("K_P2_EARLY")
    p2_gemm_setup()
    arrive("D", 1)
    stamp(a, "drained")
    lgate("E", W_DR, 0x400)
    a.label("K_P2_GEMM")
    x_unpack()
    a(f"s_setprio {P('GPRIO', 2)}")
    stamp(a, "p2in")
    NB = P("P2NB", 3)
    RO = P("P2RO", 6)
    OA = P("P2OA", 5)
    assert NB <= OA <= RO
    assert RO > OA
    DYN = P("DYN", 1)
    s_of = S.many(OA - NB + 2)
    of = [V.many(2, 4) for _ in range(RO)]
    acc = [V.many(4, 4) for _ in range(2)]
    fb = [V.many(4, 4) for _ in range(NB)]
    TAIL = {8: 0, 9: 1, 18: 2, 19: 3}
    SPOS = [0, 4, 1, 5, 2, 6, 3, 7]
    spin = Asm()
    wpoint("spin", asm=spin, align=True)
    VQ, LQ = [], []

    def fetch(r_):
        r_(f"ds_read_b32 {v_t0}, {v_yb} offset:32")
        r_("s_waitcnt lgkmcnt(0)")
        r_(f"v_readfirstlane_b32 {s_t2}, {v_t0}")
        r_("s_nop 3")
        r_(f"s_lshr_b32 {s_rdy}, {s_t2}, {s_sh0}")
        r_(f"s_lshr_b32 {s_t2}, {s_t2}, {s_sh1}")
        r_(f"s_and_b32 {s_rdy}, {s_rdy}, {s_t2}")

    def oload(s):
        L = []
        so, off = s_of[s % len(s_of)], 0
        if s in TAIL:
            so, off = s_c16, TAIL[s] * 1024
        elif DYN:
            L += [f"s_cmp_eq_u32 {s_rdy}, 0", f"s_cbranch_scc1 K_SP{s}\nK_SPR{s}:", f"s_ff1_i32_b32 {s_t2}, {s_rdy}",
                  f"s_bitset0_b32 {s_rdy}, {s_t2}", f"s_lshl_b32 {so}, {s_t2}, 10"]
            spin.label(f"K_SP{s}")
            fetch(spin)
            spin(f"s_and_b32 {s_rdy}, {s_rdy}, 0x{0xff00 if s > 9 else 0xff:x}")
            spin(f"s_andn2_b32 {s_rdy}, {s_rdy}, {s_done}")
            spin(f"s_cbranch_scc0 K_SP{s}")
            spin(f"s_or_b32 {s_done}, {s_done}, {s_rdy}")
            spin(f"s_branch K_SPR{s}")
        else:
            ps = SPOS[s % 10] + (8 if s > 9 else 0)
            so, off = (s_q4[ps >> 2], (ps & 3) * 1024)
            L += [f"s_bitcmp0_b32 {s_rdy}, {ps}", f"s_cbranch_scc1 K_SP{s}\nK_SPR{s}:"]
            spin.label(f"K_SP{s}")
            fetch(spin)
            spin(f"s_bitcmp0_b32 {s_rdy}, {ps}")
            spin(f"s_cbranch_scc1 K_SP{s}")
            spin(f"s_branch K_SPR{s}")
        L = [(None, None, l) for l in L]
        for m in range(2):
            L.append(("v", s, f"buffer_load_dwordx4 {of[s % RO][m](4)}, {v_oo[m]}, {sO(4)}, {so} offen offset:{off} {SC_LD}"))
        return L

    def read_list(s):
        b = s % NB
        L = []
        if s in TAIL:
            n_, off = vt, TAIL[s] * 20480
        elif DYN:
            n_, off = va, 0
            L.append((None, None, f"v_mad_u32_u24 {va[0]}, {s_of[s % len(s_of)]}, 5, {v_n0}"))
            L += [(None, None, f"v_xor_b32 {va[t]}, {t*32}, {va[0]}") for t in (2, 1, 3)]
        else:
            n_, off = va, SPOS[s % 10] * 5120
            if s == 10:
                L += [(None, None, f"v_add_u32 {va[t]}, 40960, {va[t]}") for t in range(4)]
        for t in range(4):
            L.append(("l", s, f"ds_read_b64_tr_b16 {fb[b][t](2)}, {n_[t]} offset:{off}"))
            L.append(("l", s, f"ds_read_b64_tr_b16 {(fb[b][t]+2)(2)}, {n_[t^2]} offset:{off + 2560}"))
        return L

    def emit(tl):
        for kind, tag, l in tl:
            for x_ in l.split("\n"):
                if x_.endswith(":"):
                    a.label(x_[:-1])
                else:
                    a(x_)
            if kind:
                (VQ if kind == "v" else LQ).append(tag)

    def wait_step(tag):
        w = []
        for q, nm, cap in ((VQ, "vmcnt", 63), (LQ, "lgkmcnt", 15)):
            idx = [i for i, t in enumerate(q) if t == tag]
            if idx:
                n = min(len(q) - 1 - idx[-1], cap)
                w.append(f"{nm}({n})")
                del q[:len(q) - n]
        a("s_waitcnt " + " ".join(w))

    EP = []
    for m in range(2):
        EP += [f"v_sub_f32 {om[m]}, 1.0, {gv[m]}", f"v_cvt_pk_bf16_f32 {om[m]}, {om[m]}, {om[m]}", f"v_lshlrev_b32 {om[m]}, 16, {om[m]}"]
    for m in range(2):
        for t in range(4):
            for h in range(2):
                d = bx[m][t] + 2 * h
                EP.append(f"v_pk_mul_f32 {d(2)}, {d(2)}, {om[m](2)} op_sel_hi:[1,0]")
    if not DYN:
        for t in range(4):
            a(f"v_xor_b32 {va[t]}, {t*32}, {v_n0}")
        for s in range(NB - 1):
            emit(read_list(s))
    if P("ALLW", 0):
        lgate("ALL", 32, -1)
        a("s_sleep 32")
    for s in range(OA):
        emit(oload(s))
        if s == 0:
            stamp(a, "p2goA")
        if s < NB - 1 and DYN:
            emit(read_list(s))
    wpoint("p2g", skip=True, align=True)
    XS = P("P2XS", 3)
    YS = P("P2YS", 16)
    rare = Asm()
    for s in range(20):
        if s == 10:
            stamp(a, "p2s10")
        if s == XS:
            lgate("S", 40, 1)
            for m in range(2):
                a(f"buffer_load_dword {gv[m]}, {v_go}, {sG(4)}, 0 offen offset:{64*m} {SC_LD}")
            a(f"ds_read_b128 {vsel(4)}, {v_yb}")
            VQ.extend(["x"] * 2)
            del LQ[:]
            LQ.append("sel")
        if s - 1 + NB == 10:
            lgate("W", 44, 4)
            del LQ[:]
            assert s > XS
            for k in range(2):
                a(f"v_readfirstlane_b32 {s_sel+k}, {vsel+k}")
            a(f"s_lshl_b32 {s_k1}, {s_tg}, 4")
            stamp(a, "p2w2")
        if s == YS:
            for t in range(2):
                a(f"s_sub_u32 {s_k2}, {s_sel+t}, {s_k1}")
                a(f"s_cmp_lt_u32 {s_k2}, 32")
                a(f"s_cbranch_scc1 K_YROW{t}")
                a.label(f"K_NOY{t}")
                r_ = rare
                wpoint(f"yr{t}", asm=r_)
                r_.label(f"K_YROW{t}")
                lgate(f"Y{t}", W_Y + 4 * t, 1, o=r_)
                r_(f"v_lshlrev_b32 {v_t3}, 4, {v_g}")
                r_(f"v_add_u32 {v_t3}, {YB + 256 + t*256}, {v_t3}")
                for tt in range(4):
                    r_(f"ds_read_b128 {xv[tt >> 1][tt & 1](4)}, {v_t3} offset:{tt*64}")
                r_(f"v_and_b32 {v_t1}, 15, {v_lane}")
                r_(f"s_and_b32 {s_t2}, {s_k2}, 15")
                r_(f"v_cmp_eq_u32 vcc, {s_t2}, {v_t1}")
                r_(f"s_cmp_ge_u32 {s_k2}, 16")
                r_("s_waitcnt lgkmcnt(0)")
                r_("s_mov_b64 exec, vcc")
                r_(f"s_cbranch_scc1 K_YR1_{t}")
                for m in range(2):
                    if m:
                        r_.label(f"K_YR1_{t}")
                    for tt in range(4):
                        for h in range(2):
                            d, y_ = bx[m][tt] + 2 * h, xv[tt >> 1][tt & 1] + 2 * h
                            r_(f"v_pk_add_f32 {d(2)}, {d(2)}, {y_(2)}")
                            r_(f"v_cvt_pk_bf16_f32 {d+1}, {d}, {d+1}")
                            r_(f"v_lshlrev_b32 {d}, 16, {d+1}")
                            r_(f"v_and_b32 {d+1}, 0xffff0000, {d+1}")
                    r_("s_mov_b64 exec, -1")
                    r_(f"s_branch K_NOY{t}")
        if s == 18:
            break
        wait_step(s)
        F = (read_list(s - 1 + NB) if s - 1 + NB < 20 else []) + (oload(s + OA) if s + OA < 20 else [])
        if s >= YS:
            assert "x" not in VQ
            while len(F) < 16 and EP:
                F.append((None, None, EP.pop(0)))
        nf = len(F)
        for i in range(8):
            t, m = i >> 1, i & 1
            a(f"{MFMA} {acc[m][t](4)}, {fb[s % NB][t](4)}, {of[s % RO][m](4)}, {'0' if s == 0 else acc[m][t](4)}")
            k = max(2, (len(F) + 7 - i) // (8 - i))
            emit(F[:k])
            F = F[k:]
        assert not F
        if s + OA == 17:
            stamp(a, "p2go")
    e = Asm()
    OSC = os.environ.get("OUT_SC", "sc1")
    RA_ = P("RNDA", 0)

    def epi(m):
        L = []
        for t in range(4):
            c_, b_, q = acc[m][t], bx[m][t], xv[m][t >> 1] + 2 * (t & 1)
            for h in range(2):
                if RA_:
                    L.append(f"v_cvt_pk_bf16_f32 {c_+2*h+1}, {c_+2*h}, {c_+2*h+1}")
                    L.append(f"v_lshlrev_b32 {c_+2*h}, 16, {c_+2*h+1}")
                    L.append(f"v_and_b32 {c_+2*h+1}, 0xffff0000, {c_+2*h+1}")
                L.append(f"v_pk_fma_f32 {(c_+2*h)(2)}, {(c_+2*h)(2)}, {gv[m](2)}, {(b_+2*h)(2)} op_sel_hi:[1,0,1]")
            for h in range(2):
                L.append(f"v_cvt_pk_bf16_f32 {q+h}, {c_+2*h}, {c_+2*h+1}")
            L.append(f"ds_write_b64 {v_sa[t]}, {q(2)} offset:{m*2048}")
        for j in range(2):
            L.append(f"ds_read_b128 {bx[m][j](4)}, {v_sr} offset:{m*2048 + j*1024}")
        return L

    def mf(s, m, t):
        return f"{MFMA} {acc[m][t](4)}, {fb[s % NB][t](4)}, {of[s % RO][m](4)}, {acc[m][t](4)}"

    def st_(m, j):
        return f"buffer_store_dwordx4 {bx[m][j](4)}, {v_so[j]}, {sOut(4)}, {s_ob[2*m+j]} offen {OSC}"

    wait_step(18)
    for t in range(4):
        a(mf(18, 0, t))
        for _ in range(2):
            if EP:
                a(EP.pop(0))
    assert not EP
    wait_step(19)
    stamp(a, "p2mm")
    for t in range(4):
        e(mf(19, 0, t))
    E0 = epi(0)
    for i, (s, t) in enumerate([(s, t) for s in (18, 19) for t in range(4)]):
        e(mf(s, 1, t))
        if i >= 2:
            for _ in range(P("EPK", 3)):
                if E0:
                    e(E0.pop(0))
    for l in E0:
        e(l)
    E1 = epi(1)
    k = len(E1) // 2
    n1 = sum(1 for l in E1[:k] if l.startswith("ds_"))
    for l in E1[:k]:
        e(l)
    e(f"s_waitcnt lgkmcnt({n1})")
    e(st_(0, 0))
    e(st_(0, 1))
    for l in E1[k:]:
        e(l)
    e("s_waitcnt lgkmcnt(1)")
    e(st_(1, 0))
    e("s_waitcnt lgkmcnt(0)")
    e(st_(1, 1))
    rep = []
    a.lines += hz.fix(e.lines, rep)
    print("epilogue: %d wait states added" % rep[0])
    a.label("K_END")
    stamp_flush(a, 0, WS, "K_STX")
    a.label("K_EXIT")
    a("s_endpgm")

    seg_h0 = len(a.lines)
    wpoint("gen", align=True)
    a.label("K_P2")
    a(f"s_cmp_ge_u32 {s_w}, 4")
    a("s_cbranch_scc1 K_P2_HELP")
    p2_gemm_setup()
    a(f"s_cmp_eq_u32 {s_w}, 0")
    a("s_cbranch_scc1 K_P2_AUXW")
    wo_voff(v_wo)
    HT = sum((8 * ((p_ >> 2) & 1) + PERM[4 * (p_ >> 3) + (p_ & 3)]) << (4 * p_) for p_ in range(16))
    a(f"s_mov_b32 {s_t3}, 0x{HT & 0xffffffff:x}")
    a(f"s_mov_b32 {s_t3+1}, 0x{HT >> 32:x}")
    a(f"s_sub_u32 {s_k1}, {s_w}, 1")
    a.label("K_P2_WS")
    a(f"s_lshl_b32 {s_tmp}, {s_k1}, 2")
    a(f"s_lshr_b64 {s_px(2)}, {s_t3(2)}, {s_tmp}")
    a(f"s_and_b32 {s_px}, {s_px}, 15")
    a(f"s_mul_i32 {s_px}, {s_px}, 51200")
    a(f"s_mul_i32 {s_k2}, {s_k1}, 5120")
    for r in range(5):
        a(f"s_add_u32 {s_so}, {s_px}, {r*10240}")
        a(f"s_add_u32 m0, {s_k2}, {WO_L + r*1024}")
        a(f"s_waitcnt vmcnt({P('THR', 12)-1})")
        a(f"buffer_load_dwordx4 {v_wo}, {sWO(4)}, {s_so} offen lds")
    a(f"s_cmp_ge_u32 {s_k1}, 3")
    a("s_cbranch_scc1 K_P2_WS1")
    a(f"v_mov_b32 {v_t1}, 1")
    a("s_waitcnt vmcnt(5)")
    a("s_mov_b64 exec, 1")
    a(f"ds_add_u32 {v_yb}, {v_t1} offset:52")
    a("s_mov_b64 exec, -1")
    a.label("K_P2_WS1")
    a(f"s_add_u32 {s_k1}, {s_k1}, 3")
    a(f"s_cmp_lt_u32 {s_k1}, 16")
    a("s_cbranch_scc1 K_P2_WS")
    a.label("K_P2_AUXW")
    x_dma(v_so, s_ob[0], s_w)
    a(f"v_mov_b32 {v_t1}, 1")
    a("s_waitcnt vmcnt(0)")
    a("s_mov_b64 exec, 1")
    a(f"ds_add_u32 {v_yb}, {v_t1} offset:44")
    a("s_mov_b64 exec, -1")
    lgate("WA", 44, 4)
    a("s_branch K_P2_GEMM")
    V.release(mV3)
    wpoint("help")
    a.label("K_P2_HELP")
    a(f"s_setprio {P('HPRIO', 3)}")
    a(f"s_lshl_b32 {s_tg}, {s_rt2}, 3")
    a(f"s_mul_i32 {s_k1}, {s_tg}, 187")
    a(f"s_lshr_b32 {s_k1}, {s_k1}, 11")
    a(f"s_add_u32 {s_tmp}, {s_tg}, 7")
    a(f"s_mul_i32 {s_k2}, {s_tmp}, 187")
    a(f"s_lshr_b32 {s_k2}, {s_k2}, 11")
    a(f"s_sub_u32 {s_k2}, {s_k2}, {s_k1}")
    a(f"s_lshl_b32 {s_k2}, {s_k2}, 4")
    a(f"s_or_b32 {s_k2}, {s_k2}, 15")
    a(f"v_and_b32 {v_fa}, {s_k2}, {v_lane}")
    a(f"v_lshl_add_u32 {v_fa}, {v_fa}, 2, {s_mb}")
    a(f"s_cmp_lg_u32 {s_w}, 7")
    a("s_cbranch_scc1 K_P2_N7")
    zpoll(1)
    a(f"global_load_dword {v_smp}, {v_fa}, {WS(2)} {SC_POLL}")
    a.label("K_P2_N7")
    p2_common()
    srd(a, sY, WS, YP_BYTES, YP_OFF)
    vs = V.a(4)
    yq = V.many(14, 4)
    v_one = V.a()
    a(f"v_mov_b32 {v_one}, 1")
    a(f"s_cmp_eq_u32 {s_w}, 7")
    a("s_cbranch_scc1 K_P2_FLAGS")
    a(f"s_cmp_lg_u32 {s_w}, 6")
    a("s_cbranch_scc1 K_P2_HW")
    a(f"s_mov_b32 {s_tmp}, {SPIN}")
    a.label("K_P2_DPOLL")
    a(f"v_cmp_eq_u32 vcc, 0, {v_smp}")
    a("s_cbranch_vccz K_P2_DOK")
    a(f"s_cmp_eq_u32 {s_tmp}, {SPIN}")
    a("s_cbranch_scc1 K_P2_DNS")
    a(f"s_sleep {P('DSLEEP', 12)}")
    a.label("K_P2_DNS")
    mb_sample(v_da)
    a(f"s_sub_u32 {s_tmp}, {s_tmp}, 1")
    a("s_waitcnt vmcnt(0)")
    a(f"s_cmp_lg_u32 {s_tmp}, 0")
    a("s_cbranch_scc1 K_P2_DPOLL")
    a.label("K_P2_DOK")
    a(f"v_readlane_b32 {s_k1}, {v_smp}, 0")
    a(f"v_readlane_b32 {s_k2}, {v_smp}, 1")
    a("s_nop 3")
    for t, sk in enumerate((s_k1, s_k2)):
        a(f"s_and_b32 {s_tmp}, {sk}, 0x7ff")
        a(f"s_sub_u32 {s_tmp}, 2047, {s_tmp}")
        a(f"v_mov_b32 {vs+t}, {s_tmp}")
        a(f"v_mov_b32 {v_t2}, {sk}")
        a(f"v_and_b32 {v_t2}, 0xffff0000, {v_t2}")
        a(f"v_ashrrev_i32 {v_t3}, 31, {v_t2}")
        a(f"v_not_b32 {v_t3}, {v_t3}")
        a(f"v_or_b32 {v_t3}, 0x80000000, {v_t3}")
        a(f"v_xor_b32 {v_t2}, {v_t2}, {v_t3}")
        a(f"v_and_b32 {v_t2}, 0xffff0000, {v_t2}")
        sigmoid(a, v_t2, v_t2, v_t3)
        bf16r(a, vs + 2 + t, v_t2)
    a(f"ds_write_b128 {v_yb}, {vs(4)}")
    a(f"ds_write_b32 {v_yb}, {v_one} offset:40")
    a("s_branch K_END")
    a.label("K_P2_HW")
    lgate("S2", 40, 1, 1)
    a(f"ds_read_b128 {vsel(4)}, {v_yb}")
    a("s_waitcnt lgkmcnt(0)")
    a(f"s_cmp_eq_u32 {s_w}, 4")
    a("s_cselect_b64 vcc, -1, 0")
    a("s_nop 1")
    a(f"v_cndmask_b32 {v_t0}, {vsel+1}, {vsel}, vcc")
    a(f"v_cndmask_b32 {v_t3}, {vsel+3}, {vsel+2}, vcc")
    a("s_nop 0")
    a(f"v_readfirstlane_b32 {s_k1}, {v_t0}")
    a("s_nop 3")
    a(f"s_sub_u32 {s_tmp}, {s_k1}, {s_row0}")
    a(f"s_cmp_lt_u32 {s_tmp}, 128")
    a("s_cbranch_scc0 K_END")
    for t in range(2):
        a(f"s_call_b64 {s_pc(2)}, WP_yr{t}")
    a(f"v_min_u32 {v_t1}, {NSL-1}, {v_lane}")
    a(f"v_lshlrev_b32 {v_t1}, 5, {v_t1}")
    a(f"v_add_u32 {v_t1}, {FL_OFF + YFL}, {v_t1}")
    lgate("Y", 32, P("YG", 0x01000000), 1)
    a(f"s_mov_b32 {s_tmp}, {SPIN}")
    a.label("K_P2_YPOLL")
    a(f"global_load_dwordx4 {vs(4)}, {v_t1}, {WS(2)} {SC_POLL}")
    a(f"s_sub_u32 {s_tmp}, {s_tmp}, 1")
    a("s_waitcnt vmcnt(0)")
    a(f"v_and_b32 {v_t0}, {vs}, {vs+1}")
    a(f"v_and_b32 {v_t0}, {v_t0}, {vs+2}")
    a(f"v_and_b32 {v_t0}, {v_t0}, {vs+3}")
    a(f"v_cmp_ne_u32 vcc, 1, {v_t0}")
    a("s_cbranch_vccz K_P2_YGO")
    a(f"s_sleep {P('YSLEEP', 8)}")
    a(f"s_cmp_lg_u32 {s_tmp}, 0")
    a("s_cbranch_scc1 K_P2_YPOLL")
    a.label("K_P2_YGO")
    a(f"v_and_b32 {v_t0}, 15, {v_lane}")
    a(f"v_lshlrev_b32 {v_t0}, 4, {v_t0}")
    a(f"v_mul_u32_u24 {v_t2}, 5120, {v_g}")
    a(f"s_sub_u32 {s_k2}, {s_w}, 4")
    a(f"s_mul_i32 {s_t2}, {s_k2}, 2560")
    a(f"s_lshl_b32 {s_tmp}, {s_ct}, 8")
    a(f"s_add_u32 {s_tmp}, {s_tmp}, {s_t2}")
    a(f"v_add3_u32 {v_t1}, {v_t0}, {v_t2}, {s_tmp}")
    NQ = (NSL + 3) // 4
    for q in range(NQ):
        a(f"s_mov_b32 {s_so}, {q*20480}")
        a(f"buffer_load_dwordx4 {yq[q](4)}, {v_t1}, {sY(4)}, {s_so} offen {SC_LD}")
    for q in range(1, NQ):
        a(f"s_waitcnt vmcnt({NQ-1-q})")
        for e in range(4):
            a(f"v_add_f32 {vs+e}, {(vs if q > 1 else yq[0])+e}, {yq[q]+e}")
    for swap in ("v_permlane16_swap_b32", "v_permlane32_swap_b32"):
        for e in range(4):
            a(f"v_mov_b32 {yq[0]+e}, {vs+e}")
        a("s_nop 0")
        for e in range(4):
            a(f"{swap} {vs+e}, {yq[0]+e}")
        for e in range(4):
            a(f"v_add_f32 {vs+e}, {vs+e}, {yq[0]+e}")
    for e in range(4):
        bf16r(a, vs + e, vs + e)
        a(f"v_mul_f32 {vs+e}, {v_t3}, {vs+e}")
        bf16r(a, vs + e, vs + e)
    a(f"s_lshl_b32 {s_tmp}, {s_k2}, 8")
    a(f"s_add_u32 {s_tmp}, {s_tmp}, {YB + 256}")
    a(f"v_add_u32 {v_t0}, {s_tmp}, {v_t0}")
    a(f"ds_write_b128 {v_t0}, {vs(4)}")
    a(f"s_lshl_b32 {s_tmp}, {s_k2}, 2")
    a(f"v_add_u32 {v_t0}, {s_tmp}, {v_yb}")
    a(f"ds_write_b32 {v_t0}, {v_one} offset:{W_Y}")
    a("s_branch K_END")
    wpoint("flags")
    a.label("K_P2_FLAGS")
    a("s_mov_b32 exec_hi, 0")
    a("s_waitcnt vmcnt(0)")
    stamp(a, "f1")
    a(f"s_mov_b32 {s_tmp}, {SPIN}")
    a.label("K_P2_FCHK")
    a(f"v_cmp_eq_u32 vcc, 1, {v_smp}")
    a("s_nop 1")
    a(f"v_mov_b32 {v_t0}, vcc_lo")
    a(f"ds_write_b32 {v_yb}, {v_t0} offset:32")
    a("s_cmp_eq_u32 vcc_lo, -1")
    a("s_cbranch_scc1 K_P2_FGO")
    a("s_cmp_lg_u32 vcc_lo, 0")
    a("s_cbranch_scc1 K_P2_FS")
    a(f"s_sleep {P('FSLEEP0', 4)}")
    a.label("K_P2_FS")
    a(f"s_sleep {P('FSLEEP', 6)}")
    a(f"global_load_dword {v_smp}, {v_fa}, {WS(2)} {SC_POLL}")
    a(f"s_sub_u32 {s_tmp}, {s_tmp}, 1")
    a("s_waitcnt vmcnt(0)")
    a("s_cbranch_scc0 K_P2_FCHK")
    a(f"v_mov_b32 {v_t0}, -1")
    a(f"ds_write_b32 {v_yb}, {v_t0} offset:32")
    a.label("K_P2_FGO")
    stamp(a, "fall")
    a("s_mov_b64 exec, -1")
    a("s_branch K_END")
    seg_h1 = len(a.lines)
    L = a.lines
    a.lines = L[:seg_aux0] + L[seg_aux1:seg_h0] + spin.lines + rare.lines + L[seg_h0:seg_h1] + L[seg_aux0:seg_aux1]
    a.label("K_CODE_END")
    return V.high, S.high


def kd(name, vg, sg):
    vg = (vg + 7) // 8 * 8
    return """.amdhsa_kernel %s
  .amdhsa_next_free_vgpr %d
  .amdhsa_next_free_sgpr %d
  .amdhsa_accum_offset %d
  .amdhsa_group_segment_fixed_size 0
  .amdhsa_kernarg_size 96
  .amdhsa_user_sgpr_count 2
  .amdhsa_user_sgpr_kernarg_segment_ptr 1
  .amdhsa_system_sgpr_workgroup_id_x 1
.end_amdhsa_kernel""" % (name, vg, 100 if STAMP else max(sg, 16), vg)


def main():
    a = Asm()
    for l in HEADER:
        a.raw(l)
    a.raw("; @launch grid=(256,1,1) block=(512,1,1) lds=%d" % LDS_BYTES)
    a.raw('.amdgcn_target "amdgcn-amd-amdhsa--gfx950"')
    a.raw(".text")
    v1, s1 = gen(a)
    a.raw('.section .rodata,"a"')
    a.raw(".p2align 6")
    a.raw(kd(KNAME, v1, s1))
    out = sys.argv[1] if len(sys.argv) > 1 else os.path.join(os.path.dirname(os.path.abspath(__file__)), "..", NAME + ".s")
    open(out, "w").write(a.text())
    print("wrote", out, "v%d s%d" % (v1, s1))


if __name__ == "__main__":
    main()
```

```python
import os
import struct
import sys

sys.path.insert(0, os.path.dirname(os.path.abspath(__file__)))
from asmdsl import Asm, RegAlloc, LgkmQueue, vr, sr

NAME = "gated_mix__sliding_local_dilated__moe_arch_mod__prompt"
STAMP = int(os.environ.get("STAMP", "0"))
EXTRA_EMPTY = int(os.environ.get("EXTRA_EMPTY", "0"))


def P(name, default):
    return int(os.environ.get(name, str(default)))


O_OFF = 0x100000
O_BYTES = 128 * 20480
G_OFF = 0x1000
SEL_OFF = 0x0
YP_OFF = 0x10000
NSL = 54
YP_BYTES = NSL * 2 * 640 * 4
STAMP_OFF = 0x400000

X_BYTES = 2048 * 1280
NEG = 0xF149F2CA
LOG2E = 0x3FB8AA3B


def f32bits(x):
    return struct.unpack("<I", struct.pack("<f", x))[0]


SCALE_L2E = f32bits((20 ** -0.5) * 1.4426950408889634)

HEADER = open(os.path.join(os.path.dirname(os.path.abspath(__file__)), "..", NAME + ".s.ref")).read().split("\n")
HEADER = [l for l in HEADER if l.startswith(";") and "@launch" not in l]


class R:
    def __init__(self, p, i):
        self.p, self.i = p, i

    def __str__(self):
        return "%s%d" % (self.p, self.i)

    def __format__(self, spec):
        return str(self)

    def __call__(self, n):
        return "%s[%d:%d]" % (self.p, self.i, self.i + n - 1)

    def __add__(self, k):
        return R(self.p, self.i + k)

    def __sub__(self, k):
        return R(self.p, self.i - k)


class RA(RegAlloc):
    def a(self, n=1, align=None):
        return R(self.prefix, self.alloc(n, align))

    def many(self, k, n=1):
        return [self.a(n) for _ in range(k)]


def srd(a, d, base, nbytes, add=0):
    if add:
        a(f"s_add_u32 {d}, {base}, 0x{add:x}")
        a(f"s_addc_u32 {d+1}, {base+1}, 0")
    else:
        a(f"s_mov_b32 {d}, {base}")
        a(f"s_mov_b32 {d+1}, {base+1}")
    a(f"s_mov_b32 {d+2}, 0x{nbytes:x}")
    a(f"s_mov_b32 {d+3}, 0x20000")


STB = 84
STAMP_SEL = os.environ.get("STAMPS", "").split(",")


def stamp(a, name):
    if not STAMP:
        return
    if isinstance(name, int):
        a("s_memrealtime %s" % sr(STB + 2 * name, 2))
    elif name in STAMP_SEL:
        a("s_memrealtime %s" % sr(STB + 2 * (1 + STAMP_SEL.index(name)), 2))
    if not isinstance(name, int) and ("T" + name) in STAMP_SEL:
        a("s_memtime %s" % sr(STB + 2 * (1 + STAMP_SEL.index("T" + name)), 2))


def stamp_init(a):
    if STAMP:
        for i in range(8):
            a("s_mov_b64 %s, 0" % sr(STB + 2 * i, 2))
        stamp(a, 0)


def stamp_flush(a, kidx, s_ws, lbl):
    if not STAMP:
        return
    stamp(a, "fin")
    if P("ENDW", 1):
        a("s_waitcnt vmcnt(0)")
    stamp(a, 7)
    if P("AMP", 0):
        k = P("AMPK", 7)
        a("s_waitcnt lgkmcnt(0)")
        if P("AMPC", 0):
            a("s_cmp_lt_u32 s2, 64")
            a("s_cbranch_scc%d %s" % (0 if P("AMPC", 0) == 2 else 1, lbl))
            if P("AMPC", 0) >= 3:
                a("s_bitcmp1_b32 s2, 5")
                a("s_cbranch_scc%d %s" % (1 if P("AMPC", 0) == 3 else 0, lbl))
        a("s_cmp_eq_u32 %s, 0" % sr(STB + 2 * k))
        a("s_cbranch_scc1 %s" % lbl)
        a("s_sub_u32 s82, %s, %s" % (sr(STB + 2 * k), sr(STB)))
        a("s_mul_i32 s82, s82, %d" % P("AMP", 0))
        a("s_min_u32 s82, s82, 20000")
        a.label("K_AMP")
        a("s_memrealtime %s" % sr(STB + 2, 2))
        a("s_waitcnt lgkmcnt(0)")
        a("s_sub_u32 s83, %s, %s" % (sr(STB + 2), sr(STB)))
        a("s_cmp_lt_u32 s83, s82")
        a("s_cbranch_scc1 K_AMP")
        a.label(lbl)
        return
    a("s_mov_b64 exec, -1")
    a("v_cmp_eq_u32 vcc, %d, v0" % (64 * P("STAMP_WAVE", 0)))
    a("s_and_saveexec_b64 s[82:83], vcc")
    a("s_cbranch_execz %s" % lbl)
    a("s_waitcnt lgkmcnt(0)")
    if P("DBGSTAMP", 0):
        a("v_mov_b32 v1, 0")
        for i in range(8):
            a("v_mov_b32 v2, %s" % sr(STB + 2 * i))
            a(f"global_atomic_umax v1, v2, {(s_ws+(-2))(2)} offset:{i*4 - 128}")
        a("v_not_b32 v2, %s" % sr(STB))
        a(f"global_atomic_umax v1, v2, {(s_ws+(-2))(2)} offset:{32 - 128}")
        a.label(lbl)
        return
    a("s_lshl_b32 s82, s2, 6")
    a("s_add_u32 s82, s82, 0x%x" % (STAMP_OFF + kidx * 256 * 64))
    a("v_mov_b32 v1, s82")
    for i in range(8):
        a("v_mov_b32 v2, %s" % sr(STB + 2 * i))
        a("v_mov_b32 v3, %s" % sr(STB + 2 * i + 1))
        a(f"global_store_dwordx2 v1, v[2:3], {s_ws(2)} offset:{i*8}")
    a.label(lbl)


def wave_max_u32(a, v, t, sdst, stmp):
    src = v
    for dpp in ("quad_perm:[1,0,3,2]", "quad_perm:[2,3,0,1]", "row_half_mirror", "row_mirror"):
        a("s_nop 1")
        a(f"v_max_u32_dpp {t}, {src}, {src} {dpp} row_mask:0xf bank_mask:0xf")
        src = t
    a("s_nop 1")
    a(f"v_readlane_b32 {sdst}, {t}, 0")
    a(f"v_readlane_b32 {stmp}, {t}, 16")
    a(f"v_readlane_b32 {stmp+1}, {t}, 32")
    a(f"v_readlane_b32 {stmp+2}, {t}, 48")
    a("s_nop 3")
    a(f"s_max_u32 {sdst}, {sdst}, {stmp}")
    a(f"s_max_u32 {stmp+1}, {stmp+1}, {stmp+2}")
    a(f"s_max_u32 {sdst}, {sdst}, {stmp+1}")


def wave_top2(a, v, t, sk1, sk2, stmp):
    wave_max_u32(a, v, t, sk1, stmp)
    a(f"v_cmp_ne_u32 vcc, {sk1}, {v}")
    a("s_nop 1")
    a(f"v_cndmask_b32 {v}, 0, {v}, vcc")
    wave_max_u32(a, v, t, sk2, stmp)


def bf16r(a, d, s):
    a(f"v_cvt_pk_bf16_f32 {d}, {s}, {s}")
    a(f"v_lshlrev_b32 {d}, 16, {d}")


def sigmoid(a, d, s, t):
    a(f"v_mul_f32 {t}, 0x{LOG2E ^ 0x80000000:x}, {s}")
    a(f"v_exp_f32 {t}, {t}")
    a("s_nop 0")
    a(f"v_add_f32 {t}, 1.0, {t}")
    a(f"v_rcp_f32 {d}, {t}")
    a("s_nop 0")


MFMA = "v_mfma_f32_16x16x32_bf16"
```

```python
import re

_R = re.compile(r"\b([vs])(\d+)\b|\b([vs])\[(\d+):(\d+)\]")


def regs(tok):
    out = set()
    for m in _R.finditer(tok):
        if m.group(1):
            out.add((m.group(1), int(m.group(2))))
        else:
            out |= {(m.group(3), i) for i in range(int(m.group(4)), int(m.group(5)) + 1)}
    if "vcc" in tok:
        out.add(("s", "vcc"))
    return out


TRANS = ("v_exp_f32", "v_rcp_f32", "v_log_f32", "v_rsq_f32", "v_sqrt_f32")


def parse(line):
    s = line.split(";")[0].strip()
    if not s or s.endswith(":"):
        return None
    p = s.split(None, 1)
    op = p[0]
    ops = [t.strip() for t in p[1].split(",")] if len(p) > 1 else []
    d = dict(op=op, w=set(), r=set(), c=set(), kind="other", n=1)
    if op == "s_nop":
        d["n"] = int(ops[0]) + 1
    elif op.startswith("v_mfma"):
        d.update(kind="mfma", w=regs(ops[0]), r=regs(ops[1]) | regs(ops[2]), c=regs(ops[3]))
    elif op.startswith("v_permlane"):
        x = regs(ops[0]) | regs(ops[1])
        d.update(kind="perml", w=x, r=x)
    elif op.startswith("v_readfirstlane") or op.startswith("v_readlane"):
        d.update(kind="rdl", w=regs(ops[0]), r=regs(ops[1]))
    elif op.startswith("v_"):
        r = set()
        for t in ops[1:]:
            r |= regs(t)
        if op.startswith("v_fmac") or op.startswith("v_dot2c"):
            r |= regs(ops[0])
        d.update(kind="trans" if op in TRANS else "valu", w=regs(ops[0]), r=r)
        if "dpp" in op or "quad_perm" in s or "row_" in s:
            d["dpp"] = True
    elif op.startswith("ds_read"):
        d.update(kind="mem", w=regs(ops[0]), r=regs(ops[1]))
    elif op.startswith("ds_"):
        r = set()
        for t in ops:
            r |= regs(t)
        d.update(kind="mem", r=r)
    elif op.startswith("buffer_store") or op.startswith("global_store"):
        r = set()
        for t in ops:
            r |= regs(t)
        data = regs(ops[0] if op.startswith("buffer") else ops[1])
        d.update(kind="mem", r=r, wide=data if ("x4" in op or "x3" in op) else set())
    elif op.startswith("buffer_load") or op.startswith("global_load"):
        r = set()
        lds = " lds" in s
        for t in (ops if lds else ops[1:]):
            r |= regs(t)
        d.update(kind="mem", w=set() if lds else regs(ops[0]), r=r)
    elif op.startswith("s_"):
        d.update(kind="salu")
    return d


def need(p, c):
    isv = lambda x: x["kind"] in ("valu", "trans", "perml", "rdl")
    n = 0
    if p["kind"] == "mfma":
        if c["kind"] == "mfma":
            if p["w"] & c["r"]:
                n = max(n, 8)
            if p["w"] & c["c"] and p["w"] != c["c"]:
                n = max(n, 6)
            if p["w"] & c["w"] and p["w"] != c["c"]:
                n = max(n, 8)
        elif p["w"] & (c["r"] | c["w"]):
            n = max(n, 8)
        if isv(c) and p["c"] & c["w"]:
            n = max(n, 3)
    if isv(p):
        vw = {x for x in p["w"] if x[0] == "v"}
        sw = {x for x in p["w"] if x[0] == "s"}
        if c["kind"] == "mfma" and vw & (c["r"] | c["c"]):
            n = max(n, 2)
        if c["kind"] == "perml" and vw & c["r"]:
            n = max(n, 2)
        if c.get("dpp") and vw & c["r"]:
            n = max(n, 2)
        if c["kind"] == "rdl" and vw & c["r"]:
            n = max(n, 1)
        if p["kind"] == "trans" and isv(c) and c["kind"] != "trans" and vw & c["r"]:
            n = max(n, 1)
        if sw and isv(c) and sw & c["r"]:
            n = max(n, 2)
        if sw and c["kind"] == "mem" and sw & c["r"]:
            n = max(n, 5)
    if p.get("wide") and p["wide"] & c["w"]:
        n = max(n, 2)
    return n


def fix(lines, report=None):
    out, hist = [], []
    t = 0
    added = 0
    for ln in lines:
        c = parse(ln)
        if c is None:
            out.append(ln)
            continue
        w = 0
        for p, tp in hist[-24:]:
            w = max(w, need(p, c) - (t - tp))
        if w > 0:
            out.append("    s_nop %d" % (w - 1))
            t += w
            added += w
        out.append(ln)
        t += c["n"]
        hist.append((c, t))
    if report is not None:
        report.append(added)
    return out


def lgkm(lines, pending=None):
    q = list(pending or [])
    out = []
    for ln in lines:
        c = parse(ln)
        if c is None:
            out.append(ln)
            continue
        if c["op"] == "s_waitcnt":
            m = re.search(r"lgkmcnt\((\d+)\)", ln)
            if m:
                n = int(m.group(1))
                q = q[len(q) - n:] if n else []
            out.append(ln)
            continue
        isds = c["op"].startswith("ds_")
        touch = c["r"] | c["c"] | (set() if isds else c["w"])
        last = max((i for i, d in enumerate(q) if d & touch), default=-1)
        if last >= 0:
            n = min(15, len(q) - 1 - last)
            out.append("    s_waitcnt lgkmcnt(%d)" % n)
            q = q[len(q) - n:] if n else []
        out.append(ln)
        if isds:
            q.append(set(c["w"]))
    return out
```

```python
from common import *
import hz

KNAME = NAME + "_kernel"
SC_POLL = os.environ.get("SC_POLL", "sc1")
SC_FLAG = os.environ.get("SC_FLAG", "sc1")
SC_ST = os.environ.get("SC_ST", "sc1")
SC_LD = os.environ.get("SC_LD", "sc1")
FNT = os.environ.get("FNT", "")
FNTD = os.environ.get("FNTD", FNT)
FL_OFF = 0x80000
YFL = 160 * 256
AGG = YFL + 2048
AGS = P('AGS', 3)
ZBYTES = (AGG + 1024 + 20 * 256 + 8191) // 8192 * 8192
EPO = 0xC0000
AG2 = 0xC1000
YF2 = AGG + 1024
GW0 = 24
MT = 12
MH = 6
RROWS = (MT - 1) * 16
XREG = MT * 2048
SLOT = XREG + 16384
LA = 2
NS = 3
NCH = 10
WR0 = NS * XREG
TBASE = NS * SLOT
MBASE = 81920 - 2048
W_X = 80
WO_L = 0
STG = 140288
SP = 144
YB = STG + 8 * 16 * SP
LDS_BYTES = 4 * SLOT
QO, KO, VO = 0, 80, 160
SPIN = 0x20000
ZW2 = 48
ZW = 16


def gen(a):
    if P("PAL", 1):
        a.raw(".p2align 12")
    a.raw(".p2align 8")
    a.raw(f".globl {KNAME}")
    a.raw(f".type {KNAME},@function")
    a.label(KNAME)
    S = RA("s", 3, 82 if STAMP else 100)
    V = RA("v", 1, 256)
    s_tmp = S.a()
    s_px = S.a(2)
    s_po = S.a(2)
    s_pws = S.a(4)
    sX, sW, sO, sWO = S.many(4, 4)
    s_xcd, s_i, s_w, s_rt, s_hg, s_t2, s_n = S.many(7)
    s_half = S.a()
    s_fl = S.a()
    s_pc = S.a(2)
    v_lane, v_t0, v_t1, v_t2, v_t3, v_pf, v_smp, v_fo = V.many(8)
    DBG, WS = s_pws, s_pws + 2

    def row_lanes(v2):
        a(f"v_lshrrev_b32 {v_t1}, 4, {v_lane}")
        a(f"v_and_b32 {v_t2}, 7, {v_lane}")
        a(f"v_lshrrev_b32 {v_t0}, 3, {v_lane}")
        a(f"v_xor_b32 {v_t2}, {v_t2}, {v_t1}")
        a(f"v_mul_u32_u24 {v_t0}, 1280, {v_t0}")
        a(f"v_lshl_add_u32 {v2[0]}, {v_t2}, 4, {v_t0}")
        a(f"v_xor_b32 {v2[1]}, 64, {v2[0]}")

    def x_base(s_d, s_k):
        a(f"s_lshl_b32 {s_d}, {s_rt2}, 3")
        a(f"s_lshl1_add_u32 {s_d}, {s_k}, {s_d}")
        a(f"s_mul_i32 {s_d}, {s_d}, 20480")
        a(f"s_lshl_b32 {s_t2}, {s_ct}, 7")
        a(f"s_add_u32 {s_d}, {s_d}, {s_t2}")

    def x_dma(v2, s_b, s_k):
        a(f"s_lshl_b32 {s_t2}, {s_k}, 12")
        for j in range(4):
            a(f"s_add_u32 m0, {s_t2}, {STG + j*1024}")
            a(f"s_add_u32 {s_tmp}, {s_b}, {j*10240}")
            a(f"buffer_load_dwordx4 {v2[j&1]}, {sX(4)}, {s_tmp} offen lds")

    s_rt2, s_ct = S.many(2)
    s_mb = S.a()
    s_role = S.a()
    a("s_cmp_ge_u32 s2, 256")
    a("s_cbranch_scc1 K_EXIT")
    a(f"s_load_dwordx2 {sX(2)}, s[0:1], 0")
    a(f"s_load_dwordx2 {sW(2)}, s[0:1], 8")
    a(f"v_readfirstlane_b32 {s_w}, v0")
    a(f"s_load_dwordx4 {s_pws(4)}, s[0:1], 80")
    a(f"s_load_dwordx2 {sWO(2)}, s[0:1], 16")
    a(f"s_load_dwordx2 {s_po(2)}, s[0:1], 72")
    stamp_init(a)
    a(f"s_and_b32 {s_xcd}, s2, 7")
    a(f"v_and_b32 {v_lane}, 63, v0")
    a(f"s_mov_b32 {sX+2}, 0x{X_BYTES:x}")
    a(f"s_mov_b32 {sX+3}, 0x20000")
    a(f"s_lshr_b32 {s_w}, {s_w}, 6")
    a("s_cmp_lt_u32 s2, 64")
    a("s_cbranch_scc1 K_SLOW")
    a(f"s_cmp_lt_u32 {s_w}, 4")
    a("s_cbranch_scc1 K_FAST")
    a.label("K_SLOW")

    WARM = {"M": [x.split("+") for x in os.environ.get("WARM_M", "attd+p2g,atts+early,help+flags,spin").split(",")],
            "A": [x.split("+") for x in os.environ.get("WARM_A", "p2g,gen,help+flags,spin").split(",")],
            }
    wpts = set()

    def page():
        if P("PAGES", 1):
            a.raw(".p2align 12")

    def wpoint(name, skip=False, align=False, asm=None):
        o = asm or a
        if skip and not (P("PAGES", 1) or P("WARMUP", 1)):
            return
        if skip:
            o(f"s_branch WS_{name}")
        if align and P("PAGES", 1):
            o.raw(".p2align 12")
        o.label(f"WP_{name}")
        o(f"s_setpc_b64 {s_pc(2)}")
        if skip:
            o.label(f"WS_{name}")
        wpts.add(name)

    def warm(key, s_sel, first=0):
        if not P("WARMUP", 1):
            return
        ch = WARM[key]
        for k, names in enumerate(ch):
            if k + 1 < len(ch):
                a(f"s_cmp_lg_u32 {s_sel}, {first + k}")
                a(f"s_cbranch_scc1 K_WARM{key}{k}")
            for n in names:
                if n:
                    a(f"s_call_b64 {s_pc(2)}, WP_{n}")
            if k + 1 < len(ch):
                a(f"s_branch K_WARM{key}X")
                a.label(f"K_WARM{key}{k}")
        a.label(f"K_WARM{key}X")

    def slow_head():
        a(f"s_getpc_b64 {s_pc(2)}")
        a.label("K_PC")
        NL = f"((K_CODE_END-{KNAME}+1023)/1024)"
        a("s_bfe_u32 s3, s2, 0x30003")
        a(f"s_mul_i32 s3, s3, {NL}")
        a(f"s_sub_u32 {s_pc}, {s_pc}, K_PC-{KNAME}")
        a(f"s_subb_u32 {s_pc+1}, {s_pc+1}, 0")
        a(f"v_subrev_u32 {v_t1}, 256, v0")
        a(f"v_add_u32 {v_t0}, s3, {v_t1}")
        a(f"v_lshlrev_b32 {v_t0}, 7, {v_t0}")
        a(f"v_min_u32 {v_t0}, K_CODE_END-{KNAME}-4, {v_t0}")
        a(f"v_cmp_gt_u32 vcc, {NL}, {v_t1}")
        a("s_and_saveexec_b64 %s, vcc" % s_px(2))
        a("s_cbranch_execz K_NOPF")
        a(f"global_load_dword {v_pf}, {v_t0}, {s_pc(2)}")
        a.label("K_NOPF")
        a("s_mov_b64 exec, -1")
        a(f"v_mov_b64 {v_t0(2)}, 0")
        a(f"v_mov_b64 {v_t2(2)}, 0")
        a(f"v_mov_b32 {v_smp}, {YB + 32}")
        for k in range(4):
            a(f"ds_write_b128 {v_smp}, {v_t0(4)} offset:{16*k}")

    def common_ids():
        a(f"v_mov_b32 {v_smp}, 0")
        a(f"s_lshr_b32 {s_i}, s2, 3")
        a(f"s_xor_b32 {s_w}, {s_w}, 4")
        a(f"s_mov_b32 {sWO+2}, 0x{640*1280:x}")
        a(f"s_mov_b32 {sWO+3}, 0x20000")
        a(f"s_lshr_b32 {s_n}, {s_i}, 3")
        a(f"s_lshl_b32 {s_n}, {s_n}, 2")
        a(f"s_and_b32 {s_tmp}, {s_i}, 3")
        a(f"s_add_u32 {s_n}, {s_n}, {s_tmp}")
        a(f"s_add_u32 {s_n}, {s_n}, 4")
        a(f"s_bitcmp1_b32 {s_i}, 2")
        a(f"s_cselect_b32 {s_n}, -1, {s_n}")
        a(f"s_cmp_lt_u32 {s_i}, 8")
        a(f"s_cselect_b32 {s_n}, {s_i}, {s_n}")
        a(f"s_lshl_b32 {s_rt2}, {s_xcd}, 1")
        a(f"s_cmp_ge_u32 {s_n}, 10")
        a(f"s_addc_u32 {s_rt2}, {s_rt2}, 0")
        a(f"s_sub_u32 {s_ct}, {s_n}, 10")
        a(f"s_cmp_ge_u32 {s_n}, 10")
        a(f"s_cselect_b32 {s_ct}, {s_ct}, {s_n}")
        a(f"s_mul_i32 {s_mb}, {s_xcd}, 20")
        a(f"s_add_u32 {s_mb}, {s_mb}, {s_n}")
        a(f"s_and_b32 {s_mb}, {s_mb}, 255")
        a(f"s_lshl_b32 {s_mb}, {s_mb}, 8")
        a(f"s_add_u32 {s_mb}, {s_mb}, {FL_OFF}")

    mS, mV = S.mark(), V.mark()

    def zaddr(v):
        a(f"v_and_b32 {v}, 7, {v_lane}")
        a(f"v_lshlrev_b32 {v}, 2, {v}")

    def zsample(v):
        a(f"global_load_dword {v_smp}, {v}, {DBG(2)} offset:{ZW2*4} {SC_POLL}")

    def zpoll(k):
        zaddr(v_t2)
        a(f"s_mov_b32 {s_tmp}, {SPIN}")
        a.label(f"K_ZPOLL{k}")
        a(f"v_cmp_eq_u32 vcc, 0, {v_smp}")
        a(f"s_cbranch_vccz K_ZOK{k}")
        a(f"s_sub_u32 {s_tmp}, {s_tmp}, 1")
        a(f"s_cbranch_scc1 K_ZOK{k}")
        zsample(v_t2)
        a("s_waitcnt vmcnt(0)")
        a(f"s_branch K_ZPOLL{k}")
        a.label(f"K_ZOK{k}")

    def mb_sample(vaddr):
        a(f"v_and_b32 {vaddr}, 1, {v_lane}")
        a(f"v_lshl_add_u32 {vaddr}, {vaddr}, 2, {s_mb}")
        a(f"global_load_dword {v_smp}, {vaddr}, {WS(2)} offset:128 {SC_POLL}")

    def wo_voff(v_wo, s_add=None):
        a(f"v_lshrrev_b32 {v_t0}, 3, {v_lane}")
        a(f"v_mul_u32_u24 {v_t0}, 1280, {v_t0}")
        a(f"v_lshrrev_b32 {v_t1}, 4, {v_lane}")
        a(f"v_lshlrev_b32 {v_t1}, 1, {v_t1}")
        a(f"v_and_b32 {v_t2}, 7, {v_lane}")
        a(f"v_xor_b32 {v_t1}, {v_t1}, {v_t2}")
        a(f"v_lshl_add_u32 {v_t0}, {v_t1}, 4, {v_t0}")
        if s_add is None:
            s_add = s_t2
            a(f"s_lshl_b32 {s_t2}, {s_ct}, 7")
        a(f"v_add_u32 {v_wo}, {s_add}, {v_t0}")

    def wo_blocks(v_wo, s_k, late, s_src, s_dst, s_o, thr=0):
        a(f"s_lshl_b32 {s_src}, {s_k}, 2")
        a(f"s_lshr_b32 {s_src}, 0x{0x6431 if late else 0x7520:x}, {s_src}")
        a(f"s_and_b32 {s_src}, {s_src}, 7")
        a(f"s_mul_i32 {s_src}, {s_src}, 51200")
        a(f"s_mul_i32 {s_dst}, {s_k}, 5120")
        for b in range(2):
            for r in range(5):
                a(f"s_add_u32 {s_o}, {s_src}, {b*8*51200 + r*10240}")
                a(f"s_add_u32 m0, {s_dst}, {WO_L + late*40960 + b*20480 + r*1024}")
                a(f"s_waitcnt vmcnt({thr-1})" if thr else "s_nop 0")
                a(f"buffer_load_dwordx4 {v_wo}, {sWO(4)}, {s_o} offen lds")

    s_pos = s_half

    def main_ids():
        a(f"s_lshr_b32 {s_rt}, {s_i}, 3")
        a(f"s_sub_u32 {s_rt}, {s_rt}, 1")
        a(f"s_and_b32 {s_pos}, {s_i}, 3")
        a(f"s_and_b32 {s_tmp}, {s_i}, 4")
        a(f"s_lshl_b32 {s_tmp}, {s_tmp}, 1")
        a(f"s_add_u32 {s_pos}, {s_pos}, {s_tmp}")
        a(f"s_and_b32 {s_tmp}, {s_xcd}, 1")
        a(f"s_lshl_b32 {s_tmp}, {s_tmp}, 2")
        a(f"s_add_u32 {s_pos}, {s_pos}, {s_tmp}")

    v_row, v_g, v_r, v_c = V.many(4)
    v_t16, v_m8, v_os, v_ot, v_wv = V.many(5)
    v_hq = V.many(2)
    v_vt = V.many(4)
    v_b0, v_b1, v_bp, v_ps = V.many(4, 4)
    s_tg = S.a()
    s_c = S.a(2)
    s_sc = S.a(2)
    s_oo = S.many(2)
    RL = P("RLOG", 0)

    def lane_consts():
        a(f"v_and_b32 {v_row}, 15, {v_lane}")
        a(f"v_lshrrev_b32 {v_g}, 4, {v_lane}")
        a(f"v_bfe_u32 {v_r}, {v_lane}, 2, 2")
        a(f"v_and_b32 {v_c}, 3, {v_lane}")

    def att_consts():
        v_neg = v_wv
        srd(a, sO, WS, O_BYTES, O_OFF)
        a(f"s_and_b32 {s_tmp}, {s_w}, 3")
        a(f"s_mul_i32 {s_tmp}, {s_tmp}, 3")
        a(f"s_lshr_b32 {s_t2}, {s_w}, 2")
        a(f"s_lshl1_add_u32 {s_tmp}, {s_t2}, {s_tmp}")
        a(f"s_mul_i32 {s_tg}, {s_rt}, {MT-1}")
        a(f"s_add_u32 {s_tg}, {s_tg}, {s_tmp}")
        a(f"s_cmp_eq_u32 {s_tg}, 31")
        a(f"s_cselect_b32 {s_oo[1]}, 4, {s_w}")
        a(f"s_lshr_b32 {s_t2}, {s_xcd}, 1")
        a(f"s_lshl_b32 {s_t2}, {s_t2}, 5")
        a(f"s_add_u32 {s_tg}, {s_tg}, {s_t2}")
        a(f"s_lshl_b32 {s_tmp}, {s_tmp}, 10")
        a(f"s_add_u32 {s_tmp}, {s_tmp}, {TBASE}")
        a(f"v_lshl_add_u32 {v_t16}, {v_lane}, 4, {s_tmp}")
        a(f"v_lshl_add_u32 {v_t0}, {v_row}, 4, {s_tmp}")
        a(f"v_add_u32 {v_t0}, {512 + 8}, {v_t0}")
        a(f"v_add_u32 {v_t1}, 512, {v_t16}")
        for h in range(2):
            a(f"v_cmp_eq_u32 vcc, {h}, {v_g}")
            a("s_nop 1")
            a(f"v_cndmask_b32 {v_hq[h]}, {v_t0}, {v_t1}, vcc")
        a(f"v_lshl_add_u32 {v_t3}, {v_g}, 2, {v_r}")
        a(f"v_lshl_add_u32 {v_t3}, {v_t3}, 4, {s_tmp}")
        a(f"v_add_u32 {v_t0}, {512 + 8}, {v_t3}")
        a(f"v_add_u32 {v_t1}, 8, {v_t3}")
        a(f"v_add_u32 {v_t2}, {256 + 8}, {v_t3}")
        a(f"s_cmp_lt_u32 {s_w}, 4")
        a(f"s_cselect_b32 {s_t2}, 0, 3")
        a(f"s_sub_u32 {s_t2}, {s_w}, {s_t2}")
        a(f"s_mul_i32 {s_t2}, {s_t2}, 5120")
        a(f"s_add_u32 {s_t2}, {s_t2}, {MBASE}")
        a(f"v_lshl_add_u32 {v_m8}, {v_lane}, 3, {s_t2}")
        for u in range(4):
            a(f"v_cmp_eq_u32 vcc, {u}, {v_c}")
            a("s_nop 1")
            a(f"v_cndmask_b32 {v_vt[u]}, {v_t0}, {v_t2 if u & 1 else v_t1}, vcc")
        a(f"s_lshl_b32 {s_tmp}, {s_pos}, 10")
        a(f"v_lshl_add_u32 {v_os}, {v_lane}, 4, {s_tmp}")
        a(f"s_lshl_b32 {s_tmp}, {s_pos}, 8")
        a(f"s_add_u32 {s_tmp}, {s_tmp}, 16384")
        a(f"v_lshl_add_u32 {v_ot}, {v_row}, 4, {s_tmp}")
        a(f"v_and_b32 {v_t0}, 1, {v_g}")
        a(f"v_lshl_add_u32 {v_ot}, {v_t0}, 23, {v_ot}")
        a(f"s_cmp_lt_u32 {s_oo[1]}, 4")
        a(f"s_cselect_b32 {s_tmp}, 0, 0x800000")
        a(f"s_add_u32 {s_tmp}, {s_tmp}, 20480")
        a(f"v_lshrrev_b32 {v_t0}, 1, {v_g}")
        a(f"v_mad_u32_u24 {v_ot}, {v_t0}, {s_tmp}, {v_ot}")
        a(f"s_mul_i32 {s_oo[0]}, {s_tg}, 20480")
        a(f"s_add_u32 {s_oo[1]}, {s_oo[0]}, {s_tmp}")
        a(f"v_mov_b32 {v_neg}, 0x{NEG:x}")
        a(f"v_lshlrev_b32 {v_t0}, 2, {v_g}")
        a(f"v_sub_u32 {v_t0}, {v_row}, {v_t0}")
        a(f"s_cmp_eq_u32 {s_tg}, 0")
        a(f"s_cselect_b32 {s_tmp}, 0x{NEG:x}, 0")
        for r in range(4):
            a(f"v_subrev_u32 {v_t1}, {r}, {v_t0}")
            a(f"v_and_b32 {v_t2}, 0x80000001, {v_t1}")
            a(f"v_cmp_eq_u32 vcc, 0, {v_t2}")
            a("s_nop 1")
            a(f"v_cndmask_b32 {v_b1+r}, {v_neg}, 0, vcc")
            a(f"v_cmp_eq_u32 vcc, 0x80000000, {v_t2}")
            a("s_nop 1")
            a(f"v_cndmask_b32 {v_b0+r}, {v_neg}, 0, vcc")
            a(f"v_add_f32 {v_bp+r}, {s_tmp}, {v_b0+r}")
        for p, vb in enumerate((v_b0, v_b1)):
            for k in range(2):
                lo = 0x0c0c0000 | ((2 * k + 1) << 8) | (2 * k)
                hi = 0x00000c0c | ((2 * k + 1) << 24) | ((2 * k) << 16)
                a(f"v_mov_b32 {v_t1}, 0x0c0c0c0c")
                a(f"v_mov_b32 {v_t2}, 0x{lo:x}")
                a(f"v_cmp_eq_u32 vcc, 0, {vb+2*k}")
                a(f"v_mov_b32 {v_t3}, 0x{hi:x}")
                a("s_nop 0")
                a(f"v_cndmask_b32 {v_t1}, {v_t1}, {v_t2}, vcc")
                a(f"v_cmp_eq_u32 vcc, 0, {vb+2*k+1}")
                a("s_nop 1")
                a(f"v_cndmask_b32 {v_ps+2*p+k}, {v_t1}, {v_t3}, vcc")
        a(f"s_mov_b32 {s_c}, 0x{LOG2E if RL == 1 else SCALE_L2E:x}")
        a(f"s_mov_b32 {s_c+1}, {s_c}")
        a(f"s_mov_b32 {s_sc}, 0x{f32bits(20 ** -0.5):x}")
        a(f"s_mov_b32 {s_sc+1}, {s_sc}")

    def flag_consts():
        a(f"s_mov_b32 {s_fl}, 0xfffff")
        a(f"s_cmp_lg_u32 {s_rt}, 0")
        a(f"s_cselect_b32 {s_t2}, 64, 0")
        a(f"v_mov_b32 {v_t0}, {s_t2}")
        a(f"v_cmp_gt_u32 vcc, 10, {v_lane}")
        a(f"s_lshr_b32 {s_tmp}, {s_xcd}, 1")
        a(f"s_lshl2_add_u32 {s_tmp}, {s_tmp}, {s_rt}")
        a(f"v_cndmask_b32 {v_t0}, 0, {v_t0}, vcc")
        a(f"v_lshl_add_u32 {v_t0}, {v_lane}, 8, {v_t0}")
        a(f"s_mul_i32 {s_tmp}, {s_tmp}, 2560")
        a(f"s_lshl2_add_u32 {s_tmp}, {s_pos}, {s_tmp}")
        a(f"s_add_u32 {s_tmp}, {s_tmp}, {FL_OFF}")
        a(f"v_add_u32 {v_fo}, {s_tmp}, {v_t0}")

    mV2 = V.mark()
    mS2 = S.mark()
    slow_head()
    a(f"s_mov_b32 {s_role}, 1")
    a(f"s_lshl_b32 {s_tmp}, {s_w}, 8")
    a(f"s_add_u32 {s_tmp}, {s_tmp}, s2")
    a(f"s_lshr_b32 {s_tmp}, {s_tmp}, 3")
    a(f"s_cmp_lg_u32 {s_tmp}, {5*32}")
    a("s_cbranch_scc1 K_COMMON")
    a(f"s_mul_i32 {s_tmp}, s2, {ZBYTES // 8}")
    a(f"s_add_u32 {s_tmp}, {s_tmp}, {FL_OFF + 3072}")
    a(f"v_lshl_add_u32 {v_pf}, {v_lane}, 4, {s_tmp}")
    a(f"v_mov_b64 {v_b0(2)}, 0")
    a(f"v_mov_b64 {(v_b0+2)(2)}, 0")
    a("s_waitcnt lgkmcnt(0)")
    for k in range(ZBYTES // 8192):
        a(f"global_store_dwordx4 {v_pf}, {v_b0(4)}, {WS(2)} offset:{k*1024 - 3072} {SC_FLAG}")
    a(f"s_lshl_b32 {s_tmp}, s2, 2")
    a(f"v_mov_b32 {v_t0}, {s_tmp}")
    a(f"v_mov_b32 {v_t1}, 1")
    a("s_mov_b64 exec, 1")
    a("s_waitcnt vmcnt(0)")
    a(f"global_store_dword {v_t0}, {v_t1}, {DBG(2)} offset:{ZW2*4} {SC_FLAG}")
    a("s_mov_b64 exec, -1")
    stamp(a, "zdone")
    a("s_branch K_COMMON")
    a.label("K_FAST")
    if P("LPRIO", 0):
        a(f"s_setprio {P('LPRIO', 0)}")
    stamp(a, "role")
    v_xo = V.many(2)
    v_wo = V.many(2)
    s_lw, s_xb, s_wb, s_m0x, s_m0w, s_sox, s_sow, s_kc, s_so, s_cnt, s_sk = S.many(11)
    PERM8 = [0, 2, 5, 7, 1, 3, 4, 6]
    if os.environ.get("KT", "59608237,26375904,93042671,76543210") == "old":
        KT = [sum(((3 * PERM8[k] + 4 * r) % 10) << (4 * k) for k in range(8)) for r in (1, 2, 3)] + [0x76543210]
    else:
        KT = [int(x, 16) for x in os.environ.get("KT", "59608237,26375904,93042671,76543210").split(",")]
    a(f"s_lshr_b32 {s_hg}, s2, 1")
    a(f"s_and_b32 {s_hg}, {s_hg}, 28")
    a(f"v_lshrrev_b32 {v_t1}, 4, {v_lane}")
    a(f"s_lshr_b32 {s_tmp}, s2, 6")
    a(f"s_mov_b32 {s_kc}, 0x{KT[0]:x}")
    a(f"s_cmp_eq_u32 {s_tmp}, 2")
    a(f"s_cselect_b32 {s_kc}, 0x{KT[1]:x}, {s_kc}")
    a(f"v_and_b32 {v_t2}, 7, {v_lane}")
    a(f"s_cmp_eq_u32 {s_tmp}, 3")
    a(f"s_cselect_b32 {s_kc}, 0x{KT[2]:x}, {s_kc}")
    a(f"v_lshrrev_b32 {v_t0}, 3, {v_lane}")
    a(f"s_lshr_b32 {s_kc}, {s_kc}, {s_hg}")
    a(f"s_and_b32 {s_kc}, {s_kc}, 15")
    a(f"v_xor_b32 {v_t2}, {v_t2}, {v_t1}")
    a(f"s_lshl_b32 {s_t2}, {s_xcd}, 2")
    a(f"s_lshr_b32 {s_t2}, 0x{KT[3]:x}, {s_t2}")
    a(f"s_and_b32 {s_t2}, {s_t2}, 15")
    a(f"s_add_u32 {s_kc}, {s_kc}, {s_t2}")
    a(f"s_cmp_ge_u32 {s_kc}, 10")
    a(f"v_mul_u32_u24 {v_t0}, 1280, {v_t0}")
    a(f"s_cselect_b32 {s_t2}, 10, 0")
    a(f"s_sub_u32 {s_kc}, {s_kc}, {s_t2}")
    a(f"s_lshr_b32 {s_xb}, {s_xcd}, 1")
    a(f"v_lshl_add_u32 {v_xo[0]}, {v_t2}, 4, {v_t0}")
    a(f"s_mul_i32 {s_xb}, {s_xb}, {512*1280}")
    a(f"s_lshl2_add_u32 {s_sk}, {s_tmp}, {s_w}")
    a(f"s_cmp_eq_u32 {s_sk}, 15")
    a(f"s_cselect_b32 {s_sk}, 0x800000, 0")
    a(f"s_add_u32 {s_sk}, {s_sk}, {4*8*1280}")
    a(f"s_mul_i32 {s_tmp}, {s_tmp}, {RROWS*1280}")
    a(f"v_xor_b32 {v_xo[1]}, 64, {v_xo[0]}")
    a(f"s_add_u32 {s_xb}, {s_xb}, {s_tmp}")
    a(f"s_mul_i32 {s_wb}, {s_w}, {48*1280}")
    a(f"s_add_u32 {s_xb}, {s_xb}, {s_wb}")
    a(f"s_sub_u32 {s_xb}, {s_xb}, {(RROWS+16)*1280}")
    a(f"s_mul_i32 {s_m0x}, {s_w}, 6144")
    a(f"s_add_u32 {s_m0x}, {s_m0x}, {2*XREG}")

    ORDER = [("w", 0), ("x", 0), ("w", 1), ("x", 1), ("x", 2), ("w", 2), ("x", 3), ("w", 3), ("x", 4), ("x", 5)]
    ORDER0 = [("x", j) for j in range(6)] + [("w", j) for j in range(4)]
    HS = P("HSPLIT", 5)

    def dma_head(kind):
        if "s" in kind:
            a(f"s_cmp_ge_u32 {s_m0x}, {2*XREG}")
            a(f"s_cselect_b32 {s_so}, -2, 1")
            a(f"s_mul_i32 {s_tmp}, {s_so}, {XREG}")
            a(f"s_add_u32 {s_m0x}, {s_m0x}, {s_tmp}")
            a(f"s_lshl_b32 {s_so}, {s_so}, 14")
            a(f"s_add_u32 {s_m0w}, {s_m0w}, {s_so}")
        if "x" in kind:
            a(f"s_lshl_b32 {s_sox}, {s_kc}, 7")
            a(f"s_add_u32 {s_sox}, {s_sox}, {s_xb}")
        if "w" in kind:
            a(f"s_mul_i32 {s_sow}, {s_kc}, {64*3840}")
            a(f"s_add_u32 {s_sow}, {s_sow}, {s_wb}")
            a(f"s_add_u32 {s_kc}, {s_kc}, 1")
            a(f"s_cmp_eq_u32 {s_kc}, 10")
            a(f"s_cselect_b32 {s_kc}, 0, {s_kc}")

    def dma_part(lo, hi, order=ORDER):
        for kind, j in order[lo:hi]:
            if kind == "w":
                a(f"s_add_u32 m0, {s_m0w}, {j*1024}")
                a(f"s_add_u32 {s_so}, {s_sow}, {j*4*3840}")
                a(f"buffer_load_dwordx4 {v_wo[j>>1]}, {sW(4)}, {s_so} offen lds")
            else:
                if j == 1:
                    a(f"s_add_u32 {s_so}, {s_sox}, {8*1280}")
                a(f"s_add_u32 m0, {s_m0x}, {j*1024}")
                if j < 2:
                    a(f"s_max_i32 {s_so}, {s_so if j else s_sox}, 0")
                elif j == 4:
                    a(f"s_add_u32 {s_so}, {s_sox}, {s_sk}")
                elif j == 5:
                    assert order[order.index(("x", 5)) - 1] == ("x", 4) and lo <= order.index(("x", 4))
                    a(f"s_add_u32 {s_so}, {s_so}, {8*1280}")
                else:
                    a(f"s_add_u32 {s_so}, {s_sox}, {j*8*1280}")
                a(f"buffer_load_dwordx4 {v_xo[j&1]}, {sX(4)}, {s_so} offen lds")

    dma_head("x")
    stamp(a, "setup")
    a("s_waitcnt lgkmcnt(0)")
    stamp(a, "karg")
    dma_part(0, 6, ORDER0)
    stamp(a, "x6")
    a(f"v_lshlrev_b32 {v_t0}, 1, {v_t1}")
    a(f"s_lshr_b32 {s_hg}, 0x64317520, {s_hg}")
    a(f"v_sub_u32 {v_t0}, {v_lane}, {v_t0}")
    a(f"s_and_b32 {s_hg}, {s_hg}, 7")
    a(f"v_and_b32 {v_t0}, 15, {v_t0}")
    a(f"s_and_b32 {s_tmp}, {s_xcd}, 1")
    a(f"v_mul_u32_u24 {v_t1}, 3840, {v_t1}")
    a(f"s_lshl3_add_u32 {s_hg}, {s_tmp}, {s_hg}")
    for jj in range(2):
        if jj:
            a(f"v_xor_b32 {v_t0}, 8, {v_t0}")
        a(f"v_mul_u32_u24 {v_t2}, 13, {v_t0}")
        if jj == 0:
            a(f"s_mul_i32 {s_tmp}, {s_hg}, 80")
        a(f"v_lshrrev_b32 {v_t2}, 6, {v_t2}")
        if jj == 0:
            a(f"s_add_u32 {s_wb}, {s_wb}, {s_tmp}")
        a(f"v_mul_u32_u24 {v_t2}, 1200, {v_t2}")
        if jj == 0:
            a(f"s_lshl_b32 {s_m0w}, {s_w}, 12")
        a(f"v_lshl_add_u32 {v_t2}, {v_t0}, 4, {v_t2}")
        if jj == 0:
            a(f"s_add_u32 {s_m0w}, {s_m0w}, {WR0 + 2*16384}")
        a(f"v_add_u32 {v_t3}, 1, {v_t0}")
        if jj == 0:
            a(f"s_mov_b32 {sW+2}, 0x{640*3840:x}")
        a(f"v_and_b32 {v_t3}, 16, {v_t3}")
        if jj == 0:
            a(f"s_mov_b32 {sW+3}, 0x20000")
        a(f"v_lshl_add_u32 {v_t2}, {v_t3}, 24, {v_t2}")
        a(f"v_add_u32 {v_wo[jj]}, {v_t1}, {v_t2}")
        if jj == 0:
            dma_head("w")
        dma_part(6 + 2 * jj, 8 + 2 * jj, ORDER0)
    stamp(a, "wi1")
    stamp(a, "issued")
    a(f"s_mov_b32 {s_lw}, {s_w}")
    a(f"s_mov_b32 {s_role}, 0")
    a.label("K_COMMON")
    common_ids()
    a(f"s_cmp_lt_u32 {s_i}, 8")
    a("s_cbranch_scc1 K_AUX")
    main_ids()
    lane_consts()
    a("s_waitcnt lgkmcnt(0)")
    att_consts()
    flag_consts()
    a(f"s_cmp_eq_u32 {s_role}, 1")
    a("s_cbranch_scc1 K_CONS")
    wo_voff(v_wv)
    a(f"s_mov_b32 {s_cnt}, {NCH - 1}")
    a("s_branch K_LOOPE")
    a.label("K_LOOP")
    a(f"s_waitcnt vmcnt({HS})")
    a("s_barrier")
    dma_part(HS, 10)
    a(f"s_sub_u32 {s_cnt}, {s_cnt}, 1")
    a(f"s_cmp_eq_u32 {s_cnt}, 0")
    a("s_cbranch_scc1 K_LOOPX")
    a.label("K_LOOPE")
    dma_head("sxw")
    dma_part(0, HS)
    a("s_branch K_LOOP")
    a.label("K_LOOPX")
    zaddr(v_t0)
    a("s_waitcnt vmcnt(0)")
    stamp(a, "w9")
    a("s_barrier")
    stamp(a, "c9")
    a(f"s_cmp_lt_u32 {s_w}, 6")
    a("s_cbranch_scc1 K_NOSMP")
    zsample(v_t0)
    a.label("K_NOSMP")
    a(f"s_cmp_eq_u32 {s_n}, -1")
    a("s_cbranch_scc1 K_JOIN_S")
    WOE = P("WOE", 2)
    if WOE < 3:
        a(f"s_cmp_lt_u32 {s_lw}, {WOE}")
        a("s_cbranch_scc1 K_WOE")
        a(f"s_cmp_lg_u32 {s_w}, 7")
        a("s_cbranch_scc1 K_JOIN_S")
        a(f"s_mov_b32 {s_lw}, {WOE}")
    else:
        a(f"s_cmp_lg_u32 {s_w}, 7")
        a("s_cbranch_scc1 K_WOE")
    a("s_branch K_W7A")
    a.label("K_WOE")
    wo_blocks(v_wv, s_lw, 0, s_sox, s_sow, s_tmp)
    a(f"s_cmp_lg_u32 {s_w}, 7")
    a("s_cbranch_scc1 K_JOIN_S")
    if WOE < 3:
        a(f"s_add_u32 {s_lw}, {s_lw}, 1")
        a(f"s_cmp_lt_u32 {s_lw}, 4")
        a("s_cbranch_scc1 K_WOE")
    a(f"s_mov_b32 {s_lw}, 0")
    a.label("K_XD")
    x_base(s_sox, s_lw)
    x_dma(v_xo, s_sox, s_lw)
    a(f"s_add_u32 {s_lw}, {s_lw}, 1")
    a(f"s_cmp_lt_u32 {s_lw}, 4")
    a("s_cbranch_scc1 K_XD")
    a("s_branch K_W7")

    V.release(mV2)
    S.release(mS2)
    page()
    a.label("K_CONS")
    s_cnt = S.a()
    TA, TB, K0, K1, Q0, Q1, V0, V1 = range(8)
    v_aa = V.many(2)
    v_ba = V.many(8)
    v_xw = V.a()
    a(f"v_lshrrev_b32 {v_t0}, 1, {v_row}")
    a(f"v_xor_b32 {v_t0}, {v_t0}, {v_g}")
    a(f"v_lshlrev_b32 {v_t0}, 4, {v_t0}")
    a(f"v_lshl_add_u32 {v_t0}, {v_row}, 7, {v_t0}")
    a(f"s_mul_i32 {s_tmp}, {s_w}, {3*2048}")
    a(f"v_add_u32 {v_aa[0]}, {s_tmp}, {v_t0}")
    a(f"v_xor_b32 {v_aa[1]}, 64, {v_aa[0]}")
    a(f"v_and_b32 {v_t0}, 1, {v_g}")
    a(f"v_lshl_or_b32 {v_t0}, {v_t0}, 2, {v_r}")
    a(f"v_lshlrev_b32 {v_t0}, 5, {v_t0}")
    a(f"v_lshl_add_u32 {v_t1}, {v_g}, 3, {v_r}")
    a(f"v_lshlrev_b32 {v_t1}, 8, {v_t1}")
    a(f"v_add_u32 {v_t1}, {WR0}, {v_t1}")
    a(f"v_lshlrev_b32 {v_t3}, 3, {v_c}")
    a(f"s_movk_i32 {s_t2}, 0xff")
    for t, pcs in ((TA, (KO + 32, KO + 72, QO + 32, QO + 72)), (TB, (VO + 32, VO + 72, 240, 248))):
        a(f"s_mov_b32 {s_tmp}, 0x{sum(x << (8 * i) for i, x in enumerate(pcs)):x}")
        a(f"v_lshrrev_b32 {v_t2}, {v_t3}, {s_tmp}")
        a(f"v_add_u32 {v_t2}, {v_t2}, {v_t0}")
        a(f"v_and_or_b32 {v_ba[t]}, {v_t2}, {s_t2}, {v_t1}")
    a(f"v_add_u32 {v_t0}, {v_t0}, {v_t3}")
    for t, o in ((K0, KO), (K1, KO + 40), (Q0, QO), (Q1, QO + 40), (V0, VO), (V1, VO + 40)):
        a(f"v_add_u32 {v_t2}, {o}, {v_t0}")
        a(f"v_and_or_b32 {v_ba[t]}, {v_t2}, {s_t2}, {v_t1}")
    a(f"s_lshl_b32 {s_tmp}, {s_w}, 2")
    a(f"s_add_u32 {s_tmp}, {s_tmp}, {YB + W_X}")
    a(f"v_mov_b32 {v_xw}, {s_tmp}")
    a(f"v_mov_b32 {v_t2}, 1")
    a(f"v_mov_b32 {v_t3}, 2")
    acc = [V.many(8, 4) for _ in range(3)]
    for m in range(3):
        for tt in range(8):
            for h in range(2):
                a(f"v_mov_b64 {(acc[m][tt]+2*h)(2)}, 0")
    a(f"s_mov_b32 {s_cnt}, 3")
    warm("M", s_w)
    stamp(a, "issued")

    fa = [V.many(3, 4) for _ in range(2)]
    fb = [V.many(8, 4) for _ in range(2)]
    vf = [V.a(6, 2) for _ in range(2)]

    def read_ops(c, ks):
        sl = (c + 2) % NS
        B = [[f"ds_read_b64_tr_b16 {(fb[ks][tt]+2*h)(2)}, {v_ba[tt]} offset:{sl*16384 + ks*8192 + h*1024}" for h in range(2)]
             for tt in range(8)]
        A = [f"ds_read_b128 {fa[ks][m](4)}, {v_aa[ks]} offset:{sl*XREG + m*2048}" for m in range(3)]
        return [A[0]] + B[0] + [A[1], A[2]] + [l for bb in B[1:] for l in bb]

    def mm(m, tt, ks):
        x_, w_ = fa[ks][m](4), fb[ks][tt](4)
        p_ = (x_, w_) if tt in (V0, V1) else (w_, x_)
        return f"{MFMA} {acc[m][tt](4)}, {p_[0]}, {p_[1]}, {acc[m][tt](4)}"

    def mfma_block(ks, fillers):
        order = [(m if tt % 2 == 0 else 2 - m, tt) for tt in range(8) for m in range(3)]
        if P("MORD", 1) == 1:
            order = [(m, tt if m % 2 == 0 else 7 - tt) for m in range(3) for tt in range(8)]
        fillers = list(fillers)
        for m, tt in order:
            a(mm(m, tt, ks))
            if fillers:
                a(fillers.pop(0))
        assert not fillers

    if P("CPRIO", 0):
        a(f"s_setprio {P('CPRIO', 0)}")
    a("s_barrier")
    stamp(a, "c0")
    for line in read_ops(0, 0):
        a(line)
    a.label("K_CLOOP")
    stamp(a, "it")
    for c in range(3):
        a("s_waitcnt lgkmcnt(0)")
        mfma_block(0, read_ops(c, 1))
        a("s_waitcnt lgkmcnt(0)")
        a("s_barrier")
        mfma_block(1, read_ops(c + 1, 0) + ([f"s_sub_u32 {s_cnt}, {s_cnt}, 1", f"s_cmp_lg_u32 {s_cnt}, 0"] if c == 2 else []))
    a("s_cbranch_scc1 K_CLOOP")
    stamp(a, "l9")
    if P("TPRIO", 0):
        a(f"s_setprio {P('TPRIO', 0)}")
    a("s_waitcnt lgkmcnt(0)")

    def sel_ops(sc, ee, u):
        s0, s1 = sc[u]
        e = ee + 2 * u
        return [f"v_max3_f32 {e}, {s0}, {s0+1}, {s1}", f"v_max3_f32 {e+1}, {s0+2}, {s0+3}, {s1+2}",
                f"v_max_f32 {e}, {e}, {s1+1}", f"v_max_f32 {e+1}, {e+1}, {s1+3}"]

    def softmax_pv(b, NT, sc, ee, E, mx, sm, pf, oc, ot, st, vwin, vt, pre, gaps=()):
        U = range(2 * NT)
        gaps = list(gaps)

        def gap(n=1):
            for _ in range(n):
                if gaps:
                    b(gaps.pop(0))

        for l in pre:
            b(l)
        for u in (U if RL else ()):
            b(f"v_cvt_pk_bf16_f32 {E[u]}, {ee+2*u}, {ee+2*u+1}")
        if RL == 1:
            for u in U:
                b(f"v_lshlrev_b32 {ee+2*u}, 16, {E[u]}")
                b(f"v_and_b32 {ee+2*u+1}, 0xffff0000, {E[u]}")
            for u in U:
                b(f"v_pk_mul_f32 {(ee+2*u)(2)}, {(ee+2*u)(2)}, {s_sc(2)}")
            for u in U:
                b(f"v_cvt_pk_bf16_f32 {E[u]}, {ee+2*u}, {ee+2*u+1}")
        sw16 = [f"v_permlane16_swap_b32 {E[2*k]}, {E[2*k+1]}" for k in range(NT)]
        sw32 = [f"v_permlane32_swap_b32 {E[k]}, {E[k+2]}" for k in range(2)] if NT == 2 else []
        if RL:
            for l in sw16 + sw32:
                b(l)
            for u in ([0, 2, 1, 3] if NT == 2 else U):
                b(f"v_lshlrev_b32 {ee+2*u}, 16, {E[u]}")
                b(f"v_and_b32 {ee+2*u+1}, 0xffff0000, {E[u]}")
        else:
            for k in reversed(range(NT)):
                for i in range(2):
                    b(f"v_permlane16_swap_b32 {ee+4*k+i}, {ee+4*k+2+i}")
            if NT == 2:
                gap()
                for i in (0, 2, 1, 3):
                    b(f"v_permlane32_swap_b32 {ee+i}, {ee+4+i}")

        def cross(r, t, op):
            b(f"v_mov_b32 {t}, {r}")
            b(f"v_permlane32_swap_b32 {r}, {t}")
            b(f"{op} {r}, {r}, {t}")

        if NT == 2:
            b(f"v_max3_f32 {mx}, {ee}, {ee+1}, {ee+4}")
            b(f"v_max3_f32 {mx+1}, {ee+5}, {ee+2}, {ee+3}")
            b(f"v_max3_f32 {mx}, {mx}, {ee+6}, {ee+7}")
            b(f"v_max_f32 {mx}, {mx}, {mx+1}")
        else:
            b(f"v_max3_f32 {mx}, {ee}, {ee+1}, {ee+2}")
            b(f"v_max_f32 {mx}, {mx}, {ee+3}")
            cross(mx, mx + 1, "v_max_f32")
        b(f"v_mul_f32 {mx}, {s_c}, {mx}")
        for u in U:
            b(f"v_pk_fma_f32 {(ee+2*u)(2)}, {(ee+2*u)(2)}, {s_c(2)}, {mx(2)} op_sel_hi:[1,1,0] neg_lo:[0,0,1] neg_hi:[0,0,1]")
        for i in range(4 * NT):
            b(f"v_exp_f32 {ee+i}, {ee+i}")
        b(f"v_pk_add_f32 {sm(2)}, {ee(2)}, {(ee+2)(2)}")
        if NT == 2:
            b(f"v_pk_add_f32 {(sm+2)(2)}, {(ee+4)(2)}, {(ee+6)(2)}")
            b(f"v_pk_add_f32 {sm(2)}, {sm(2)}, {(sm+2)(2)}")
        b(f"v_add_f32 {sm}, {sm}, {sm+1}")
        if NT == 1:
            cross(sm, sm + 1, "v_add_f32")
        stamp(b, "a2")
        b(f"v_rcp_f32 {sm}, {sm}")
        b("s_waitcnt lgkmcnt(0)")
        for u in U:
            b(f"v_pk_mul_f32 {(ee+2*u)(2)}, {(ee+2*u)(2)}, {sm(2)} op_sel_hi:[1,0]")
        for u in ([0, 2, 1, 3] if NT == 2 else U):
            b(f"v_cvt_pk_bf16_f32 {E[u]}, {ee+2*u}, {ee+2*u+1}")
        for i, l in enumerate(sw32 + sw16):
            b(l)
            if NT == 2 and i < 2:
                gap(i + 1)
        gap(99)
        b.raw("@V@")

        M_ = []
        for u in U:
            t, h = u >> 1, u & 1
            M_ += [f"{MFMA} {oc[u](4)}, {(vwin[h]+2*t)(4)}, {pf[u](4)}, 0",
                   f"{MFMA} {ot(4)}, {vt[u](4)}, {pf[u](4)}, {'0' if u == 0 else ot(4)}"]
        M_[-2:] = M_[-2:][::-1]
        F_ = [f"v_perm_b32 {pf[u]+k}, {E[u]}, {E[u]}, {v_ps+k}" for u in U for k in range(4)]

        def cvo(t):
            return [f"v_cvt_pk_bf16_f32 {st[t]+2*h+i}, {oc[2*t+h]+2*i}, {oc[2*t+h]+2*i+1}" for h in range(2) for i in range(2)]

        def sto(t):
            return f"buffer_store_dwordx4 {st[t](4)}, {v_os}, {sO(4)}, {s_oo[t]} offen {SC_ST}"

        if NT == 2:
            F_ += cvo(0)
        for l in F_[:6]:
            b(l)
        F_ = F_[6:]
        for m_ in M_:
            b(m_)
            for l in F_[:2]:
                b(l)
            F_ = F_[2:]
        assert not F_
        stamp(b, "a3")
        if NT == 2:
            b(sto(0))
        lastc = cvo(NT - 1)
        for l in lastc[:2]:
            b(l)
        for k in range(2):
            b(f"v_cvt_pk_bf16_f32 {sm+2*k}, {ot}, {ot+1}")
            b(f"v_cvt_pk_bf16_f32 {sm+2*k+1}, {ot+2}, {ot+3}")
        for l in lastc[2:]:
            b(l)
        b(f"v_permlane16_swap_b32 {sm}, {sm+2}")
        b(f"v_permlane16_swap_b32 {sm+1}, {sm+3}")
        b(sto(NT - 1))
        b(f"buffer_store_dwordx4 {sm(4)}, {v_ot}, {sO(4)}, {s_oo[0]} offen {SC_ST}")

    c = NCH - 1
    MO = (0, 2, 1)
    SQ = P("SEQ", 0)
    if SQ == 0:
        seq = [(m, t, 0) for t in (TA, TB, K0, K1) for m in MO]
        seq += [(m, t, 1) for m in MO for t in (TA, TB)] + [(m, t, 1) for m in MO for t in (K0, K1)]
        seq += [(m, t, ks) for m in MO for ks in range(2) for t in (Q0, Q1)]
        seq += [(m, t, ks) for m in MO for ks in range(2) for t in (V0, V1)]
    else:
        first = [(0, TA), (0, TB), (2, TA), (2, TB), (0, K0), (0, K1), (2, K0), (2, K1), (0, Q0), (0, Q1)]
        seq = [(m, t, 0) for m, t in first] + [(m, t, 1) for m, t in first]
        rest = [(1, TA), (1, K0), (2, Q0), (1, Q0), (0, V0), (2, V0), (1, V0)]
        if SQ == 2:
            rest = [(0, V0), (2, V0), (1, TA), (1, K0), (2, Q0), (1, Q0), (1, V0)]
        seq += [(m, t + h, ks) for m, t in rest for ks in range(2) for h in range(2)]
    lc = Asm()
    nst = [0]
    tdone = {}

    def put(l, name=None, n=1):
        lc(l)
        nst[0] += n
        if name:
            tdone[name] = nst[0]

    def cvt(dst, src):
        return [f"v_cvt_pk_bf16_f32 {dst}, {src}, {src+1}", f"v_cvt_pk_bf16_f32 {dst+1}, {src+2}, {src+3}"]

    sc = [[fb[u >> 1][2 * (u & 1) + k] for k in range(2)] for u in range(4)]
    vt = [fb[u >> 1][Q0 + (u & 1)] for u in range(4)]
    items = []

    def it(name, kind, text, *deps):
        items.append((name, kind, text, list(deps)))

    for m in MO:
        l = cvt(acc[m][TA], acc[m][TA]) + cvt(acc[m][TA] + 2, acc[m][TB])
        for i in range(4):
            it(f"cT{m}{i}", "v", l[i], (f"m{m}{TA}", 8), (f"m{m}{TB}", 8))
        it(f"wT{m}", "w", f"ds_write_b128 {v_t16}, {acc[m][TA](4)} offset:{m*1024}", (f"cT{m}3", 1))
    for m in MO:
        for h in range(2):
            for i, l in enumerate(cvt(acc[m][K0 + h], acc[m][K0 + h])):
                it(f"cK{m}{h}{i}", "v", l, (f"m{m}{K0+h}", 8))
        if m != 1:
            o = 4 if m == 0 else 10
            it(f"wK{m}", "w", f"ds_write2st64_b64 {v_m8}, {acc[m][K0](2)}, {acc[m][K1](2)} offset0:{o} offset1:{o+1}", (f"cK{m}11", 1))
        for h in range(2):
            it(f"rK{m}{h}", "r", f"ds_read_b64 {(acc[m][K0+h]+2)(2)}, {v_t16} offset:{m*1024}", (f"cK{m}{h}1", 0), (f"wT{m}", 0))
    for m in MO:
        for h in range(2):
            for i, l in enumerate(cvt(acc[m][Q0 + h], acc[m][Q0 + h])):
                it(f"cQ{m}{h}{i}", "v", l, (f"m{m}{Q0+h}", 8))
        if m == 0:
            it("wQ", "w", f"ds_write2st64_b64 {v_m8}, {acc[0][Q0](2)}, {acc[0][Q1](2)} offset0:8 offset1:9", ("cQ011", 1))
            it("x1", "r", f"ds_write_b32 {v_xw}, {v_t2}", ("wQ", 0), ("wK0", 0), ("wK2", 0), ("wT0", 0), ("wT2", 0))
        else:
            for h in range(2):
                it(f"rQ{m}{h}", "r", f"ds_read_b64 {(acc[m][Q0+h]+2)(2)}, {v_hq[h]} offset:{m*1024}", (f"cQ{m}{h}1", 0), (f"wT{m}", 0))
    for m in MO:
        for h in range(2):
            for i, l in enumerate(cvt(vf[h] + 2 * m, acc[m][V0 + h])):
                it(f"cV{m}{h}{i}", "v", l, (f"m{m}{V0+h}", 8))
        if m != 1:
            o = 6 if m == 0 else 12
            it(f"wV{m}", "w", f"ds_write2st64_b64 {v_m8}, {(vf[0]+2*m)(2)}, {(vf[1]+2*m)(2)} offset0:{o} offset1:{o+1}", (f"cV{m}11", 1))
        if m == 2:
            it("x2", "r", f"ds_write_b32 {v_xw}, {v_t3}", ("wV0", 0), ("wV2", 0), ("x1", 0))
    for u in range(4):
        for k in range(2):
            it(f"rT{u}{k}", "r", f"ds_read_b64_tr_b16 {(vt[u]+2*k)(2)}, {v_vt[u]} offset:{((u>>1)+k)*1024}",
               (f"m1{Q1}", 0), (f"wT{(u>>1)+k}", 0))

    if SQ:
        pr = ["cT0", "wT0", "cT2", "wT2", "cK0", "wK0", "cK2", "wK2", "cQ0", "wQ", "x1"]
        if SQ == 2:
            pr += ["cV0", "wV0", "cV2", "wV2", "x2"]
        items.sort(key=lambda x: min([i for i, q_ in enumerate(pr) if x[0].startswith(q_)], default=99))

    def smm(u, k):
        t, h = u >> 1, u & 1
        bias = v_b1 if k else (v_bp if t == 0 else v_b0)
        return f"{MFMA} {sc[u][k](4)}, {acc[t+k][K0+h](4)}, {acc[t+1][Q0+h](4)}, {bias(4)}"

    SD = P("SDIST", 12)
    sq = [(f"s{u}{k}", smm(u, k), [(f"rK{(u>>1)+k}{u&1}", SD), (f"rQ{(u>>1)+1}{u&1}", SD)]) for u in (2, 3, 0, 1) for k in (1, 0)]

    ee = acc[0][Q0]
    late_ = [x for x in items if x[0].startswith(("cV1", "rT"))]
    items[:] = [x for x in items if x not in late_]
    for u in (2, 3, 0, 1):
        for i, l in enumerate(sel_ops(sc, ee, u)):
            it(f"sel{u}{i}", "v", l, (f"s{u}0", 8), (f"s{u}1", 8), ("wQ", 2))
    items += [x for x in late_ if x[0].startswith("rT")]
    gaps_ = [x[2] for x in late_ if x[0].startswith("cV1")]

    def ok(deps):
        return all(d in tdone and nst[0] - tdone[d] >= n for d, n in deps)

    def fill_slot():
        n = 2
        first = True
        while n > 0:
            cand = [x for x in items if ok(x[3]) and (x[1] != "w" or first)]
            if not cand:
                break
            x = cand[0]
            items.remove(x)
            put(x[2], x[0])
            n -= 2 if x[1] == "w" else 1
            first = False
        if n == 2 and items:
            put("s_nop 1", None, 2)

    fill = read_ops(c, 1)
    for pos, (m, tt, ks) in enumerate(seq):
        put(mm(m, tt, ks), f"m{m}{tt}" if ks else None)
        if fill:
            for _ in range(2):
                if fill:
                    put(fill.pop(0))
            continue
        fill_slot()
    print("last chunk: left over", [x[0] for x in items])
    stamp(lc, "wr")
    lc.raw("BRK:")
    while sq:
        cand = [x for x in sq if ok(x[2])]
        if cand:
            sq.remove(cand[0])
            put(cand[0][1], cand[0][0])
        before = nst[0]
        fill_slot()
        if not cand and nst[0] == before:
            put("s_nop 0")
    stamp(lc, "a1")
    while [x for x in items if x[1] == "w" or x[0] == "x2"]:
        fill_slot()
    E = [acc[1][TB] + i for i in range(4)]
    mx, sm = acc[2][TB], acc[0][TB]
    pf = [fa[u >> 1][u & 1] for u in range(4)]
    oc = [acc[1 + (u >> 1)][Q0 + (u & 1)] for u in range(4)]
    softmax_pv(lc, 2, sc, ee, E, mx, sm, pf, oc, fa[0][2], [acc[0][K0], acc[0][K1]], vf, vt,
               [x[2] for x in items if x[1] == "r"] + [x[2] for x in items if x[1] != "r"], gaps_)
    lc.lines.remove("@V@")
    rep = []
    fx = hz.fix(hz.lgkm(lc.lines), rep)
    k_ = fx.index("BRK:")
    a.lines += fx[:k_]
    wpoint("attd", skip=True, align=True)
    a.lines += fx[k_ + 1:]
    print("tail D: %d lines, %d wait states added" % (len(lc.lines), rep[0]))

    def xgate(name, val, allw=False):
        a(f"s_mov_b32 {s_tmp}, {SPIN*8}")
        a.label(f"K_XG{name}")
        if allw:
            a(f"ds_read_b128 {v_t0(4)}, {v_pf}")
        else:
            a(f"ds_read2_b32 {v_t0(2)}, {v_pf} offset0:0 offset1:1")
        if P("XSL", 1):
            a(f"s_sleep {P('XSL', 1)}")
        a(f"s_sub_u32 {s_tmp}, {s_tmp}, 1")
        a("s_waitcnt lgkmcnt(0)")
        if allw:
            a(f"v_min3_u32 {v_t0}, {v_t0}, {v_t2}, {v_t3}")
        a(f"v_min_u32 {v_t0}, {v_t0}, {v_t1}")
        a("s_nop 0")
        a(f"v_readfirstlane_b32 {s_t2}, {v_t0}")
        a("s_nop 3")
        a(f"s_cselect_b32 {s_t2}, {val}, {s_t2}")
        a(f"s_cmp_lt_u32 {s_t2}, {val}")
        a(f"s_cbranch_scc1 K_XG{name}")

    def attention_s():
        V.release(mV2)
        b = Asm()
        qf = V.many(2, 4)
        kf = [V.many(2, 4) for _ in range(2)]
        vw = V.many(2, 4)
        vt_ = V.many(2, 4)
        sc_ = [V.many(2, 4) for _ in range(2)]
        pf_, oc_ = V.many(2, 4), V.many(2, 4)
        ot_, ee_, sm_, st_ = V.many(4, 4)
        E_ = V.many(2)
        mx_ = V.a(2)
        for h in range(2):
            b(f"ds_read_b64 {qf[h](2)}, {v_m8} offset:{4096 + 512*h}")
            b(f"ds_read_b64 {(qf[h]+2)(2)}, {v_hq[h]} offset:1024")
            for k in range(2):
                b(f"ds_read_b64 {kf[h][k](2)}, {v_m8} offset:{2048*k + 512*h}")
                b(f"ds_read_b64 {(kf[h][k]+2)(2)}, {v_t16} offset:{1024*k}")
        for h in range(2):
            for k in range(2):
                b(f"{MFMA} {sc_[h][k](4)}, {kf[h][k](4)}, {qf[h](4)}, {(v_b1 if k else v_b0)(4)}")
        stamp(b, "a1")
        for u in range(2):
            for k in range(2):
                b(f"ds_read_b64_tr_b16 {(vt_[u]+2*k)(2)}, {v_vt[u]} offset:{k*1024}")
        softmax_pv(b, 1, sc_, ee_, E_, mx_, sm_, pf_, oc_, ot_, [st_], vw, vt_, sel_ops(sc_, ee_, 0) + sel_ops(sc_, ee_, 1))
        k = b.lines.index("@V@")
        a.lines += hz.fix(hz.lgkm(b.lines[:k]))
        xgate("2", 2)
        rd = [f"    ds_read_b64 {(vw[h]+2*k_)(2)}, {v_m8} offset:{1024 + 2048*k_ + 512*h}" for h in range(2) for k_ in range(2)]
        a.lines += hz.fix(hz.lgkm(rd + b.lines[k + 1:]))

    W_DR = 48

    def flagval():
        if P("SPOLL", 0):
            a(f"v_lshrrev_b32 {v_t1}, 2, {v_fo}")
            a(f"v_lshlrev_b32 {v_t1}, {v_t1}, 1")
        else:
            a(f"v_mov_b32 {v_t1}, 1")

    def arrive(name, inc):
        a(f"v_mov_b32 {v_t2}, {YB}")
        a(f"v_mov_b32 {v_t1}, {inc}")
        a("s_mov_b64 exec, 1")
        a("s_waitcnt vmcnt(0)" if name != "7" else "s_nop 0")
        a(f"ds_add_rtn_u32 {v_t0}, {v_t2}, {v_t1} offset:{W_DR}")
        a(f"s_mov_b32 exec_lo, {s_fl}")
        flagval()
        a("s_waitcnt lgkmcnt(0)")
        a(f"v_readfirstlane_b32 {s_t2}, {v_t0}")
        a("s_nop 3")
        a(f"s_and_b32 {s_t2}, {s_t2}, 0xff")
        a(f"s_cmp_lg_u32 {s_t2}, 7")
        a(f"s_cbranch_scc1 K_ARR{name}")
        a(f"global_store_dword {v_fo}, {v_t1}, {WS(2)} {SC_FLAG}")
        a.label(f"K_ARR{name}")
        a("s_mov_b64 exec, -1")

    stamp(a, "attdone")
    a(f"s_cmp_lg_u32 {s_n}, -1")
    a("s_cbranch_scc1 K_P2_EARLY")
    a.label("K_DRAIN")
    a("s_waitcnt vmcnt(0)")
    a("s_barrier")
    stamp(a, "drained")
    a("s_branch K_END")
    a.label("K_W7A")
    a("s_waitcnt vmcnt(0)")
    zpoll(5)
    arrive("7", 1)
    if P("W7G", 1):
        a(f"v_mov_b32 {v_pf}, {YB + W_X}")
        xgate("7", P("W7G", 1), True)
        a(f"v_mov_b32 {v_t2}, {YB}")
    a("s_branch K_WOE")
    a.label("K_W7")
    stamp(a, "w7i")
    a(f"v_mov_b32 {v_t1}, 0x100")
    a("s_mov_b64 exec, 1")
    a("s_waitcnt vmcnt(0)")
    a(f"ds_add_u32 {v_t2}, {v_t1} offset:{W_DR}")
    a("s_mov_b64 exec, -1")
    stamp(a, "w7l")
    a("s_branch K_P2_HELP")
    a.label("K_FLAG")
    a("s_waitcnt vmcnt(0)")
    zpoll(0)
    flagval()
    a(f"s_mov_b32 exec_lo, {s_fl}")
    a("s_mov_b32 exec_hi, 0")
    a("s_setprio 3")
    a("s_barrier")
    a(f"global_store_dword {v_fo}, {v_t1}, {WS(2)} {SC_FLAG}")
    stamp(a, "flag")
    a("s_mov_b64 exec, -1")
    a("s_branch K_END")
    wpoint("atts")
    a.label("K_JOIN_S")
    a(f"s_setprio {P('SPRIO', 0)}")
    a(f"s_cmp_eq_u32 {s_w}, 7")
    a("s_cbranch_scc1 K_FLAG")
    a(f"s_lshl_b32 {s_tmp}, {s_w}, 2")
    a(f"s_add_u32 {s_tmp}, {s_tmp}, {YB + W_X - 16}")
    a(f"v_mov_b32 {v_pf}, {s_tmp}")
    xgate("1", 1)
    stamp(a, "join")
    attention_s()
    stamp(a, "attdone")
    a(f"s_cmp_eq_u32 {s_n}, -1")
    a("s_cbranch_scc1 K_DRAIN")
    a(f"s_cmp_lg_u32 {s_w}, 6")
    a("s_cbranch_scc1 K_NOFL")
    a(f"s_waitcnt vmcnt({12 if WOE == 3 else 2})")
    zpoll(2)
    mb_sample(v_t0)
    a.label("K_NOFL")
    arrive("S", 0x101)
    stamp(a, "drained")
    a(f"s_cmp_ge_u32 {s_w}, 6")
    a("s_cbranch_scc1 K_P2_HELP")
    a("s_branch K_LATE")
    seg_l0 = len(a.lines)
    wpoint("help")
    a.label("K_LATE")
    a(f"v_mov_b32 {v_pf}, {YB + W_X}")
    xgate("L", 1, True)
    if P("LGATE", 0):
        a(f"s_mov_b32 {s_tmp}, {SPIN*8}")
        a.label("K_LG")
        a(f"ds_read_b32 {v_t0}, {v_t2} offset:{W_DR}")
        a(f"s_sub_u32 {s_tmp}, {s_tmp}, 1")
        a("s_waitcnt lgkmcnt(0)")
        a(f"v_readfirstlane_b32 {s_t2}, {v_t0}")
        a("s_nop 3")
        a(f"s_cselect_b32 {s_t2}, 8, {s_t2}")
        a(f"s_bitcmp0_b32 {s_t2}, 3")
        a("s_cbranch_scc1 K_LG")
    a(f"s_sub_u32 {s_tg}, {s_w}, 4")
    a.label("K_WOL")
    wo_blocks(v_wv, s_tg, 1, s_oo[0], s_oo[1], s_tmp, P("THR2", 14))
    a(f"s_add_u32 {s_tg}, {s_tg}, 2")
    a(f"s_cmp_lt_u32 {s_tg}, 4")
    a("s_cbranch_scc1 K_WOL")
    a(f"v_mov_b32 {v_t0}, {YB}")
    a(f"v_mov_b32 {v_t1}, 2")
    a("s_waitcnt vmcnt(0)")
    a("s_mov_b64 exec, 1")
    a(f"ds_add_u32 {v_t0}, {v_t1} offset:44")
    a("s_mov_b64 exec, -1")
    late = a.lines[seg_l0:]
    del a.lines[seg_l0:]

    seg_aux0 = len(a.lines)
    S.release(mS)
    V.release(mV)
    page()
    a.label("K_AUX")
    GA, UP, DN = 0, 40960, 81920
    KEYS = 122880
    PRE = KEYS + 256
    HB = PRE + 1024
    XS = HB + 1024
    XSP = 1344
    assert XS + 2 * XSP <= STG
    W_RT, W_K, W_P, W_D, W_R = 36, 48, 52, 56, 60
    s_j = S.a()
    s_pm = S.a(8)
    s_pg = S.a(2)
    sR, sGW = sW, sO
    sG, sU, sD = S.many(3, 4)
    s_so, s_m0, s_k1, s_k2 = S.many(4)
    s_t3 = S.a(3)
    a(f"s_load_dwordx8 {s_pm(8)}, s[0:1], 32")
    a(f"s_load_dwordx2 {s_pg(2)}, s[0:1], 64")
    a(f"s_mul_i32 {s_j}, {s_xcd}, 7")
    a(f"s_add_u32 {s_j}, {s_j}, {s_i}")
    a(f"s_sub_u32 {s_j}, {s_j}, 1")
    a(f"s_cmp_lt_u32 {s_j}, {NSL}")
    a(f"s_cselect_b32 {s_j}, {s_j}, 63")
    a(f"s_cmp_eq_u32 {s_i}, 0")
    a(f"s_cselect_b32 {s_j}, 63, {s_j}")
    v_row, v_xo, v_c16, v_gy, v_one = V.many(5)
    xr = V.a(160)
    vk = V.a(4)
    a(f"s_lshl_b32 {s_k1}, {s_xcd}, 8")
    a(f"s_lshl_b32 {s_tmp}, {s_i}, 5")
    a(f"s_add_u32 {s_k1}, {s_k1}, {s_tmp}")
    a(f"v_mov_b32 {v_gy}, {YB}")
    a(f"v_mov_b32 {v_one}, 1")

    def fgate(name, off, val, sleep=1):
        a(f"s_mov_b32 {s_tmp}, {SPIN*8}")
        a.label(f"K_FG{name}")
        a(f"ds_read_b32 {v_t0}, {v_gy} offset:{off}")
        a(f"s_sleep {sleep}")
        a(f"s_sub_u32 {s_tmp}, {s_tmp}, 1")
        a("s_waitcnt lgkmcnt(0)")
        a(f"v_readfirstlane_b32 {s_t2}, {v_t0}")
        a("s_nop 3")
        a(f"s_cselect_b32 {s_t2}, {val}, {s_t2}")
        a(f"s_cmp_lt_u32 {s_t2}, {val}")
        a(f"s_cbranch_scc1 K_FG{name}")

    def fadd(off, v=None):
        a("s_mov_b64 exec, 1")
        a(f"ds_add_u32 {v_gy}, {v or v_one} offset:{off}")
        a("s_mov_b64 exec, -1")

    a(f"s_cmp_lt_u32 {s_w}, 4")
    a("s_cbranch_scc1 K_AUX_LO")
    wr, gw = xr + 40, xr + 80
    a(f"s_lshl_b32 {s_tmp}, {s_w}, 3")
    a(f"s_add_u32 {s_tmp}, {s_tmp}, {s_k1}")
    a(f"s_sub_u32 {s_tmp}, {s_tmp}, 32")
    a(f"v_lshrrev_b32 {v_row}, 3, {v_lane}")
    a(f"v_add_u32 {v_row}, {s_tmp}, {v_row}")
    a(f"v_and_b32 {v_c16}, 7, {v_lane}")
    a(f"v_lshlrev_b32 {v_c16}, 4, {v_c16}")
    a(f"v_mul_u32_u24 {v_xo}, 1280, {v_row}")
    a(f"v_add_u32 {v_xo}, {v_xo}, {v_c16}")
    a("s_waitcnt lgkmcnt(0)")
    for j in range(10):
        a(f"buffer_load_dwordx4 {(xr+4*j)(4)}, {v_xo}, {sX(4)}, 0 offen offset:{j*128}")
    srd(a, sR, s_pm, 1280)
    srd(a, sGW, s_pg, 1280)
    for j in range(10):
        a(f"buffer_load_dwordx4 {(wr+4*j)(4)}, {v_c16}, {sR(4)}, 0 offen offset:{j*128}")
    for j in range(10):
        a(f"buffer_load_dwordx4 {(gw+4*j)(4)}, {v_c16}, {sGW(4)}, 0 offen offset:{j*128}")
    a("s_barrier")
    ar = V.many(4)
    for i in range(4):
        a(f"v_mov_b32 {ar[i]}, 0")
    v_kw = v_xo
    a(f"v_and_b32 {v_kw}, 31, {v_row}")
    a(f"v_lshlrev_b32 {v_kw}, 2, {v_kw}")
    a(f"v_add_u32 {v_kw}, {KEYS}, {v_kw}")
    a(f"v_sub_u32 {v_t2}, 0x87ff, {v_row}")
    a("s_setprio 2")
    for k, wv in enumerate((wr, gw)):
        a(f"s_waitcnt vmcnt({10 - 10*k})")
        for i in range(40):
            a(f"v_dot2c_f32_bf16 {ar[2*k + (i&1)]}, {xr+i}, {wv+i}")
    a("s_nop 2")
    a(f"v_add_f32 {ar[0]}, {ar[0]}, {ar[1]}")
    a(f"v_add_f32 {ar[2]}, {ar[2]}, {ar[3]}")
    for dpp in ("quad_perm:[1,0,3,2]", "quad_perm:[2,3,0,1]", "row_half_mirror"):
        a("s_nop 0")
        for v in (ar[0], ar[2]):
            a(f"v_add_f32_dpp {v}, {v}, {v} {dpp} row_mask:0xf bank_mask:0xf")
    bf16r(a, v_t0, ar[0])
    a(f"v_ashrrev_i32 {v_t1}, 31, {v_t0}")
    a(f"v_or_b32 {v_t1}, 0x80000000, {v_t1}")
    a(f"v_xor_b32 {v_t0}, {v_t0}, {v_t1}")
    a(f"v_and_b32 {v_t0}, 0xffff0000, {v_t0}")
    a(f"v_or_b32 {v_t0}, {v_t0}, {v_t2}")
    a(f"ds_write2_b32 {v_kw}, {v_t0}, {ar[2]} offset0:0 offset1:32")
    fadd(W_RT)
    a("s_setprio 0")
    stamp(a, "rdone")
    warm("A", s_w, 4)
    a(f"s_cmp_ge_u32 {s_w}, 6")
    a(f"s_cselect_b32 {s_j}, 63, {s_j}")
    a(f"s_cmp_lg_u32 {s_j}, 63")
    a("s_cbranch_scc1 K_FFN_C")
    fgate("H", W_K, 1, 8)
    a(f"s_cmp_eq_u32 {s_w}, 6")
    a("s_cbranch_scc1 K_P2_HELP")
    a(f"v_mov_b32 {v_smp}, 1")
    if P("PG", 0):
        fgate("PG", 44, 4, 8)
    a("s_branch K_P2_HELP")

    a.label("K_AUX_LO")
    a("s_waitcnt lgkmcnt(0)")
    a(f"s_cmp_eq_u32 {s_w}, 0")
    a("s_cbranch_scc1 K_AUX_PUB")
    a(f"s_cmp_eq_u32 {s_j}, 63")
    a("s_cbranch_scc1 K_AUX_NOF")
    v_go, v_do = V.many(2)
    s_q, s_lb = s_k1, s_k2
    a(f"s_and_b32 {s_tmp}, {s_j}, {P('GUSWAP', 1)}")
    a(f"s_cmp_eq_u32 {s_tmp}, 0")
    a(f"s_cselect_b64 {sG(2)}, {(s_pm+2)(2)}, {(s_pm+4)(2)}")
    a(f"s_cselect_b64 {sU(2)}, {(s_pm+4)(2)}, {(s_pm+2)(2)}")
    a(f"s_cselect_b32 {s_lb}, {GA}, {UP}")
    for d in (sG, sU):
        a(f"s_mov_b32 {d+2}, 0x{640*3456:x}")
        a(f"s_mov_b32 {d+3}, 0x20000")
    a(f"v_lshrrev_b32 {v_t0}, 2, {v_lane}")
    a(f"v_mul_u32_u24 {v_go}, 3456, {v_t0}")
    a(f"v_and_b32 {v_t0}, 3, {v_lane}")
    a(f"v_lshl_add_u32 {v_go}, {v_t0}, 4, {v_go}")
    a(f"s_lshl_b32 {s_so}, {s_j}, 6")
    a(f"v_add_u32 {v_go}, {s_so}, {v_go}")
    FT = P("FTHR", 8)

    def stream(name, v, d, stride, lim):
        a.label(f"K_FS{name}")
        a(f"s_lshl_b32 {s_m0}, {s_q}, 10")
        if stride:
            a(f"s_mul_i32 {s_so}, {s_q}, {stride}")
        else:
            a(f"s_and_b32 {s_so}, {s_q}, 3")
            a(f"s_mul_i32 {s_so}, {s_so}, {10240 - 32}")
            a(f"s_lshl_b32 {s_tmp}, {s_q}, 5")
            a(f"s_add_u32 {s_so}, {s_so}, {s_tmp}")
        a(f"s_add_u32 m0, {s_m0}, {s_lb}")
        a(f"s_waitcnt vmcnt({FT-1})")
        a(f"buffer_load_dwordx4 {v}, {d(4)}, {s_so} offen lds")
        a(f"s_add_u32 {s_q}, {s_q}, 3")
        a(f"s_cmp_lt_u32 {s_q}, {lim}")
        a(f"s_cbranch_scc1 K_FS{name}")

    a(f"s_sub_u32 {s_q}, {s_w}, 1")
    stream("A0", v_go, sG, 55296, 3 * P("FA0", FT))
    a("s_barrier")
    if P("FPAUSE", 1):
        fgate("PB", W_RT, 5, 1)
    stream("A", v_go, sG, 55296, 40)
    a(f"s_sub_u32 {s_q}, {s_q}, 40")
    a(f"s_xor_b32 {s_lb}, {s_lb}, {GA ^ UP}")
    srd(a, sD, s_pm + 6, 1728 * 1280)
    a(f"s_mul_i32 {s_tmp}, {s_j}, 40960")
    wo_voff(v_do, s_tmp)
    stream("B", v_go, sU, 55296, 40)
    a(f"s_sub_u32 {s_q}, {s_q}, 40")
    a(f"s_mov_b32 {s_lb}, {DN}")
    stream("D0", v_do, sD, 0, 3 * FT)
    a(f"s_waitcnt vmcnt({FT})")
    fadd(W_D)
    stamp(a, "dmad")
    stream("D", v_do, sD, 0, 40)
    if P("WTCH", 1):
        a(f"s_mul_i32 {s_tmp}, {s_i}, 96")
        a(f"s_lshl_b32 {s_so}, {s_w}, 5")
        a(f"s_add_u32 {s_tmp}, {s_tmp}, {s_so}")
        a(f"s_sub_u32 {s_tmp}, {s_tmp}, 128")
        a(f"v_lshrrev_b32 {v_t0}, 1, {v_lane}")
        a(f"v_add_u32 {v_t0}, {s_tmp}, {v_t0}")
        a(f"v_mul_u32_u24 {v_t0}, 1280, {v_t0}")
        a(f"v_and_b32 {v_t1}, 1, {v_lane}")
        a(f"v_lshl_add_u32 {v_t0}, {v_t1}, 7, {v_t0}")
        a(f"buffer_load_dword {v_pf}, {v_t0}, {sWO(4)}, 0 offen offset:1024")
    a.label("K_AUX_WR")
    if P("WG3", 0):
        a("s_waitcnt vmcnt(0)")
        fadd(W_P)
        if P("WG3", 0) == 1:
            fgate("W3", W_P, 5, 4)
        else:
            fgate("W3", W_K, 1, 4)
    fgate("R", W_R, 2, 2)
    a("s_branch K_P2")

    a.label("K_AUX_NOF")
    a("s_cmp_lg_u32 s2, 63")
    a("s_cbranch_scc1 K_AUX_NOZ")
    a(f"s_cmp_lg_u32 {s_w}, 1")
    a("s_cbranch_scc1 K_AUX_NOZ")
    srd(a, sG, WS, ZBYTES, FL_OFF)
    v_ea, v_tag = v_row, v_xo
    a(f"v_mov_b32 {v_ea}, {EPO}")
    a(f"global_load_dword {v_tag}, {v_ea}, {WS(2)} {SC_POLL}")
    A2S = P("A2S", 4)
    a(f"v_lshlrev_b32 {v_c16}, {A2S}, {v_lane}")
    a(f"v_add_u32 {v_c16}, {AG2}, {v_c16}")
    if P("A2T", 1):
        a(f"global_load_dword {v_pf}, {v_c16}, {WS(2)} {SC_POLL}")
    a("s_barrier")
    fgate("Z", W_RT, 4, 2)
    zaddr(v_t2)
    zsample(v_t2)
    a("s_waitcnt vmcnt(1)")
    a(f"v_add_u32 {v_tag}, 1, {v_tag}")
    a(f"s_mov_b32 {s_tmp}, {SPIN}")
    a("s_setprio 3")
    a.label("K_AG2_POLL")
    a(f"global_load_dwordx4 {xr(4)}, {v_c16}, {WS(2)} {SC_POLL}")
    a("s_waitcnt vmcnt(0)")
    a(f"v_xor_b32 {v_t0}, {v_tag}, {xr+1}")
    a(f"v_xor_b32 {v_t1}, {v_tag}, {xr+3}")
    a(f"v_or_b32 {v_t0}, {v_t0}, {v_t1}")
    a(f"v_cmp_ne_u32 vcc, 0, {v_t0}")
    a("s_cbranch_vccz K_AG2_GOT")
    a(f"s_sleep {P('ASLEEP', 2)}")
    a(f"s_sub_u32 {s_tmp}, {s_tmp}, 1")
    a(f"s_cmp_lg_u32 {s_tmp}, 0")
    a("s_cbranch_scc1 K_AG2_POLL")
    a.label("K_AG2_GOT")
    wave_max_u32(a, xr, v_t1, s_k1, s_t3)
    a(f"v_cmp_ne_u32 vcc, {s_k1}, {xr}")
    a("s_nop 1")
    a(f"v_cndmask_b32 {v_t0}, {xr+2}, {xr}, vcc")
    wave_max_u32(a, v_t0, v_t1, s_k2, s_t3)
    a(f"v_mov_b32 {vk}, {s_k1}")
    a(f"v_mov_b32 {vk+1}, {s_k2}")
    zpoll(4)
    a(f"v_and_b32 {v_t0}, 7, {v_lane}")
    a(f"v_mul_u32_u24 {v_t0}, 20, {v_t0}")
    a(f"v_lshrrev_b32 {v_t1}, 3, {v_lane}")
    a(f"v_add_lshl_u32 {v_t0}, {v_t0}, {v_t1}, 8")
    a(f"buffer_store_dwordx2 {vk(2)}, {v_t0}, {sG(4)}, 0 offen offset:136 {SC_FLAG}")
    stamp(a, "agg2")
    a("s_mov_b64 exec, 1")
    a(f"global_store_dword {v_ea}, {v_tag}, {WS(2)} {SC_FLAG}")
    a("s_mov_b64 exec, -1")
    a(f"v_lshlrev_b32 {v_t2}, 2, {v_lane}")
    a(f"s_mov_b32 {s_so}, {AGG}")
    a(f"s_mov_b32 {s_tmp}, {SPIN}")
    a.label("K_AGG_POLL")
    a(f"s_sleep {P('ASLEEP2', 8)}")
    a(f"buffer_load_dword {v_t0}, {v_t2}, {sG(4)}, {s_so} offen {SC_POLL}")
    a("s_waitcnt vmcnt(0)")
    a(f"v_cmp_eq_u32 vcc, 0, {v_t0}")
    a("s_cbranch_vccz K_AGG_GOT")
    a(f"s_sub_u32 {s_tmp}, {s_tmp}, 1")
    a(f"s_cmp_lg_u32 {s_tmp}, 0")
    a("s_cbranch_scc1 K_AGG_POLL")
    a.label("K_AGG_GOT")
    a(f"s_mov_b32 {sG+2}, {YFL}")
    a(f"v_lshlrev_b32 {v_t1}, 8, {v_lane}")
    for k in range(3):
        a(f"s_mov_b32 {s_tmp}, {k*64*256}")
        a(f"buffer_store_dwordx2 {vk(2)}, {v_t1}, {sG(4)}, {s_tmp} offen offset:128 {SC_FLAG}")
    a("s_setprio 0")
    stamp(a, "agg")
    a("s_branch K_AUX_NOK")
    a.label("K_AUX_NOZ")
    a("s_barrier")
    a.label("K_AUX_NOK")
    if P("WDEF", 1):
        fgate("WD", W_K, 1, 4)
    a("s_branch K_P2")

    a.label("K_AUX_PUB")
    srd(a, sG, WS, 8192, G_OFF)
    a(f"v_and_b32 {v_t1}, 31, {v_lane}")
    a(f"v_lshlrev_b32 {v_xo}, 2, {v_t1}")
    a(f"v_add_u32 {v_c16}, {KEYS}, {v_xo}")
    a(f"s_lshl_b32 {s_so}, {s_k1}, 2")
    vq = xr
    a(f"v_mov_b32 {v_t0}, {EPO}")
    a(f"global_load_dword {vq+1}, {v_t0}, {WS(2)} {SC_POLL}")
    a(f"s_lshl_b32 {s_tmp}, s2, 2")
    a(f"s_add_u32 {s_tmp}, {s_tmp}, {FL_OFF + AGG}")
    a(f"v_mov_b32 {v_row}, {s_tmp}")
    a(f"s_lshl_b32 {s_tmp}, s2, {A2S}")
    a(f"s_add_u32 {s_tmp}, {s_tmp}, {AG2}")
    a(f"v_lshl_add_u32 {vq+4}, {v_lane}, 4, {s_tmp}")
    zaddr(v_t3)
    a("s_barrier")
    a("s_setprio 3")
    a("s_waitcnt vmcnt(0)")
    a(f"v_add_u32 {vq+1}, 1, {vq+1}")
    a(f"v_mov_b32 {vq+3}, {vq+1}")
    fgate("RT", W_RT, 4, 0)
    a(f"ds_read2_b32 {vk(2)}, {v_c16} offset0:0 offset1:32")
    a("s_waitcnt lgkmcnt(0)")
    wave_top2(a, vk, v_t1, s_k1, s_k2, s_t3)
    a(f"v_mov_b32 {vq}, {s_k1}")
    a(f"v_mov_b32 {vq+2}, {s_k2}")
    a(f"s_mov_b64 exec, {(1 << (1 << (A2S - 4))) - 1}")
    a(f"global_store_dwordx4 {vq+4}, {vq(4)}, {WS(2)} {SC_FLAG}")
    a("s_mov_b64 exec, -1")
    fadd(W_RT)
    stamp(a, "pub")
    zsample(v_t3)
    bf16r(a, vk + 1, vk + 1)
    sigmoid(a, vk + 1, vk + 1, v_t1)
    bf16r(a, vk + 1, vk + 1)
    a("s_mov_b32 exec_hi, 0")
    a(f"buffer_store_dword {vk+1}, {v_xo}, {sG(4)}, {s_so} offen {SC_ST}")
    a("s_mov_b64 exec, -1")
    a("s_waitcnt vmcnt(0)")
    zpoll(3)
    a("s_mov_b64 exec, 1")
    a(f"global_store_dword {v_row}, {v_one}, {WS(2)} {SC_FLAG}")
    a("s_mov_b64 exec, -1")
    a(f"v_and_b32 {v_t1}, 1, {v_lane}")
    a(f"v_lshl_add_u32 {v_t1}, {v_t1}, 2, {s_mb}")
    a(f"v_lshlrev_b32 {v_xo}, 4, {v_lane}")
    a(f"s_mov_b32 {s_tmp}, {SPIN}")
    a.label("K_AUX_POLL")
    a(f"s_sleep {P('KSLEEP', 6)}")
    a(f"global_load_dword {v_t0}, {v_t1}, {WS(2)} offset:136 {SC_POLL}")
    a("s_waitcnt vmcnt(0)")
    a(f"v_cmp_eq_u32 vcc, 0, {v_t0}")
    a("s_cbranch_vccz K_AUX_GOT")
    a(f"s_sub_u32 {s_tmp}, {s_tmp}, 1")
    a(f"s_cmp_lg_u32 {s_tmp}, 0")
    a("s_cbranch_scc1 K_AUX_POLL")
    a.label("K_AUX_GOT")
    stamp(a, "polled")
    a(f"v_readlane_b32 {s_k1}, {v_t0}, 0")
    a(f"v_readlane_b32 {s_k2}, {v_t0}, 1")
    a("s_nop 3")
    for t, sk in enumerate((s_k1, s_k2)):
        a(f"s_and_b32 {sk}, {sk}, 0x7ff")
        a(f"s_sub_u32 {sk}, 2047, {sk}")
        a(f"s_mul_i32 {sk}, {sk}, 1280")
        a(f"s_mov_b32 m0, {XS + t*XSP}")
        a("s_nop 0")
        a(f"buffer_load_dwordx4 {v_xo}, {sX(4)}, {sk} offen lds")
        a("s_mov_b64 exec, 0xffff")
        a(f"buffer_load_dwordx4 {v_xo}, {sX(4)}, {sk} offen offset:1024 lds")
        a("s_mov_b64 exec, -1")
    a("s_waitcnt vmcnt(0)")
    a(f"ds_write_b32 {v_gy}, {v_one} offset:{W_K}")
    a("s_setprio 0")
    stamp(a, "xsel")
    a("s_branch K_P2")

    page()
    a.label("K_FFN_C")
    srd(a, sU, WS, YP_BYTES, YP_OFF)
    wf, df, yf = xr, xr, xr + 80
    xf = V.many(8, 4)
    pacc = V.many(2, 4)
    hv = V.a(4)
    v_g, v_wa, v_xa, v_hw, v_hr, v_yo = V.many(6)
    v_da = V.many(4)
    a(f"s_and_b32 {s_m0}, {s_w}, 1")
    a(f"v_lshrrev_b32 {v_g}, 4, {v_lane}")
    a(f"v_bfe_u32 {v_t2}, {v_lane}, 2, 2")
    a(f"v_lshl_add_u32 {v_t0}, {v_g}, 3, {v_t2}")
    a(f"v_and_b32 {v_t1}, 3, {v_lane}")
    a(f"v_lshlrev_b32 {v_t1}, 3, {v_t1}")
    a(f"v_lshl_add_u32 {v_wa}, {v_t0}, 6, {v_t1}")
    a(f"s_lshl_b32 {s_so}, {s_m0}, 5")
    assert GA == 0
    a(f"v_add_u32 {v_wa}, {s_so}, {v_wa}")
    a(f"v_lshl_add_u32 {v_t0}, {v_g}, 2, {v_t2}")
    a(f"v_bfe_u32 {v_t2}, {v_t0}, 1, 2")
    a(f"v_lshl_add_u32 {v_t1}, {v_t0}, 7, {v_t1}")
    a(f"v_lshl_add_u32 {v_t1}, {v_t2}, 5, {v_t1}")
    a(f"s_mul_i32 {s_tmp}, {s_m0}, {5*4096}")
    a(f"s_add_u32 {s_tmp}, {s_tmp}, {DN}")
    a(f"v_add_u32 {v_da[0]}, {s_tmp}, {v_t1}")
    for u in range(1, 4):
        a(f"v_xor_b32 {v_da[u]}, {u*32}, {v_da[0]}")
    a(f"v_and_b32 {v_t0}, 1, {v_lane}")
    a(f"v_mul_u32_u24 {v_xa}, {XSP}, {v_t0}")
    a(f"v_lshl_add_u32 {v_xa}, {v_g}, 4, {v_xa}")
    a(f"v_add_u32 {v_xa}, {XS}, {v_xa}")
    a(f"v_lshlrev_b32 {v_hr}, 4, {v_lane}")
    a(f"v_add_u32 {v_hr}, {HB}, {v_hr}")
    a(f"s_lshl_b32 {s_tmp}, {s_m0}, 3")
    a(f"v_add_u32 {v_hw}, {s_tmp}, {v_hr}")
    a(f"v_mul_u32_u24 {v_t0}, 2560, {v_t0}")
    a(f"v_lshl_add_u32 {v_yo}, {v_g}, 4, {v_t0}")
    a(f"s_mul_i32 {s_tmp}, {s_j}, 5120")
    a(f"s_mul_i32 {s_so}, {s_m0}, 1280")
    a(f"s_add_u32 {s_so}, {s_so}, {s_tmp}")
    a(f"v_lshlrev_b32 {v_t0}, 4, {v_lane}")
    for t in range(2):
        a(f"buffer_store_dwordx4 {xr(4)}, {v_t0}, {sU(4)}, {s_so} offen offset:{t*2560} {SC_ST}")
    a("s_mov_b64 exec, 0xffff")
    for t in range(2):
        a(f"buffer_store_dwordx4 {xr(4)}, {v_t0}, {sU(4)}, {s_so} offen offset:{t*2560 + 1024} {SC_ST}")
    a("s_mov_b64 exec, -1")
    a(f"v_add_u32 {v_t3}, {UP}, {v_wa}")
    fgate("D", W_D, 3, 2)
    a("s_setprio 3")
    for k, va_ in enumerate((v_wa, v_t3)):
        for q in range(20):
            for h in range(2):
                a(f"ds_read_b64_tr_b16 {(wf+80*k+4*q+2*h)(2)}, {va_} offset:{q*2048 + h*256}")
    a("s_waitcnt vmcnt(0) lgkmcnt(0)")
    fadd(W_R)
    fgate("K", W_K, 1)
    stamp(a, "fgo")
    for q in range(7):
        a(f"ds_read_b128 {xf[q](4)}, {v_xa} offset:{q*64}")
    for q in range(20):
        if q + 7 < 20:
            a(f"ds_read_b128 {xf[(q+7)%8](4)}, {v_xa} offset:{(q+7)*64}")
        a(f"s_waitcnt lgkmcnt({min(7, 19 - q)})")
        for k in range(2):
            a(f"{MFMA} {pacc[k](4)}, {(wf+80*k+4*q)(4)}, {xf[q%8](4)}, {'0' if q == 0 else pacc[k](4)}")
    fgate("DN", W_P, 3)
    stamp(a, "pre")
    NP = 7
    f_ = Asm()
    for q in range(NP):
        for h in range(2):
            f_(f"ds_read_b64_tr_b16 {(df+4*q+2*h)(2)}, {v_da[q&3]} offset:{(q>>2)*4096 + h*2048}")
    ga, ua, sg = pacc[0], pacc[1], xf[0]
    for k in range(2):
        for h in range(2):
            f_(f"v_cvt_pk_bf16_f32 {pacc[k]+2*h+1}, {pacc[k]+2*h}, {pacc[k]+2*h+1}")
            f_(f"v_lshlrev_b32 {pacc[k]+2*h}, 16, {pacc[k]+2*h+1}")
            f_(f"v_and_b32 {pacc[k]+2*h+1}, 0xffff0000, {pacc[k]+2*h+1}")
    for i in range(4):
        f_(f"v_mul_f32 {sg+i}, 0x{LOG2E ^ 0x80000000:x}, {ga+i}")
    for i in range(4):
        f_(f"v_exp_f32 {sg+i}, {sg+i}")
    for i in range(4):
        f_(f"v_add_f32 {sg+i}, 1.0, {sg+i}")
    for i in range(4):
        f_(f"v_rcp_f32 {sg+i}, {sg+i}")
    for i in range(4):
        f_(f"v_mul_f32 {ga+i}, {ga+i}, {sg+i}")
    for h in range(2):
        f_(f"v_cvt_pk_bf16_f32 {ga+2*h+1}, {ga+2*h}, {ga+2*h+1}")
        f_(f"v_lshlrev_b32 {ga+2*h}, 16, {ga+2*h+1}")
        f_(f"v_and_b32 {ga+2*h+1}, 0xffff0000, {ga+2*h+1}")
    for i in range(4):
        f_(f"v_mul_f32 {ga+i}, {ga+i}, {ua+i}")
    for h in range(2):
        f_(f"v_cvt_pk_bf16_f32 {hv+h}, {ga+2*h}, {ga+2*h+1}")
    f_(f"ds_write_b64 {v_hw}, {hv(2)}")
    a.lines += hz.fix(f_.lines)
    fadd(W_P)
    for q in range(NP, 20):
        for h in range(2):
            a(f"ds_read_b64_tr_b16 {(df+4*q+2*h)(2)}, {v_da[q&3]} offset:{(q>>2)*4096 + h*2048}")
    fgate("P", W_P, 5, 0)
    a(f"ds_read_b128 {hv(4)}, {v_hr}")
    a("s_waitcnt lgkmcnt(0)")
    for q in range(20):
        a(f"{MFMA} {(yf+4*q)(4)}, {(df+4*q)(4)}, {hv(4)}, 0")
    a("s_mov_b32 exec_lo, 0x00030003")
    a("s_mov_b32 exec_hi, 0x00030003")
    for q in range(20):
        a(f"buffer_store_dwordx4 {(yf+4*q)(4)}, {v_yo}, {sU(4)}, {s_so} offen offset:{q*64} {SC_ST}")
    a("s_mov_b64 exec, -1")
    a(f"s_mul_i32 {s_tmp}, {s_m0}, {10*256}")
    a(f"s_lshl2_add_u32 {s_tmp}, {s_j}, {s_tmp}")
    a(f"s_add_u32 {s_tmp}, {s_tmp}, {FL_OFF + YF2}")
    a(f"v_lshl_add_u32 {v_t0}, {v_lane}, 8, {s_tmp}")
    a("s_mov_b64 exec, 0x3ff")
    a("s_waitcnt vmcnt(0)")
    stamp(a, "ydone")
    a(f"global_store_dword {v_t0}, {v_one}, {WS(2)} {SC_FLAG}")
    a("s_mov_b64 exec, -1")
    a("s_branch K_P2_HELP")
    seg_aux1 = len(a.lines)

    S.release(mS)
    V.release(mV)
    sG, sY, sOut = sW, S.a(4), S.a(4)
    s_so, s_tg, s_row0, s_c20 = S.many(4)
    s_sel = S.a(2)
    s_k1, s_k2 = S.many(2)
    s_t3 = S.a(3)
    s_rdy, s_sh0, s_sh1, s_done, s_c16 = S.many(5)
    s_q4 = ["0"] + S.many(3)
    v_g, v_fa, v_da, v_yb = V.many(4)
    vsel = V.a(4)
    mV3 = V.mark()
    W_Y = 64
    v_r, v_c, v_wo, v_go, v_n0 = V.many(5)
    v_oo = V.many(2)
    v_so = V.many(2)
    v_sa = V.many(4)
    v_sr, v_inc = V.many(2)
    v_ot2 = V.many(2)
    xv = [V.many(2, 4) for _ in range(2)]
    s_ob = S.many(4)
    PERM = [0, 2, 5, 7, 1, 3, 4, 6]
    va, vt = V.many(4), V.many(4)
    gv, om = V.many(2, 2), V.many(2, 2)
    bx = [V.many(4, 4) for _ in range(2)]

    def p2_common():
        a(f"s_lshl_b32 {s_row0}, {s_rt2}, 7")
        a(f"v_lshrrev_b32 {v_g}, 4, {v_lane}")
        a(f"v_mov_b32 {v_yb}, {YB}")

    def p2_gemm_setup():
        p2_common()
        srd(a, sO, WS, O_BYTES, O_OFF)
        srd(a, sG, WS, 8192, G_OFF)
        srd(a, sOut, s_po, X_BYTES)
        a(f"s_lshl_b32 {s_tg}, {s_rt2}, 3")
        a(f"s_lshl1_add_u32 {s_tg}, {s_w}, {s_tg}")
        a(f"s_mov_b32 {s_c20}, 20480")
        a(f"v_bfe_u32 {v_r}, {v_lane}, 2, 2")
        a(f"v_and_b32 {v_c}, 3, {v_lane}")
        a(f"s_mul_i32 {s_tmp}, {s_tg}, 20480")
        a(f"v_lshl_add_u32 {v_oo[0]}, {v_lane}, 4, {s_tmp}")
        a(f"v_add_u32 {v_oo[1]}, 20480, {v_oo[0]}")
        for m in range(2):
            a(f"v_add_u32 {v_ot2[m]}, 16384, {v_oo[m]}")
        a(f"v_and_b32 {v_t0}, 15, {v_lane}")
        a(f"s_lshl_b32 {s_tmp}, {s_tg}, 6")
        a(f"v_lshl_add_u32 {v_go}, {v_t0}, 2, {s_tmp}")
        a(f"v_lshl_add_u32 {v_t0}, {v_g}, 2, {v_r}")
        a(f"v_bfe_u32 {v_t1}, {v_t0}, 1, 2")
        a(f"v_lshlrev_b32 {v_t0}, 7, {v_t0}")
        a(f"v_lshl_add_u32 {v_t0}, {v_c}, 3, {v_t0}")
        assert WO_L == 0
        a(f"v_lshl_add_u32 {v_n0}, {v_t1}, 5, {v_t0}")
        a(f"v_lshrrev_b32 {v_t1}, 1, {v_r}")
        a(f"v_mul_u32_u24 {v_t0}, 40, {v_g}")
        a(f"v_add3_u32 {v_t0}, {v_t0}, 16, {v_r}")
        a(f"v_lshlrev_b32 {v_t0}, 7, {v_t0}")
        a(f"v_lshl_add_u32 {v_t0}, {v_c}, 3, {v_t0}")
        for t in range(4):
            a(f"v_xor_b32 {v_t2}, {t}, {v_t1}")
            a(f"v_lshl_add_u32 {vt[t]}, {v_t2}, 5, {v_t0}")
        row_lanes(v_so)
        x_base(s_ob[0], s_w)
        for j in range(1, 4):
            a(f"s_add_u32 {s_ob[j]}, {s_ob[0]}, {j*10240}")
        a(f"s_lshl_b32 {s_tmp}, {s_w}, 12")
        a(f"s_add_u32 {s_tmp}, {s_tmp}, {STG}")
        a(f"v_lshl_add_u32 {v_sr}, {v_lane}, 4, {s_tmp}")
        a(f"v_and_b32 {v_t0}, 15, {v_lane}")
        a(f"v_lshrrev_b32 {v_t1}, 1, {v_t0}")
        a(f"v_lshrrev_b32 {v_t2}, 5, {v_lane}")
        a(f"v_xor_b32 {v_t1}, {v_t1}, {v_t2}")
        a(f"v_lshlrev_b32 {v_t1}, 4, {v_t1}")
        a(f"v_lshl_add_u32 {v_t1}, {v_t0}, 7, {v_t1}")
        a(f"v_and_b32 {v_t2}, 1, {v_g}")
        a(f"v_lshl_add_u32 {v_t1}, {v_t2}, 3, {v_t1}")
        a(f"v_add_u32 {v_sa[0]}, {s_tmp}, {v_t1}")
        assert STG % 128 == 0
        for t in range(1, 4):
            a(f"v_xor_b32 {v_sa[t]}, {t*32}, {v_sa[0]}")
        a(f"s_and_b32 {s_t2}, {s_rt2}, 3")
        a(f"s_lshl_b32 {s_t2}, {s_t2}, 3")
        a(f"s_lshr_b32 {s_t2}, 0x7f06037f, {s_t2}")
        a(f"s_and_b32 {s_t2}, {s_t2}, 0xff")
        a(f"s_lshl_b32 {s_tmp}, {s_w}, 1")
        a(f"s_cmp_ge_u32 {s_tmp}, {s_t2}")
        a(f"s_cselect_b32 {s_sh0}, 16, 0")
        a(f"s_add_u32 {s_tmp}, {s_tmp}, 1")
        a(f"s_cmp_ge_u32 {s_tmp}, {s_t2}")
        a(f"s_cselect_b32 {s_sh1}, 16, 0")
        a(f"s_mov_b32 {s_rdy}, 0")
        a(f"s_mov_b32 {s_done}, 0")
        a(f"s_mov_b32 {s_c16}, 16384")
        if P("P2ROT", 0):
            a(f"s_mul_i32 {s_q4[1]}, {s_ct}, {P('P2ROT', 0)}")
            a(f"s_and_b32 {s_q4[1]}, {s_q4[1]}, 7")
        if not P("DYN", 1):
            for u in range(1, 4):
                a(f"s_mov_b32 {s_q4[u]}, {u*4096}")

    def x_unpack():
        for m in range(2):
            for t in range(4):
                a(f"ds_read_b64 {(xv[m][t>>1]+2*(t&1))(2)}, {v_sa[t]} offset:{m*2048}")
        for m in range(2):
            a(f"s_waitcnt lgkmcnt({4 - 4*m})")
            for p_ in range(2):
                x_ = xv[m][p_]
                for i in range(4):
                    d = bx[m][2*p_ + (i >> 1)] + 2 * (i & 1)
                    a(f"v_lshlrev_b32 {d}, 16, {x_+i}")
                    a(f"v_and_b32 {d+1}, 0xffff0000, {x_+i}")

    def lgate(name, off, val, sleep=0, o=None, mask=None):
        o = o or a
        o(f"s_mov_b32 {s_tmp}, {SPIN*8}")
        o.label(f"K_P2_G{name}")
        o(f"ds_read_b32 {v_t0}, {v_yb} offset:{off}")
        if sleep:
            o(f"s_sleep {sleep}")
        o(f"s_sub_u32 {s_tmp}, {s_tmp}, 1")
        o("s_waitcnt lgkmcnt(0)")
        o(f"v_readfirstlane_b32 {s_t2}, {v_t0}")
        o("s_nop 3")
        o(f"s_cselect_b32 {s_t2}, {val}, {s_t2}")
        if mask:
            o(f"s_and_b32 {s_t2}, {s_t2}, {mask}")
        o(f"s_cmp_lt_u32 {s_t2}, {val}")
        o(f"s_cbranch_scc1 K_P2_G{name}")

    wpoint("early")
    a.label("K_P2_EARLY")
    p2_gemm_setup()
    a(f"v_mov_b32 {v_inc}, 0")
    arrive("D", 1)
    stamp(a, "drained")
    lgate("E", W_DR, 0x400)
    a.label("K_P2_GEMM")
    if P("P2XS", -1) >= 0:
        x_unpack()
    a(f"s_setprio {P('GPRIO', 0)}")
    stamp(a, "p2in")
    NB = P("P2NB", 3)
    RO = P("P2RO", 6)
    OA = P("P2OA", 5)
    assert NB <= OA <= RO
    assert RO > OA
    DYN = P("DYN", 1)
    s_of = S.many(OA - NB + 2)
    of = [V.many(2, 4) for _ in range(RO)]
    acc = [V.many(4, 4) for _ in range(2)]
    fb = [V.many(4, 4) for _ in range(NB)]
    TAIL = {8: 0, 9: 1, 18: 2, 19: 3}
    DT = DYN and P("DTAIL", 1)
    if DT:
        TAIL = {7: 0, 9: 1, 17: 2, 19: 3}
    SPOS = [0, 4, 1, 5, 2, 6, 3, 7]
    spin = Asm()
    wpoint("spin", asm=spin, align=True)
    VQ, LQ = [], []

    def fetch(r_):
        r_(f"ds_read_b32 {v_t0}, {v_yb} offset:32")
        r_("s_waitcnt lgkmcnt(0)")
        r_(f"v_readfirstlane_b32 {s_t2}, {v_t0}")
        r_("s_nop 3")
        r_(f"s_lshr_b32 {s_rdy}, {s_t2}, {s_sh0}")
        r_(f"s_lshr_b32 {s_t2}, {s_t2}, {s_sh1}")
        r_(f"s_and_b32 {s_rdy}, {s_rdy}, {s_t2}")

    def oload(s):
        L = []
        so, off = s_of[s % len(s_of)], 0
        if s in TAIL and DT:
            u0 = TAIL[s] & 2
            if s % 10 == 7:
                L += [f"s_andn2_b32 {s_t2}, {s_done}, {s_rdy}", f"s_bfe_u32 {s_t2}, {s_t2}, 0x{(4 << 16) | (4 * u0):x}",
                      f"s_cmp_eq_u32 {s_t2}, 15", f"s_cselect_b32 {so}, 0, 1024", f"s_xor_b32 {s_q4[2]}, {so}, 1024"]
            else:
                so = s_q4[2]
            off = u0 * 1024
            L = [(None, None, l) for l in L]
            for m in range(2):
                L.append(("v", s, f"buffer_load_dwordx4 {of[s % RO][m](4)}, {v_ot2[m]}, {sO(4)}, {so} offen offset:{off} {SC_LD}"))
            return L
        elif s in TAIL:
            so, off = s_c16, TAIL[s] * 1024
        elif DYN:
            L += [f"s_cmp_eq_u32 {s_rdy}, 0", f"s_cbranch_scc1 K_SP{s}\nK_SPR{s}:", f"s_ff1_i32_b32 {s_t2}, {s_rdy}",
                  f"s_bitset0_b32 {s_rdy}, {s_t2}"]
            if P("P2ROT", 0):
                L.append(f"s_xor_b32 {s_t2}, {s_t2}, {s_q4[1]}")
            L.append(f"s_lshl_b32 {so}, {s_t2}, 10")
            spin.label(f"K_SP{s}")
            fetch(spin)
            spin(f"s_and_b32 {s_rdy}, {s_rdy}, 0x{0xff00 if s > 9 else 0xff:x}")
            spin(f"s_andn2_b32 {s_rdy}, {s_rdy}, {s_done}")
            spin(f"s_cbranch_scc0 K_SP{s}")
            spin(f"s_or_b32 {s_done}, {s_done}, {s_rdy}")
            spin(f"s_branch K_SPR{s}")
        else:
            ps = SPOS[s % 10] + (8 if s > 9 else 0)
            so, off = (s_q4[ps >> 2], (ps & 3) * 1024)
            L += [f"s_bitcmp0_b32 {s_rdy}, {ps}", f"s_cbranch_scc1 K_SP{s}\nK_SPR{s}:"]
            spin.label(f"K_SP{s}")
            fetch(spin)
            spin(f"s_bitcmp0_b32 {s_rdy}, {ps}")
            spin(f"s_cbranch_scc1 K_SP{s}")
            spin(f"s_branch K_SPR{s}")
        L = [(None, None, l) for l in L]
        for m in range(2):
            L.append(("v", s, f"buffer_load_dwordx4 {of[s % RO][m](4)}, {v_oo[m]}, {sO(4)}, {so} offen offset:{off} {SC_LD}"))
        return L

    def read_list(s):
        b = s % NB
        L = []
        if s in TAIL and DT:
            n_, off = va, (TAIL[s] & 2) * 20480
            so = s_of[s % len(s_of)] if s % 10 == 7 else s_q4[2]
            L.append((None, None, f"v_mad_u32_u24 {va[0]}, {so}, 20, {vt[0]}"))
            L += [(None, None, f"v_xor_b32 {va[t]}, {t*32}, {va[0]}") for t in (2, 1, 3)]
        elif s in TAIL:
            n_, off = vt, TAIL[s] * 20480
        elif DYN:
            n_, off = va, 0
            L.append((None, None, f"v_mad_u32_u24 {va[0]}, {s_of[s % len(s_of)]}, 5, {v_n0}"))
            L += [(None, None, f"v_xor_b32 {va[t]}, {t*32}, {va[0]}") for t in (2, 1, 3)]
        else:
            n_, off = va, SPOS[s % 10] * 5120
            if s == 10:
                L += [(None, None, f"v_add_u32 {va[t]}, 40960, {va[t]}") for t in range(4)]
        for t in range(4):
            L.append(("l", s, f"ds_read_b64_tr_b16 {fb[b][t](2)}, {n_[t]} offset:{off}"))
            L.append(("l", s, f"ds_read_b64_tr_b16 {(fb[b][t]+2)(2)}, {n_[t^2]} offset:{off + 2560}"))
        return L

    def emit(tl):
        for kind, tag, l in tl:
            for x_ in l.split("\n"):
                if x_.endswith(":"):
                    a.label(x_[:-1])
                else:
                    a(x_)
            if kind:
                (VQ if kind == "v" else LQ).append(tag)

    def wait_step(tag):
        w = []
        for q, nm, cap in ((VQ, "vmcnt", 63), (LQ, "lgkmcnt", 15)):
            idx = [i for i, t in enumerate(q) if t == tag]
            if idx:
                n = min(len(q) - 1 - idx[-1], cap)
                w.append(f"{nm}({n})")
                del q[:len(q) - n]
        a("s_waitcnt " + " ".join(w))

    EP = []
    for m in range(2):
        EP += [f"v_sub_f32 {om[m]}, 1.0, {gv[m]}", f"v_cvt_pk_bf16_f32 {om[m]}, {om[m]}, {om[m]}", f"v_lshlrev_b32 {om[m]}, 16, {om[m]}"]
    for m in range(2):
        for t in range(4):
            for h in range(2):
                d = bx[m][t] + 2 * h
                EP.append(f"v_pk_mul_f32 {d(2)}, {d(2)}, {om[m](2)} op_sel_hi:[1,0]")
    if not DYN:
        for t in range(4):
            a(f"v_xor_b32 {va[t]}, {t*32}, {v_n0}")
        for s in range(NB - 1):
            emit(read_list(s))
    if P("ALLW", 0):
        lgate("ALL", 32, -1)
        a("s_sleep 32")
    XS = P("P2XS", -1)
    if XS < 0:
        lgate("S", 40, 1)
        for m in range(2):
            a(f"buffer_load_dword {gv[m]}, {v_go}, {sG(4)}, 0 offen offset:{64*m} {SC_LD}")
        a(f"ds_read_b128 {vsel(4)}, {v_yb}")
        del LQ[:]
        x_unpack()
    for s in range(OA):
        emit(oload(s))
        if s == 0:
            stamp(a, "p2goA")
        if s < NB - 1 and DYN:
            emit(read_list(s))
        if s == P("P2SC", 1) and XS < 0:
            a(f"s_waitcnt vmcnt({len(VQ)})")
            a("s_mov_b64 exec, 1")
            a(f"ds_add_u32 {v_yb}, {v_inc} offset:44")
            a("s_mov_b64 exec, -1")
            LQ.append("add")
            while EP:
                a(EP.pop(0))
    wpoint("p2g", skip=True, align=True)
    YS = P("P2YS", 15)
    rare = Asm()
    for s in range(20):
        stamp(a, f"s{s}")
        if s == XS:
            lgate("S", 40, 1)
            for m in range(2):
                a(f"buffer_load_dword {gv[m]}, {v_go}, {sG(4)}, 0 offen offset:{64*m} {SC_LD}")
            a(f"ds_read_b128 {vsel(4)}, {v_yb}")
            VQ.extend(["x"] * 2)
            del LQ[:]
            LQ.append("sel")
        if s - 1 + NB == 10:
            lgate("W", 44, 4)
            del LQ[:]
            assert s > XS
            for k in range(2):
                a(f"v_readfirstlane_b32 {s_sel+k}, {vsel+k}")
            a(f"s_lshl_b32 {s_k1}, {s_tg}, 4")
            stamp(a, "p2w2")
        if s == 18:
            break
        wait_step(s)
        F = (read_list(s - 1 + NB) if s - 1 + NB < 20 else []) + (oload(s + OA) if s + OA < 20 else [])
        if s >= YS:
            assert "x" not in VQ
            while len(F) < 16 and EP:
                F.append((None, None, EP.pop(0)))
        PL = P("P2PL", 0)
        if PL:
            ld = [f for f in F if f[0] == "v"]
            sc_ = [f for f in F if f[0] is None and f[2].startswith("s_")]
            ot_ = [f for f in F if f not in ld and f not in sc_]
            LS = {1: (3, 6), 2: (6, 7), 3: (2, 5)}[PL]
            cap = [(P("P2LC", 1) if (i in LS and ld) else 2) for i in range(8)]
            rest = sc_ + ot_ if PL != 2 else ot_ + sc_
            i = 0
            while sum(cap) < len(rest):
                if not (i % 8 in LS and ld):
                    cap[i % 8] += 1
                i += 1
            slots = []
            for i in range(8):
                sl = [ld.pop(0)] if (i in LS and ld) else []
                sl += rest[:cap[i]]
                rest = rest[cap[i]:]
                slots.append(sl)
            assert not rest and not ld
            flat = [f for sl in slots for f in sl]
            lastsc = max([i for i, f in enumerate(flat) if f in sc_], default=-1)
            assert all(i > lastsc for i, f in enumerate(flat) if f[0] == "v")
        for i in range(8):
            t, m = i >> 1, i & 1
            a(f"{MFMA} {acc[m][t](4)}, {fb[s % NB][t](4)}, {of[s % RO][m](4)}, {'0' if s == 0 else acc[m][t](4)}")
            if PL:
                emit(slots[i])
                continue
            k = max(2, (len(F) + 7 - i) // (8 - i))
            emit(F[:k])
            F = F[k:]
        if s + OA == 18:
            stamp(a, "p2go")
    e = Asm()
    OSC = os.environ.get("OUT_SC", "sc1")
    RA_ = P("RNDA", 0)

    def epi(m):
        L = []
        for t in range(4):
            c_, b_, q = acc[m][t], bx[m][t], xv[m][t >> 1] + 2 * (t & 1)
            for h in range(2):
                if RA_:
                    L.append(f"v_cvt_pk_bf16_f32 {c_+2*h+1}, {c_+2*h}, {c_+2*h+1}")
                    L.append(f"v_lshlrev_b32 {c_+2*h}, 16, {c_+2*h+1}")
                    L.append(f"v_and_b32 {c_+2*h+1}, 0xffff0000, {c_+2*h+1}")
                if m == 0 and t < P("EPF", 3):
                    L += [f"v_fma_f32 {c_+2*h+i}, {c_+2*h+i}, {gv[m]}, {b_+2*h+i}" for i in range(2)]
                else:
                    L.append(f"v_pk_fma_f32 {(c_+2*h)(2)}, {(c_+2*h)(2)}, {gv[m](2)}, {(b_+2*h)(2)} op_sel_hi:[1,0,1]")
            for h in range(2):
                L.append(f"v_cvt_pk_bf16_f32 {q+h}, {c_+2*h}, {c_+2*h+1}")
            L.append(f"ds_write_b64 {v_sa[t]}, {q(2)} offset:{m*2048}")
        for i in range(len(L) - 3):
            if L[i].startswith("ds_write") and L[i - 1].startswith("v_cvt"):
                L[i:i + 3] = [L[i + 1], L[i + 2], L[i]]
        for j in range(2):
            L.append(f"ds_read_b128 {bx[m][j](4)}, {v_sr} offset:{m*2048 + j*1024}")
        return L

    def mf(s, m, t):
        return f"{MFMA} {acc[m][t](4)}, {fb[s % NB][t](4)}, {of[s % RO][m](4)}, {acc[m][t](4)}"

    def st_(m, j):
        return f"buffer_store_dwordx4 {bx[m][j](4)}, {v_so[j]}, {sOut(4)}, {s_ob[2*m+j]} offen {OSC}"

    wait_step(18)
    for t in range(4):
        a(mf(18, 0, t))
        for _ in range(2):
            if EP:
                a(EP.pop(0))
    assert not EP
    wpoint("yr0", asm=rare)
    for t in range(2):
        a(f"s_sub_u32 {s_k2}, {s_sel+t}, {s_k1}")
        a(f"s_cmp_lt_u32 {s_k2}, 32")
        a(f"s_cbranch_scc1 K_YROW{t}")
        a.label(f"K_NOY{t}")
        r_ = rare
        r_.label(f"K_YROW{t}")
        r_(f"v_lshlrev_b32 {v_t3}, 4, {v_g}")
        r_(f"v_add_u32 {v_t3}, {YB + 256 + t*256}, {v_t3}")
        r_(f"v_and_b32 {v_t1}, 15, {v_lane}")
        r_(f"s_and_b32 {s_t2}, {s_k2}, 15")
        r_(f"v_cmp_eq_u32 vcc, {s_t2}, {v_t1}")
        lgate(f"Y{t}", W_Y + 4 * t, 1, o=r_)
        r_("s_mov_b64 exec, vcc")
        r_(f"s_cmp_ge_u32 {s_k2}, 16")
        r_(f"s_cbranch_scc1 K_YR1_{t}")
        for m in range(2):
            if m:
                r_.label(f"K_YR1_{t}")
            for tt in range(4):
                r_(f"ds_read_b128 {bx[m][tt](4)}, {v_t3} offset:{tt*64}")
            r_("s_mov_b64 exec, -1")
            r_(f"s_branch K_NOY{t}")
    assert LQ[-1] == 19
    wait_step(19)
    stamp(a, "p2mm")
    for t in range(4):
        e(mf(19, 0, t))
    E0 = epi(0)
    for i, (s, t) in enumerate([(s, t) for s in (18, 19) for t in range(4)]):
        e(mf(s, 1, t))
        if i >= 2:
            for _ in range(P("EPK", 3)):
                if E0:
                    e(E0.pop(0))
    for l in E0:
        e(l)
    E1 = epi(1)
    if P("EPO", 1):
        for l in [l for l in E1 if l.startswith("v_")]:
            e(l)
        e("s_waitcnt lgkmcnt(0)")
        D1 = [l for l in E1 if not l.startswith("v_")]
        if P("EPO", 1) == 1:
            e(st_(0, 0))
            e(st_(0, 1))
        for l in D1:
            e(l)
        if P("EPO", 1) == 2:
            e(st_(0, 0))
            e(st_(0, 1))
    else:
        k = len(E1) // 2
        n1 = sum(1 for l in E1[:k] if l.startswith("ds_"))
        for l in E1[:k]:
            e(l)
        e(f"s_waitcnt lgkmcnt({n1})")
        e(st_(0, 0))
        e(st_(0, 1))
        for l in E1[k:]:
            e(l)
    e("s_waitcnt lgkmcnt(1)")
    e(st_(1, 0))
    e("s_waitcnt lgkmcnt(0)")
    e(st_(1, 1))
    rep = []
    a.lines += hz.fix(e.lines, rep)
    print("epilogue: %d wait states added" % rep[0])
    a.label("K_END")
    stamp_flush(a, 0, WS, "K_STX")
    a.label("K_EXIT")
    a("s_endpgm")

    seg_h0 = len(a.lines)
    wpoint("gen", align=True)
    a.label("K_P2")
    a(f"s_cmp_ge_u32 {s_w}, 4")
    a("s_cbranch_scc1 K_P2_HELP")
    a(f"v_mov_b32 {v_yb}, {YB}")
    a(f"s_cmp_lg_u32 {s_w}, 0")
    a("s_cbranch_scc1 K_P2_W13")
    row_lanes(v_so)
    a(f"s_mov_b32 {s_k1}, 0")
    a.label("K_P2_XD")
    x_base(s_k2, s_k1)
    x_dma(v_so, s_k2, s_k1)
    a(f"s_add_u32 {s_k1}, {s_k1}, 1")
    a(f"s_cmp_lt_u32 {s_k1}, 4")
    a("s_cbranch_scc1 K_P2_XD")
    a("s_waitcnt vmcnt(0)")
    a("s_branch K_P2_AUXW")
    a.label("K_P2_W13")
    wo_voff(v_wo)
    HT = sum((8 * ((p_ >> 2) & 1) + PERM[4 * (p_ >> 3) + (p_ & 3)]) << (4 * p_) for p_ in range(16))
    a(f"s_mov_b32 {s_t3}, 0x{HT & 0xffffffff:x}")
    a(f"s_mov_b32 {s_t3+1}, 0x{HT >> 32:x}")
    a(f"s_sub_u32 {s_k1}, {s_w}, 1")
    a.label("K_P2_WS")
    a(f"s_lshl_b32 {s_tmp}, {s_k1}, 2")
    a(f"s_lshr_b64 {s_px(2)}, {s_t3(2)}, {s_tmp}")
    a(f"s_and_b32 {s_px}, {s_px}, 15")
    a(f"s_mul_i32 {s_px}, {s_px}, 51200")
    a(f"s_mul_i32 {s_k2}, {s_k1}, 5120")
    for r in range(5):
        a(f"s_add_u32 {s_so}, {s_px}, {r*10240}")
        a(f"s_add_u32 m0, {s_k2}, {WO_L + r*1024}")
        a(f"s_waitcnt vmcnt({P('THR', 12)-1})")
        a(f"buffer_load_dwordx4 {v_wo}, {sWO(4)}, {s_so} offen lds")
    a(f"s_cmp_ge_u32 {s_k1}, {0 if P('WG3', 0) else 3}")
    a("s_cbranch_scc1 K_P2_WS1")
    a(f"v_mov_b32 {v_t1}, 1")
    a("s_waitcnt vmcnt(5)")
    a("s_mov_b64 exec, 1")
    a(f"ds_add_u32 {v_yb}, {v_t1} offset:52")
    a("s_mov_b64 exec, -1")
    a.label("K_P2_WS1")
    a(f"s_add_u32 {s_k1}, {s_k1}, 3")
    a(f"s_cmp_lt_u32 {s_k1}, 16")
    a("s_cbranch_scc1 K_P2_WS")
    a.label("K_P2_AUXW")
    a(f"v_mov_b32 {v_inc}, 1")
    a("s_waitcnt vmcnt(10)")
    a("s_mov_b64 exec, 1")
    a(f"ds_add_u32 {v_yb}, {v_inc} offset:72")
    a("s_mov_b64 exec, -1")
    p2_gemm_setup()
    lgate("WA", 72, 4)
    a("s_branch K_P2_GEMM")
    V.release(mV3)
    a.lines += late
    a.label("K_P2_HELP")
    a(f"s_setprio {P('HPRIO', 3)}")
    a(f"s_add_u32 {s_k2}, {s_rt2}, 1")
    a(f"s_bitcmp1_b32 {s_k2}, 1")
    a(f"s_cselect_b32 {s_k2}, 31, 15")
    a(f"v_and_b32 {v_fa}, {s_k2}, {v_lane}")
    if P("P2ROT", 0):
        a(f"s_mul_i32 {s_tmp}, {s_ct}, {P('P2ROT', 0)}")
        a(f"s_and_b32 {s_tmp}, {s_tmp}, 7")
        a(f"v_xor_b32 {v_fa}, {s_tmp}, {v_fa}")
    a(f"v_lshl_add_u32 {v_fa}, {v_fa}, 2, {s_mb}")
    a(f"s_cmp_lg_u32 {s_w}, 7")
    a("s_cbranch_scc1 K_P2_N7")
    zpoll(1)
    a(f"global_load_dword {v_smp}, {v_fa}, {WS(2)} {SC_POLL}")
    a.label("K_P2_N7")
    p2_common()
    srd(a, sY, WS, YP_BYTES, YP_OFF)
    vs = V.a(4)
    yq = V.many(14, 4)
    v_one = V.a()
    a(f"v_mov_b32 {v_one}, 1")
    a(f"s_cmp_eq_u32 {s_w}, 7")
    a("s_cbranch_scc1 K_P2_FLAGS")
    a(f"s_cmp_lg_u32 {s_w}, 6")
    a("s_cbranch_scc1 K_END")
    a(f"s_mov_b32 {s_tmp}, {SPIN}")
    a.label("K_P2_DPOLL")
    a(f"v_cmp_eq_u32 vcc, 0, {v_smp}")
    a("s_cbranch_vccz K_P2_DOK")
    a(f"s_cmp_eq_u32 {s_tmp}, {SPIN}")
    a("s_cbranch_scc1 K_P2_DNS")
    a(f"s_sleep {P('DSLEEP', 12)}")
    a.label("K_P2_DNS")
    mb_sample(v_da)
    a(f"s_sub_u32 {s_tmp}, {s_tmp}, 1")
    a("s_waitcnt vmcnt(0)")
    a(f"s_cmp_lg_u32 {s_tmp}, 0")
    a("s_cbranch_scc1 K_P2_DPOLL")
    a.label("K_P2_DOK")
    a(f"v_readlane_b32 {s_k1}, {v_smp}, 0")
    a(f"v_readlane_b32 {s_k2}, {v_smp}, 1")
    a("s_nop 3")
    for t, sk in enumerate((s_k1, s_k2)):
        a(f"s_and_b32 {s_tmp}, {sk}, 0x7ff")
        a(f"s_sub_u32 {s_tmp}, 2047, {s_tmp}")
        a(f"v_mov_b32 {vs+t}, {s_tmp}")
        a(f"v_mov_b32 {v_t2}, {sk}")
        a(f"v_and_b32 {v_t2}, 0xffff0000, {v_t2}")
        a(f"v_ashrrev_i32 {v_t3}, 31, {v_t2}")
        a(f"v_not_b32 {v_t3}, {v_t3}")
        a(f"v_or_b32 {v_t3}, 0x80000000, {v_t3}")
        a(f"v_xor_b32 {v_t2}, {v_t2}, {v_t3}")
        a(f"v_and_b32 {v_t2}, 0xffff0000, {v_t2}")
        sigmoid(a, v_t2, v_t2, v_t3)
        bf16r(a, vs + 2 + t, v_t2)
    a(f"ds_write_b128 {v_yb}, {vs(4)}")
    a(f"ds_write_b32 {v_yb}, {v_one} offset:40")
    s_y = s_tg
    a(f"s_mov_b32 {s_y}, 0")
    for k in range(4):
        a(f"v_mov_b32 {vsel+k}, {vs+k}")
    a.label("K_P2_HW")
    a(f"s_cmp_eq_u32 {s_y}, 0")
    a("s_cselect_b64 vcc, -1, 0")
    a("s_nop 1")
    a(f"v_cndmask_b32 {v_t0}, {vsel+1}, {vsel}, vcc")
    a(f"v_cndmask_b32 {v_t3}, {vsel+3}, {vsel+2}, vcc")
    a("s_nop 0")
    a(f"v_readfirstlane_b32 {s_k1}, {v_t0}")
    a("s_nop 3")
    a(f"s_sub_u32 {s_tmp}, {s_k1}, {s_row0}")
    a(f"s_cmp_lt_u32 {s_tmp}, 128")
    a("s_cbranch_scc0 K_P2_YN")
    a(f"s_call_b64 {s_pc(2)}, WP_yr0")
    xs_, gs_ = V.a(4), V.a()
    a(f"s_mul_i32 {s_tmp}, {s_k1}, 1280")
    a(f"s_lshl_b32 {s_t2}, {s_ct}, 7")
    a(f"s_add_u32 {s_tmp}, {s_tmp}, {s_t2}")
    a(f"v_and_b32 {v_t0}, 15, {v_lane}")
    a(f"v_lshlrev_b32 {v_t0}, 3, {v_t0}")
    a(f"buffer_load_dwordx2 {xs_(2)}, {v_t0}, {sX(4)}, {s_tmp} offen")
    a(f"s_lshl_b32 {s_tmp}, {s_k1}, 2")
    a(f"s_add_u32 {s_tmp}, {s_tmp}, {G_OFF}")
    a(f"v_mov_b32 {v_t0}, {s_tmp}")
    a(f"global_load_dword {gs_}, {v_t0}, {WS(2)} {SC_LD}")
    a(f"s_lshl1_add_u32 {s_tmp}, {s_ct}, {s_y}")
    a(f"s_lshl_b32 {s_tmp}, {s_tmp}, 8")
    a(f"s_add_u32 {s_tmp}, {s_tmp}, {FL_OFF + YF2}")
    a(f"v_min_u32 {v_t1}, {NSL-1}, {v_lane}")
    a(f"v_lshl_add_u32 {v_t1}, {v_t1}, 2, {s_tmp}")
    if P("YM", 2) == 1:
        lgate("Y", 32, 0xff, 1, mask=0xff)
    elif P("YM", 2) == 0:
        lgate("Y", 32, P("YG", 0x01000000), 1)
    a(f"s_mov_b32 {s_tmp}, {SPIN}")
    a.label("K_P2_YPOLL")
    a(f"global_load_dword {v_t0}, {v_t1}, {WS(2)} {SC_POLL}")
    a(f"s_sub_u32 {s_tmp}, {s_tmp}, 1")
    a("s_waitcnt vmcnt(0)")
    a(f"v_cmp_ne_u32 vcc, 1, {v_t0}")
    a("s_cbranch_vccz K_P2_YGO")
    a(f"s_sleep {P('YSLEEP', 16)}")
    a(f"s_cmp_lg_u32 {s_tmp}, 0")
    a("s_cbranch_scc1 K_P2_YPOLL")
    a.label("K_P2_YGO")
    stamp(a, "ygo")
    a(f"v_and_b32 {v_t0}, 15, {v_lane}")
    a(f"v_lshlrev_b32 {v_t0}, 4, {v_t0}")
    a(f"v_mul_u32_u24 {v_t2}, 5120, {v_g}")
    a(f"s_mov_b32 {s_k2}, {s_y}")
    a(f"s_mul_i32 {s_t2}, {s_k2}, 2560")
    a(f"s_lshl_b32 {s_tmp}, {s_ct}, 8")
    a(f"s_add_u32 {s_tmp}, {s_tmp}, {s_t2}")
    a(f"v_add3_u32 {v_t1}, {v_t0}, {v_t2}, {s_tmp}")
    NQ = (NSL + 3) // 4
    for q in range(NQ):
        a(f"s_mov_b32 {s_so}, {q*20480}")
        a(f"buffer_load_dwordx4 {yq[q](4)}, {v_t1}, {sY(4)}, {s_so} offen {SC_LD}")
    a(f"v_sub_f32 {gs_}, 1.0, {gs_}")
    bf16r(a, gs_, gs_)
    a(f"v_lshlrev_b32 {xs_+2}, 16, {xs_+1}")
    a(f"v_and_b32 {xs_+3}, 0xffff0000, {xs_+1}")
    a(f"v_and_b32 {xs_+1}, 0xffff0000, {xs_}")
    a(f"v_lshlrev_b32 {xs_}, 16, {xs_}")
    for q in range(1, NQ):
        a(f"s_waitcnt vmcnt({NQ-1-q})")
        for e in range(4):
            a(f"v_add_f32 {vs+e}, {(vs if q > 1 else yq[0])+e}, {yq[q]+e}")
    for swap in ("v_permlane16_swap_b32", "v_permlane32_swap_b32"):
        for e in range(4):
            a(f"v_mov_b32 {yq[0]+e}, {vs+e}")
        a("s_nop 0")
        for e in range(4):
            a(f"{swap} {vs+e}, {yq[0]+e}")
        for e in range(4):
            a(f"v_add_f32 {vs+e}, {vs+e}, {yq[0]+e}")
    for e in range(4):
        bf16r(a, vs + e, vs + e)
        a(f"v_mul_f32 {vs+e}, {v_t3}, {vs+e}")
        bf16r(a, vs + e, vs + e)
        a(f"v_add_f32 {vs+e}, {vs+e}, {xs_+e}")
        bf16r(a, vs + e, vs + e)
        a(f"v_mul_f32 {vs+e}, {vs+e}, {gs_}")
    a(f"s_lshl_b32 {s_tmp}, {s_k2}, 8")
    a(f"s_add_u32 {s_tmp}, {s_tmp}, {YB + 256}")
    a(f"v_add_u32 {v_t0}, {s_tmp}, {v_t0}")
    a(f"ds_write_b128 {v_t0}, {vs(4)}")
    a(f"s_lshl_b32 {s_tmp}, {s_k2}, 2")
    a(f"v_add_u32 {v_t0}, {s_tmp}, {v_yb}")
    a(f"ds_write_b32 {v_t0}, {v_one} offset:{W_Y}")
    stamp(a, "yrdy")
    a.label("K_P2_YN")
    a(f"s_add_u32 {s_y}, {s_y}, 1")
    a(f"s_cmp_lt_u32 {s_y}, 2")
    a("s_cbranch_scc1 K_P2_HW")
    a("s_branch K_END")
    wpoint("flags")
    a.label("K_P2_FLAGS")
    if P("SPOLL", 0):
        sp = R("s", 44)
        s_dup = s_hg
        a(f"s_cmp_eq_u32 {s_k2}, 15")
        a(f"s_cselect_b32 {s_dup}, 16, 0")
        a(f"s_mov_b32 {s_tmp}, {SPIN}")
        stamp(a, "f1")
        a.label("K_SPL")
        a(f"s_load_dwordx16 {sp(16)}, {WS(2)}, {s_mb} glc")
        a(f"s_load_dwordx16 {(sp+16)(16)}, {WS(2)}, {s_mb} offset:64 glc")
        a("s_waitcnt lgkmcnt(0)")
        n = 16
        while n >= 2:
            for i in range(0, n, 2):
                a(f"s_or_b64 {(sp+i)(2)}, {(sp+i)(2)}, {(sp+n+i)(2)}")
            n //= 2
        a(f"s_or_b32 {sp}, {sp}, {sp+1}")
        a(f"s_lshl_b32 {sp+1}, {sp}, {s_dup}")
        a(f"s_or_b32 {sp}, {sp}, {sp+1}")
        a(f"s_sub_u32 {s_tmp}, {s_tmp}, 1")
        a(f"s_cselect_b32 {sp}, -1, {sp}")
        a(f"v_mov_b32 {v_t0}, {sp}")
        a(f"ds_write_b32 {v_yb}, {v_t0} offset:32")
        a(f"s_cmp_eq_u32 {sp}, -1")
        a("s_cbranch_scc1 K_P2_FGO")
        a(f"s_sleep {P('SSLEEP', 2)}")
        a(f"s_and_b32 {sp}, {sp}, 0x{P('SMASK', 0xffffffff):x}")
        a("s_cbranch_scc1 K_SPL")
        a(f"s_sleep {P('SSLEEP0', 12)}")
        a("s_branch K_SPL")
    a("s_mov_b32 exec_hi, 0")
    a("s_waitcnt vmcnt(0)")
    stamp(a, "f1")
    a(f"s_mov_b32 {s_tmp}, {SPIN}")
    a.label("K_P2_FCHK")
    a(f"v_cmp_eq_u32 vcc, 1, {v_smp}")
    a("s_nop 1")
    a(f"v_mov_b32 {v_t0}, vcc_lo")
    a(f"ds_write_b32 {v_yb}, {v_t0} offset:32")
    a("s_cmp_eq_u32 vcc_lo, -1")
    a("s_cbranch_scc1 K_P2_FGO")
    a("s_cmp_lg_u32 vcc_lo, 0")
    a("s_cbranch_scc1 K_P2_FS")
    a(f"s_sleep {P('FSLEEP0', 4)}")
    a.label("K_P2_FS")
    a(f"s_sleep {P('FSLEEP', 6)}")
    a(f"global_load_dword {v_smp}, {v_fa}, {WS(2)} {SC_POLL}")
    a(f"s_sub_u32 {s_tmp}, {s_tmp}, 1")
    a("s_waitcnt vmcnt(0)")
    a("s_cbranch_scc0 K_P2_FCHK")
    a(f"v_mov_b32 {v_t0}, -1")
    a(f"ds_write_b32 {v_yb}, {v_t0} offset:32")
    a.label("K_P2_FGO")
    stamp(a, "fall")
    if STAMP and "npoll" in STAMP_SEL:
        a(f"s_sub_u32 s{STB + 2*(1 + STAMP_SEL.index('npoll'))}, {SPIN}, {s_tmp}")
    a("s_mov_b64 exec, -1")
    a("s_branch K_END")
    seg_h1 = len(a.lines)
    L = a.lines
    a.lines = L[:seg_aux0] + L[seg_aux1:seg_h0] + spin.lines + rare.lines + L[seg_h0:seg_h1] + L[seg_aux0:seg_aux1]
    a.label("K_CODE_END")
    return V.high, S.high


def kd(name, vg, sg):
    vg = (vg + 7) // 8 * 8
    return """.amdhsa_kernel %s
  .amdhsa_next_free_vgpr %d
  .amdhsa_next_free_sgpr %d
  .amdhsa_accum_offset %d
  .amdhsa_group_segment_fixed_size 0
  .amdhsa_kernarg_size 96
  .amdhsa_user_sgpr_count 2
  .amdhsa_user_sgpr_kernarg_segment_ptr 1
  .amdhsa_system_sgpr_workgroup_id_x 1
.end_amdhsa_kernel""" % (name, vg, 100 if STAMP else max(sg, 16), vg)


def main():
    a = Asm()
    for l in HEADER:
        a.raw(l)
    a.raw("; @launch grid=(256,1,1) block=(512,1,1) lds=%d" % LDS_BYTES)
    a.raw('.amdgcn_target "amdgcn-amd-amdhsa--gfx950"')
    a.raw(".text")
    v1, s1 = gen(a)
    a.raw('.section .rodata,"a"')
    a.raw(".p2align 6")
    a.raw(kd(KNAME, v1, s1))
    out = sys.argv[1] if len(sys.argv) > 1 else os.path.join(os.path.dirname(os.path.abspath(__file__)), "..", NAME + ".s")
    open(out, "w").write(a.text())
    print("wrote", out, "v%d s%d" % (v1, s1))


if __name__ == "__main__":
    main()
```

```python
from common import *
import hz

KNAME = NAME + "_kernel"
SC_POLL = os.environ.get("SC_POLL", "sc1")
SC_FLAG = os.environ.get("SC_FLAG", "sc1")
SC_ST = os.environ.get("SC_ST", "sc1")
SC_LD = os.environ.get("SC_LD", "sc1")
FNT = os.environ.get("FNT", "")
FNTD = os.environ.get("FNTD", FNT)
FL_OFF = 0x80000
YFL = 160 * 256
AGG = YFL + 2048
AGS = P('AGS', 3)
ZBYTES = (AGG + 1024 + 20 * 256 + 8191) // 8192 * 8192
EPO = 0xC0000
AG2 = 0xC1000
YF2 = AGG + 1024
GW0 = 24
MT = 12
MH = 6
RROWS = (MT - 1) * 16
XREG = MT * 2048
SLOT = XREG + 16384
LA = 2
NS = 3
NCH = 10
WR0 = NS * XREG
TBASE = NS * SLOT
MBASE = 81920 - 2048
W_X = 80
WO_L = 0
STG = 140288
SP = 144
YB = STG + 8 * 16 * SP
LDS_BYTES = 4 * SLOT
QO, KO, VO = 0, 80, 160
SPIN = 0x20000
ZW2 = 48
ZW = 16


def gen(a):
    if P("PAL", 1):
        a.raw(".p2align 12")
    a.raw(".p2align 8")
    a.raw(f".globl {KNAME}")
    a.raw(f".type {KNAME},@function")
    a.label(KNAME)
    S = RA("s", 3, 82 if STAMP else 100)
    V = RA("v", 1, 256)
    s_tmp = S.a()
    s_px = S.a(2)
    s_po = S.a(2)
    s_pws = S.a(4)
    sX, sW, sO, sWO = S.many(4, 4)
    s_xcd, s_i, s_w, s_rt, s_hg, s_t2, s_n = S.many(7)
    s_half = S.a()
    s_fl = S.a()
    s_pc = S.a(2)
    v_lane, v_t0, v_t1, v_t2, v_t3, v_pf, v_smp, v_fo = V.many(8)
    DBG, WS = s_pws, s_pws + 2

    def row_lanes(v2):
        a(f"v_lshrrev_b32 {v_t1}, 4, {v_lane}")
        a(f"v_and_b32 {v_t2}, 7, {v_lane}")
        a(f"v_lshrrev_b32 {v_t0}, 3, {v_lane}")
        a(f"v_xor_b32 {v_t2}, {v_t2}, {v_t1}")
        a(f"v_mul_u32_u24 {v_t0}, 1280, {v_t0}")
        a(f"v_lshl_add_u32 {v2[0]}, {v_t2}, 4, {v_t0}")
        a(f"v_xor_b32 {v2[1]}, 64, {v2[0]}")

    def x_base(s_d, s_k):
        a(f"s_lshl_b32 {s_d}, {s_rt2}, 3")
        a(f"s_lshl1_add_u32 {s_d}, {s_k}, {s_d}")
        a(f"s_mul_i32 {s_d}, {s_d}, 20480")
        a(f"s_lshl_b32 {s_t2}, {s_ct}, 7")
        a(f"s_add_u32 {s_d}, {s_d}, {s_t2}")

    def x_dma(v2, s_b, s_k):
        a(f"s_lshl_b32 {s_t2}, {s_k}, 12")
        for j in range(4):
            a(f"s_add_u32 m0, {s_t2}, {STG + j*1024}")
            a(f"s_add_u32 {s_tmp}, {s_b}, {j*10240}")
            a(f"buffer_load_dwordx4 {v2[j&1]}, {sX(4)}, {s_tmp} offen lds")

    s_rt2, s_ct = S.many(2)
    s_mb = S.a()
    s_role = S.a()
    a("s_cmp_ge_u32 s2, 256")
    a("s_cbranch_scc1 K_EXIT")
    a(f"s_load_dwordx2 {sX(2)}, s[0:1], 0")
    a(f"s_load_dwordx2 {sW(2)}, s[0:1], 8")
    a(f"v_readfirstlane_b32 {s_w}, v0")
    a(f"s_load_dwordx4 {s_pws(4)}, s[0:1], 80")
    a(f"s_load_dwordx2 {sWO(2)}, s[0:1], 16")
    a(f"s_load_dwordx2 {s_po(2)}, s[0:1], 72")
    stamp_init(a)
    a(f"s_and_b32 {s_xcd}, s2, 7")
    a(f"v_and_b32 {v_lane}, 63, v0")
    a(f"s_mov_b32 {sX+2}, 0x{X_BYTES:x}")
    a(f"s_mov_b32 {sX+3}, 0x20000")
    a(f"s_lshr_b32 {s_w}, {s_w}, 6")
    a("s_cmp_lt_u32 s2, 64")
    a("s_cbranch_scc1 K_SLOW")
    a(f"s_cmp_lt_u32 {s_w}, 4")
    a("s_cbranch_scc1 K_FAST")
    a.label("K_SLOW")

    WARM = {"M": [x.split("+") for x in os.environ.get("WARM_M", "attd+p2g,atts+early,help+flags,spin").split(",")],
            "A": [x.split("+") for x in os.environ.get("WARM_A", "p2g,gen,help+flags,spin").split(",")],
            }
    wpts = set()

    def page():
        if P("PAGES", 1):
            a.raw(".p2align 12")

    def wpoint(name, skip=False, align=False, asm=None):
        o = asm or a
        if skip and not (P("PAGES", 1) or P("WARMUP", 1)):
            return
        if skip:
            o(f"s_branch WS_{name}")
        if align and P("PAGES", 1):
            o.raw(".p2align 12")
        o.label(f"WP_{name}")
        o(f"s_setpc_b64 {s_pc(2)}")
        if skip:
            o.label(f"WS_{name}")
        wpts.add(name)

    def warm(key, s_sel, first=0):
        if not P("WARMUP", 1):
            return
        ch = WARM[key]
        for k, names in enumerate(ch):
            if k + 1 < len(ch):
                a(f"s_cmp_lg_u32 {s_sel}, {first + k}")
                a(f"s_cbranch_scc1 K_WARM{key}{k}")
            for n in names:
                if n:
                    a(f"s_call_b64 {s_pc(2)}, WP_{n}")
            if k + 1 < len(ch):
                a(f"s_branch K_WARM{key}X")
                a.label(f"K_WARM{key}{k}")
        a.label(f"K_WARM{key}X")

    def slow_head():
        a(f"s_getpc_b64 {s_pc(2)}")
        a.label("K_PC")
        NL = f"((K_CODE_END-{KNAME}+1023)/1024)"
        a("s_bfe_u32 s3, s2, 0x30003")
        a(f"s_mul_i32 s3, s3, {NL}")
        a(f"s_sub_u32 {s_pc}, {s_pc}, K_PC-{KNAME}")
        a(f"s_subb_u32 {s_pc+1}, {s_pc+1}, 0")
        a(f"v_subrev_u32 {v_t1}, 256, v0")
        a(f"v_add_u32 {v_t0}, s3, {v_t1}")
        a(f"v_lshlrev_b32 {v_t0}, 7, {v_t0}")
        a(f"v_min_u32 {v_t0}, K_CODE_END-{KNAME}-4, {v_t0}")
        a(f"v_cmp_gt_u32 vcc, {NL}, {v_t1}")
        a("s_and_saveexec_b64 %s, vcc" % s_px(2))
        a("s_cbranch_execz K_NOPF")
        a(f"global_load_dword {v_pf}, {v_t0}, {s_pc(2)}")
        a.label("K_NOPF")
        a("s_mov_b64 exec, -1")
        a(f"v_mov_b64 {v_t0(2)}, 0")
        a(f"v_mov_b64 {v_t2(2)}, 0")
        a(f"v_mov_b32 {v_smp}, {YB + 32}")
        for k in range(4):
            a(f"ds_write_b128 {v_smp}, {v_t0(4)} offset:{16*k}")

    def common_ids():
        a(f"v_mov_b32 {v_smp}, 0")
        a(f"s_lshr_b32 {s_i}, s2, 3")
        a(f"s_xor_b32 {s_w}, {s_w}, 4")
        a(f"s_mov_b32 {sWO+2}, 0x{640*1280:x}")
        a(f"s_mov_b32 {sWO+3}, 0x20000")
        a(f"s_lshr_b32 {s_n}, {s_i}, 3")
        a(f"s_lshl_b32 {s_n}, {s_n}, 2")
        a(f"s_and_b32 {s_tmp}, {s_i}, 3")
        a(f"s_add_u32 {s_n}, {s_n}, {s_tmp}")
        a(f"s_add_u32 {s_n}, {s_n}, 4")
        a(f"s_bitcmp1_b32 {s_i}, 2")
        a(f"s_cselect_b32 {s_n}, -1, {s_n}")
        a(f"s_cmp_lt_u32 {s_i}, 8")
        a(f"s_cselect_b32 {s_n}, {s_i}, {s_n}")
        a(f"s_lshl_b32 {s_rt2}, {s_xcd}, 1")
        a(f"s_cmp_ge_u32 {s_n}, 10")
        a(f"s_addc_u32 {s_rt2}, {s_rt2}, 0")
        a(f"s_sub_u32 {s_ct}, {s_n}, 10")
        a(f"s_cmp_ge_u32 {s_n}, 10")
        a(f"s_cselect_b32 {s_ct}, {s_ct}, {s_n}")
        a(f"s_mul_i32 {s_mb}, {s_xcd}, 20")
        a(f"s_add_u32 {s_mb}, {s_mb}, {s_n}")
        a(f"s_and_b32 {s_mb}, {s_mb}, 255")
        a(f"s_lshl_b32 {s_mb}, {s_mb}, 8")
        a(f"s_add_u32 {s_mb}, {s_mb}, {FL_OFF}")

    mS, mV = S.mark(), V.mark()

    def zaddr(v):
        a(f"v_and_b32 {v}, 7, {v_lane}")
        a(f"v_lshlrev_b32 {v}, 2, {v}")

    def zsample(v):
        a(f"global_load_dword {v_smp}, {v}, {DBG(2)} offset:{ZW2*4} {SC_POLL}")

    def zpoll(k):
        zaddr(v_t2)
        a(f"s_mov_b32 {s_tmp}, {SPIN}")
        a.label(f"K_ZPOLL{k}")
        a(f"v_cmp_eq_u32 vcc, 0, {v_smp}")
        a(f"s_cbranch_vccz K_ZOK{k}")
        a(f"s_sub_u32 {s_tmp}, {s_tmp}, 1")
        a(f"s_cbranch_scc1 K_ZOK{k}")
        zsample(v_t2)
        a("s_waitcnt vmcnt(0)")
        a(f"s_branch K_ZPOLL{k}")
        a.label(f"K_ZOK{k}")

    def mb_sample(vaddr):
        a(f"v_and_b32 {vaddr}, 1, {v_lane}")
        a(f"v_lshl_add_u32 {vaddr}, {vaddr}, 2, {s_mb}")
        a(f"global_load_dword {v_smp}, {vaddr}, {WS(2)} offset:128 {SC_POLL}")

    def wo_voff(v_wo, s_add=None):
        a(f"v_lshrrev_b32 {v_t0}, 3, {v_lane}")
        a(f"v_mul_u32_u24 {v_t0}, 1280, {v_t0}")
        a(f"v_lshrrev_b32 {v_t1}, 4, {v_lane}")
        a(f"v_lshlrev_b32 {v_t1}, 1, {v_t1}")
        a(f"v_and_b32 {v_t2}, 7, {v_lane}")
        a(f"v_xor_b32 {v_t1}, {v_t1}, {v_t2}")
        a(f"v_lshl_add_u32 {v_t0}, {v_t1}, 4, {v_t0}")
        if s_add is None:
            s_add = s_t2
            a(f"s_lshl_b32 {s_t2}, {s_ct}, 7")
        a(f"v_add_u32 {v_wo}, {s_add}, {v_t0}")

    def wo_blocks(v_wo, s_k, late, s_src, s_dst, s_o, thr=0):
        a(f"s_lshl_b32 {s_src}, {s_k}, 2")
        a(f"s_lshr_b32 {s_src}, 0x{0x6431 if late else 0x7520:x}, {s_src}")
        a(f"s_and_b32 {s_src}, {s_src}, 7")
        a(f"s_mul_i32 {s_src}, {s_src}, 51200")
        a(f"s_mul_i32 {s_dst}, {s_k}, 5120")
        for b in range(2):
            for r in range(5):
                a(f"s_add_u32 {s_o}, {s_src}, {b*8*51200 + r*10240}")
                a(f"s_add_u32 m0, {s_dst}, {WO_L + late*40960 + b*20480 + r*1024}")
                a(f"s_waitcnt vmcnt({thr-1})" if thr else "s_nop 0")
                a(f"buffer_load_dwordx4 {v_wo}, {sWO(4)}, {s_o} offen lds")

    s_pos = s_half

    def main_ids():
        a(f"s_lshr_b32 {s_rt}, {s_i}, 3")
        a(f"s_sub_u32 {s_rt}, {s_rt}, 1")
        a(f"s_and_b32 {s_pos}, {s_i}, 3")
        a(f"s_and_b32 {s_tmp}, {s_i}, 4")
        a(f"s_lshl_b32 {s_tmp}, {s_tmp}, 1")
        a(f"s_add_u32 {s_pos}, {s_pos}, {s_tmp}")
        a(f"s_and_b32 {s_tmp}, {s_xcd}, 1")
        a(f"s_lshl_b32 {s_tmp}, {s_tmp}, 2")
        a(f"s_add_u32 {s_pos}, {s_pos}, {s_tmp}")

    v_row, v_g, v_r, v_c = V.many(4)
    v_t16, v_m8, v_os, v_ot, v_wv = V.many(5)
    v_hq = V.many(2)
    v_vt = V.many(4)
    v_b0, v_b1, v_bp, v_ps = V.many(4, 4)
    s_tg = S.a()
    s_c = S.a(2)
    s_sc = S.a(2)
    s_oo = S.many(2)
    RL = P("RLOG", 0)

    def lane_consts():
        a(f"v_and_b32 {v_row}, 15, {v_lane}")
        a(f"v_lshrrev_b32 {v_g}, 4, {v_lane}")
        a(f"v_bfe_u32 {v_r}, {v_lane}, 2, 2")
        a(f"v_and_b32 {v_c}, 3, {v_lane}")

    def att_consts():
        v_neg = v_wv
        srd(a, sO, WS, O_BYTES, O_OFF)
        a(f"s_and_b32 {s_tmp}, {s_w}, 3")
        a(f"s_mul_i32 {s_tmp}, {s_tmp}, 3")
        a(f"s_lshr_b32 {s_t2}, {s_w}, 2")
        a(f"s_lshl1_add_u32 {s_tmp}, {s_t2}, {s_tmp}")
        a(f"s_mul_i32 {s_tg}, {s_rt}, {MT-1}")
        a(f"s_add_u32 {s_tg}, {s_tg}, {s_tmp}")
        a(f"s_cmp_eq_u32 {s_tg}, 31")
        a(f"s_cselect_b32 {s_oo[1]}, 4, {s_w}")
        a(f"s_lshr_b32 {s_t2}, {s_xcd}, 1")
        a(f"s_lshl_b32 {s_t2}, {s_t2}, 5")
        a(f"s_add_u32 {s_tg}, {s_tg}, {s_t2}")
        a(f"s_lshl_b32 {s_tmp}, {s_tmp}, 10")
        a(f"s_add_u32 {s_tmp}, {s_tmp}, {TBASE}")
        a(f"v_lshl_add_u32 {v_t16}, {v_lane}, 4, {s_tmp}")
        a(f"v_lshl_add_u32 {v_t0}, {v_row}, 4, {s_tmp}")
        a(f"v_add_u32 {v_t0}, {512 + 8}, {v_t0}")
        a(f"v_add_u32 {v_t1}, 512, {v_t16}")
        for h in range(2):
            a(f"v_cmp_eq_u32 vcc, {h}, {v_g}")
            a("s_nop 1")
            a(f"v_cndmask_b32 {v_hq[h]}, {v_t0}, {v_t1}, vcc")
        a(f"v_lshl_add_u32 {v_t3}, {v_g}, 2, {v_r}")
        a(f"v_lshl_add_u32 {v_t3}, {v_t3}, 4, {s_tmp}")
        a(f"v_add_u32 {v_t0}, {512 + 8}, {v_t3}")
        a(f"v_add_u32 {v_t1}, 8, {v_t3}")
        a(f"v_add_u32 {v_t2}, {256 + 8}, {v_t3}")
        a(f"s_cmp_lt_u32 {s_w}, 4")
        a(f"s_cselect_b32 {s_t2}, 0, 3")
        a(f"s_sub_u32 {s_t2}, {s_w}, {s_t2}")
        a(f"s_mul_i32 {s_t2}, {s_t2}, 5120")
        a(f"s_add_u32 {s_t2}, {s_t2}, {MBASE}")
        a(f"v_lshl_add_u32 {v_m8}, {v_lane}, 3, {s_t2}")
        for u in range(4):
            a(f"v_cmp_eq_u32 vcc, {u}, {v_c}")
            a("s_nop 1")
            a(f"v_cndmask_b32 {v_vt[u]}, {v_t0}, {v_t2 if u & 1 else v_t1}, vcc")
        a(f"s_lshl_b32 {s_tmp}, {s_pos}, 10")
        a(f"v_lshl_add_u32 {v_os}, {v_lane}, 4, {s_tmp}")
        a(f"s_lshl_b32 {s_tmp}, {s_pos}, 8")
        a(f"s_add_u32 {s_tmp}, {s_tmp}, 16384")
        a(f"v_lshl_add_u32 {v_ot}, {v_row}, 4, {s_tmp}")
        a(f"v_and_b32 {v_t0}, 1, {v_g}")
        a(f"v_lshl_add_u32 {v_ot}, {v_t0}, 23, {v_ot}")
        a(f"s_cmp_lt_u32 {s_oo[1]}, 4")
        a(f"s_cselect_b32 {s_tmp}, 0, 0x800000")
        a(f"s_add_u32 {s_tmp}, {s_tmp}, 20480")
        a(f"v_lshrrev_b32 {v_t0}, 1, {v_g}")
        a(f"v_mad_u32_u24 {v_ot}, {v_t0}, {s_tmp}, {v_ot}")
        a(f"s_mul_i32 {s_oo[0]}, {s_tg}, 20480")
        a(f"s_add_u32 {s_oo[1]}, {s_oo[0]}, {s_tmp}")
        a(f"v_mov_b32 {v_neg}, 0x{NEG:x}")
        a(f"v_lshlrev_b32 {v_t0}, 2, {v_g}")
        a(f"v_sub_u32 {v_t0}, {v_row}, {v_t0}")
        a(f"s_cmp_eq_u32 {s_tg}, 0")
        a(f"s_cselect_b32 {s_tmp}, 0x{NEG:x}, 0")
        for r in range(4):
            a(f"v_subrev_u32 {v_t1}, {r}, {v_t0}")
            a(f"v_and_b32 {v_t2}, 0x80000001, {v_t1}")
            a(f"v_cmp_eq_u32 vcc, 0, {v_t2}")
            a("s_nop 1")
            a(f"v_cndmask_b32 {v_b1+r}, {v_neg}, 0, vcc")
            a(f"v_cmp_eq_u32 vcc, 0x80000000, {v_t2}")
            a("s_nop 1")
            a(f"v_cndmask_b32 {v_b0+r}, {v_neg}, 0, vcc")
            a(f"v_add_f32 {v_bp+r}, {s_tmp}, {v_b0+r}")
        for p, vb in enumerate((v_b0, v_b1)):
            for k in range(2):
                lo = 0x0c0c0000 | ((2 * k + 1) << 8) | (2 * k)
                hi = 0x00000c0c | ((2 * k + 1) << 24) | ((2 * k) << 16)
                a(f"v_mov_b32 {v_t1}, 0x0c0c0c0c")
                a(f"v_mov_b32 {v_t2}, 0x{lo:x}")
                a(f"v_cmp_eq_u32 vcc, 0, {vb+2*k}")
                a(f"v_mov_b32 {v_t3}, 0x{hi:x}")
                a("s_nop 0")
                a(f"v_cndmask_b32 {v_t1}, {v_t1}, {v_t2}, vcc")
                a(f"v_cmp_eq_u32 vcc, 0, {vb+2*k+1}")
                a("s_nop 1")
                a(f"v_cndmask_b32 {v_ps+2*p+k}, {v_t1}, {v_t3}, vcc")
        a(f"s_mov_b32 {s_c}, 0x{LOG2E if RL == 1 else SCALE_L2E:x}")
        a(f"s_mov_b32 {s_c+1}, {s_c}")
        a(f"s_mov_b32 {s_sc}, 0x{f32bits(20 ** -0.5):x}")
        a(f"s_mov_b32 {s_sc+1}, {s_sc}")

    def flag_consts():
        a(f"s_mov_b32 {s_fl}, 0xfffff")
        a(f"s_cmp_lg_u32 {s_rt}, 0")
        a(f"s_cselect_b32 {s_t2}, 64, 0")
        a(f"v_mov_b32 {v_t0}, {s_t2}")
        a(f"v_cmp_gt_u32 vcc, 10, {v_lane}")
        a(f"s_lshr_b32 {s_tmp}, {s_xcd}, 1")
        a(f"s_lshl2_add_u32 {s_tmp}, {s_tmp}, {s_rt}")
        a(f"v_cndmask_b32 {v_t0}, 0, {v_t0}, vcc")
        a(f"v_lshl_add_u32 {v_t0}, {v_lane}, 8, {v_t0}")
        a(f"s_mul_i32 {s_tmp}, {s_tmp}, 2560")
        a(f"s_lshl2_add_u32 {s_tmp}, {s_pos}, {s_tmp}")
        a(f"s_add_u32 {s_tmp}, {s_tmp}, {FL_OFF}")
        a(f"v_add_u32 {v_fo}, {s_tmp}, {v_t0}")

    mV2 = V.mark()
    mS2 = S.mark()
    slow_head()
    a(f"s_mov_b32 {s_role}, 1")
    a(f"s_lshl_b32 {s_tmp}, {s_w}, 8")
    a(f"s_add_u32 {s_tmp}, {s_tmp}, s2")
    a(f"s_lshr_b32 {s_tmp}, {s_tmp}, 3")
    a(f"s_cmp_lg_u32 {s_tmp}, {5*32}")
    a("s_cbranch_scc1 K_COMMON")
    a(f"s_mul_i32 {s_tmp}, s2, {ZBYTES // 8}")
    a(f"s_add_u32 {s_tmp}, {s_tmp}, {FL_OFF + 3072}")
    a(f"v_lshl_add_u32 {v_pf}, {v_lane}, 4, {s_tmp}")
    a(f"v_mov_b64 {v_b0(2)}, 0")
    a(f"v_mov_b64 {(v_b0+2)(2)}, 0")
    a("s_waitcnt lgkmcnt(0)")
    for k in range(ZBYTES // 8192):
        a(f"global_store_dwordx4 {v_pf}, {v_b0(4)}, {WS(2)} offset:{k*1024 - 3072} {SC_FLAG}")
    a(f"s_lshl_b32 {s_tmp}, s2, 2")
    a(f"v_mov_b32 {v_t0}, {s_tmp}")
    a(f"v_mov_b32 {v_t1}, 1")
    a("s_mov_b64 exec, 1")
    a("s_waitcnt vmcnt(0)")
    a(f"global_store_dword {v_t0}, {v_t1}, {DBG(2)} offset:{ZW2*4} {SC_FLAG}")
    a("s_mov_b64 exec, -1")
    stamp(a, "zdone")
    a("s_branch K_COMMON")
    a.label("K_FAST")
    if P("LPRIO", 0):
        a(f"s_setprio {P('LPRIO', 0)}")
    stamp(a, "role")
    v_xo = V.many(2)
    v_wo = V.many(2)
    s_lw, s_xb, s_wb, s_m0x, s_m0w, s_sox, s_sow, s_kc, s_so, s_cnt, s_sk = S.many(11)
    PERM8 = [0, 2, 5, 7, 1, 3, 4, 6]
    if os.environ.get("KT", "59608237,26375904,93042671,76543210") == "old":
        KT = [sum(((3 * PERM8[k] + 4 * r) % 10) << (4 * k) for k in range(8)) for r in (1, 2, 3)] + [0x76543210]
    else:
        KT = [int(x, 16) for x in os.environ.get("KT", "59608237,26375904,93042671,76543210").split(",")]
    a(f"s_lshr_b32 {s_hg}, s2, 1")
    a(f"s_and_b32 {s_hg}, {s_hg}, 28")
    a(f"v_lshrrev_b32 {v_t1}, 4, {v_lane}")
    a(f"s_lshr_b32 {s_tmp}, s2, 6")
    a(f"s_mov_b32 {s_kc}, 0x{KT[0]:x}")
    a(f"s_cmp_eq_u32 {s_tmp}, 2")
    a(f"s_cselect_b32 {s_kc}, 0x{KT[1]:x}, {s_kc}")
    a(f"v_and_b32 {v_t2}, 7, {v_lane}")
    a(f"s_cmp_eq_u32 {s_tmp}, 3")
    a(f"s_cselect_b32 {s_kc}, 0x{KT[2]:x}, {s_kc}")
    a(f"v_lshrrev_b32 {v_t0}, 3, {v_lane}")
    a(f"s_lshr_b32 {s_kc}, {s_kc}, {s_hg}")
    a(f"s_and_b32 {s_kc}, {s_kc}, 15")
    a(f"v_xor_b32 {v_t2}, {v_t2}, {v_t1}")
    a(f"s_lshl_b32 {s_t2}, {s_xcd}, 2")
    a(f"s_lshr_b32 {s_t2}, 0x{KT[3]:x}, {s_t2}")
    a(f"s_and_b32 {s_t2}, {s_t2}, 15")
    a(f"s_add_u32 {s_kc}, {s_kc}, {s_t2}")
    a(f"s_cmp_ge_u32 {s_kc}, 10")
    a(f"v_mul_u32_u24 {v_t0}, 1280, {v_t0}")
    a(f"s_cselect_b32 {s_t2}, 10, 0")
    a(f"s_sub_u32 {s_kc}, {s_kc}, {s_t2}")
    a(f"s_lshr_b32 {s_xb}, {s_xcd}, 1")
    a(f"v_lshl_add_u32 {v_xo[0]}, {v_t2}, 4, {v_t0}")
    a(f"s_mul_i32 {s_xb}, {s_xb}, {512*1280}")
    a(f"s_lshl2_add_u32 {s_sk}, {s_tmp}, {s_w}")
    a(f"s_cmp_eq_u32 {s_sk}, 15")
    a(f"s_cselect_b32 {s_sk}, 0x800000, 0")
    a(f"s_add_u32 {s_sk}, {s_sk}, {4*8*1280}")
    a(f"s_mul_i32 {s_tmp}, {s_tmp}, {RROWS*1280}")
    a(f"v_xor_b32 {v_xo[1]}, 64, {v_xo[0]}")
    a(f"s_add_u32 {s_xb}, {s_xb}, {s_tmp}")
    a(f"s_mul_i32 {s_wb}, {s_w}, {48*1280}")
    a(f"s_add_u32 {s_xb}, {s_xb}, {s_wb}")
    a(f"s_sub_u32 {s_xb}, {s_xb}, {(RROWS+16)*1280}")
    a(f"s_mul_i32 {s_m0x}, {s_w}, 6144")
    a(f"s_add_u32 {s_m0x}, {s_m0x}, {2*XREG}")

    ORDER = [("w", 0), ("x", 0), ("w", 1), ("x", 1), ("x", 2), ("w", 2), ("x", 3), ("w", 3), ("x", 4), ("x", 5)]
    ORDER0 = [("x", j) for j in range(6)] + [("w", j) for j in range(4)]
    HS = P("HSPLIT", 5)

    def dma_head(kind):
        if "s" in kind:
            a(f"s_cmp_ge_u32 {s_m0x}, {2*XREG}")
            a(f"s_cselect_b32 {s_so}, -2, 1")
            a(f"s_mul_i32 {s_tmp}, {s_so}, {XREG}")
            a(f"s_add_u32 {s_m0x}, {s_m0x}, {s_tmp}")
            a(f"s_lshl_b32 {s_so}, {s_so}, 14")
            a(f"s_add_u32 {s_m0w}, {s_m0w}, {s_so}")
        if "x" in kind:
            a(f"s_lshl_b32 {s_sox}, {s_kc}, 7")
            a(f"s_add_u32 {s_sox}, {s_sox}, {s_xb}")
        if "w" in kind:
            a(f"s_mul_i32 {s_sow}, {s_kc}, {64*3840}")
            a(f"s_add_u32 {s_sow}, {s_sow}, {s_wb}")
            a(f"s_add_u32 {s_kc}, {s_kc}, 1")
            a(f"s_cmp_eq_u32 {s_kc}, 10")
            a(f"s_cselect_b32 {s_kc}, 0, {s_kc}")

    def dma_part(lo, hi, order=ORDER):
        for kind, j in order[lo:hi]:
            if kind == "w":
                a(f"s_add_u32 m0, {s_m0w}, {j*1024}")
                a(f"s_add_u32 {s_so}, {s_sow}, {j*4*3840}")
                a(f"buffer_load_dwordx4 {v_wo[j>>1]}, {sW(4)}, {s_so} offen lds")
            else:
                if j == 1:
                    a(f"s_add_u32 {s_so}, {s_sox}, {8*1280}")
                a(f"s_add_u32 m0, {s_m0x}, {j*1024}")
                if j < 2:
                    a(f"s_max_i32 {s_so}, {s_so if j else s_sox}, 0")
                elif j == 4:
                    a(f"s_add_u32 {s_so}, {s_sox}, {s_sk}")
                elif j == 5:
                    assert order[order.index(("x", 5)) - 1] == ("x", 4) and lo <= order.index(("x", 4))
                    a(f"s_add_u32 {s_so}, {s_so}, {8*1280}")
                else:
                    a(f"s_add_u32 {s_so}, {s_sox}, {j*8*1280}")
                a(f"buffer_load_dwordx4 {v_xo[j&1]}, {sX(4)}, {s_so} offen lds")

    dma_head("x")
    stamp(a, "setup")
    a("s_waitcnt lgkmcnt(0)")
    stamp(a, "karg")
    dma_part(0, 6, ORDER0)
    stamp(a, "x6")
    a(f"v_lshlrev_b32 {v_t0}, 1, {v_t1}")
    a(f"s_lshr_b32 {s_hg}, 0x64317520, {s_hg}")
    a(f"v_sub_u32 {v_t0}, {v_lane}, {v_t0}")
    a(f"s_and_b32 {s_hg}, {s_hg}, 7")
    a(f"v_and_b32 {v_t0}, 15, {v_t0}")
    a(f"s_and_b32 {s_tmp}, {s_xcd}, 1")
    a(f"v_mul_u32_u24 {v_t1}, 3840, {v_t1}")
    a(f"s_lshl3_add_u32 {s_hg}, {s_tmp}, {s_hg}")
    for jj in range(2):
        if jj:
            a(f"v_xor_b32 {v_t0}, 8, {v_t0}")
        a(f"v_mul_u32_u24 {v_t2}, 13, {v_t0}")
        if jj == 0:
            a(f"s_mul_i32 {s_tmp}, {s_hg}, 80")
        a(f"v_lshrrev_b32 {v_t2}, 6, {v_t2}")
        if jj == 0:
            a(f"s_add_u32 {s_wb}, {s_wb}, {s_tmp}")
        a(f"v_mul_u32_u24 {v_t2}, 1200, {v_t2}")
        if jj == 0:
            a(f"s_lshl_b32 {s_m0w}, {s_w}, 12")
        a(f"v_lshl_add_u32 {v_t2}, {v_t0}, 4, {v_t2}")
        if jj == 0:
            a(f"s_add_u32 {s_m0w}, {s_m0w}, {WR0 + 2*16384}")
        a(f"v_add_u32 {v_t3}, 1, {v_t0}")
        if jj == 0:
            a(f"s_mov_b32 {sW+2}, 0x{640*3840:x}")
        a(f"v_and_b32 {v_t3}, 16, {v_t3}")
        if jj == 0:
            a(f"s_mov_b32 {sW+3}, 0x20000")
        a(f"v_lshl_add_u32 {v_t2}, {v_t3}, 24, {v_t2}")
        a(f"v_add_u32 {v_wo[jj]}, {v_t1}, {v_t2}")
        if jj == 0:
            dma_head("w")
        dma_part(6 + 2 * jj, 8 + 2 * jj, ORDER0)
    stamp(a, "wi1")
    stamp(a, "issued")
    a(f"s_mov_b32 {s_lw}, {s_w}")
    a(f"s_mov_b32 {s_role}, 0")
    a.label("K_COMMON")
    common_ids()
    a(f"s_cmp_lt_u32 {s_i}, 8")
    a("s_cbranch_scc1 K_AUX")
    main_ids()
    lane_consts()
    a("s_waitcnt lgkmcnt(0)")
    att_consts()
    flag_consts()
    a(f"s_cmp_eq_u32 {s_role}, 1")
    a("s_cbranch_scc1 K_CONS")
    wo_voff(v_wv)
    a(f"s_mov_b32 {s_cnt}, {NCH - 1}")
    a("s_branch K_LOOPE")
    a.label("K_LOOP")
    a(f"s_waitcnt vmcnt({HS})")
    a("s_barrier")
    dma_part(HS, 10)
    a(f"s_sub_u32 {s_cnt}, {s_cnt}, 1")
    a(f"s_cmp_eq_u32 {s_cnt}, 0")
    a("s_cbranch_scc1 K_LOOPX")
    a.label("K_LOOPE")
    dma_head("sxw")
    dma_part(0, HS)
    a("s_branch K_LOOP")
    a.label("K_LOOPX")
    zaddr(v_t0)
    a("s_waitcnt vmcnt(0)")
    stamp(a, "w9")
    a("s_barrier")
    stamp(a, "c9")
    a(f"s_cmp_lt_u32 {s_w}, 6")
    a("s_cbranch_scc1 K_NOSMP")
    zsample(v_t0)
    a.label("K_NOSMP")
    a(f"s_cmp_eq_u32 {s_n}, -1")
    a("s_cbranch_scc1 K_JOIN_S")
    WOE = P("WOE", 2)
    if WOE < 3:
        a(f"s_cmp_lt_u32 {s_lw}, {WOE}")
        a("s_cbranch_scc1 K_WOE")
        a(f"s_cmp_lg_u32 {s_w}, 7")
        a("s_cbranch_scc1 K_JOIN_S")
        a(f"s_mov_b32 {s_lw}, {WOE}")
    else:
        a(f"s_cmp_lg_u32 {s_w}, 7")
        a("s_cbranch_scc1 K_WOE")
    a("s_branch K_W7A")
    a.label("K_WOE")
    wo_blocks(v_wv, s_lw, 0, s_sox, s_sow, s_tmp)
    a(f"s_cmp_lg_u32 {s_w}, 7")
    a("s_cbranch_scc1 K_JOIN_S")
    if WOE < 3:
        a(f"s_add_u32 {s_lw}, {s_lw}, 1")
        a(f"s_cmp_lt_u32 {s_lw}, 4")
        a("s_cbranch_scc1 K_WOE")
    a(f"s_mov_b32 {s_lw}, 0")
    a.label("K_XD")
    x_base(s_sox, s_lw)
    x_dma(v_xo, s_sox, s_lw)
    a(f"s_add_u32 {s_lw}, {s_lw}, 1")
    a(f"s_cmp_lt_u32 {s_lw}, 4")
    a("s_cbranch_scc1 K_XD")
    a("s_branch K_W7")

    V.release(mV2)
    S.release(mS2)
    page()
    a.label("K_CONS")
    s_cnt = S.a()
    TA, TB, K0, K1, Q0, Q1, V0, V1 = range(8)
    v_aa = V.many(2)
    v_ba = V.many(8)
    v_xw = V.a()
    a(f"v_lshrrev_b32 {v_t0}, 1, {v_row}")
    a(f"v_xor_b32 {v_t0}, {v_t0}, {v_g}")
    a(f"v_lshlrev_b32 {v_t0}, 4, {v_t0}")
    a(f"v_lshl_add_u32 {v_t0}, {v_row}, 7, {v_t0}")
    a(f"s_mul_i32 {s_tmp}, {s_w}, {3*2048}")
    a(f"v_add_u32 {v_aa[0]}, {s_tmp}, {v_t0}")
    a(f"v_xor_b32 {v_aa[1]}, 64, {v_aa[0]}")
    a(f"v_and_b32 {v_t0}, 1, {v_g}")
    a(f"v_lshl_or_b32 {v_t0}, {v_t0}, 2, {v_r}")
    a(f"v_lshlrev_b32 {v_t0}, 5, {v_t0}")
    a(f"v_lshl_add_u32 {v_t1}, {v_g}, 3, {v_r}")
    a(f"v_lshlrev_b32 {v_t1}, 8, {v_t1}")
    a(f"v_add_u32 {v_t1}, {WR0}, {v_t1}")
    a(f"v_lshlrev_b32 {v_t3}, 3, {v_c}")
    a(f"s_movk_i32 {s_t2}, 0xff")
    for t, pcs in ((TA, (KO + 32, KO + 72, QO + 32, QO + 72)), (TB, (VO + 32, VO + 72, 240, 248))):
        a(f"s_mov_b32 {s_tmp}, 0x{sum(x << (8 * i) for i, x in enumerate(pcs)):x}")
        a(f"v_lshrrev_b32 {v_t2}, {v_t3}, {s_tmp}")
        a(f"v_add_u32 {v_t2}, {v_t2}, {v_t0}")
        a(f"v_and_or_b32 {v_ba[t]}, {v_t2}, {s_t2}, {v_t1}")
    a(f"v_add_u32 {v_t0}, {v_t0}, {v_t3}")
    for t, o in ((K0, KO), (K1, KO + 40), (Q0, QO), (Q1, QO + 40), (V0, VO), (V1, VO + 40)):
        a(f"v_add_u32 {v_t2}, {o}, {v_t0}")
        a(f"v_and_or_b32 {v_ba[t]}, {v_t2}, {s_t2}, {v_t1}")
    a(f"s_lshl_b32 {s_tmp}, {s_w}, 2")
    a(f"s_add_u32 {s_tmp}, {s_tmp}, {YB + W_X}")
    a(f"v_mov_b32 {v_xw}, {s_tmp}")
    a(f"v_mov_b32 {v_t2}, 1")
    a(f"v_mov_b32 {v_t3}, 2")
    acc = [V.many(8, 4) for _ in range(3)]
    for m in range(3):
        for tt in range(8):
            for h in range(2):
                a(f"v_mov_b64 {(acc[m][tt]+2*h)(2)}, 0")
    a(f"s_mov_b32 {s_cnt}, 3")
    warm("M", s_w)
    stamp(a, "issued")

    fa = [V.many(3, 4) for _ in range(2)]
    fb = [V.many(8, 4) for _ in range(2)]
    vf = [V.a(6, 2) for _ in range(2)]

    def read_ops(c, ks):
        sl = (c + 2) % NS
        B = [[f"ds_read_b64_tr_b16 {(fb[ks][tt]+2*h)(2)}, {v_ba[tt]} offset:{sl*16384 + ks*8192 + h*1024}" for h in range(2)]
             for tt in range(8)]
        A = [f"ds_read_b128 {fa[ks][m](4)}, {v_aa[ks]} offset:{sl*XREG + m*2048}" for m in range(3)]
        return [A[0]] + B[0] + [A[1], A[2]] + [l for bb in B[1:] for l in bb]

    def mm(m, tt, ks):
        x_, w_ = fa[ks][m](4), fb[ks][tt](4)
        p_ = (x_, w_) if tt in (V0, V1) else (w_, x_)
        return f"{MFMA} {acc[m][tt](4)}, {p_[0]}, {p_[1]}, {acc[m][tt](4)}"

    def mfma_block(ks, fillers):
        order = [(m if tt % 2 == 0 else 2 - m, tt) for tt in range(8) for m in range(3)]
        if P("MORD", 1) == 1:
            order = [(m, tt if m % 2 == 0 else 7 - tt) for m in range(3) for tt in range(8)]
        fillers = list(fillers)
        for m, tt in order:
            a(mm(m, tt, ks))
            if fillers:
                a(fillers.pop(0))
        assert not fillers

    if P("CPRIO", 0):
        a(f"s_setprio {P('CPRIO', 0)}")
    a("s_barrier")
    stamp(a, "c0")
    for line in read_ops(0, 0):
        a(line)
    a.label("K_CLOOP")
    stamp(a, "it")
    for c in range(3):
        a("s_waitcnt lgkmcnt(0)")
        mfma_block(0, read_ops(c, 1))
        a("s_waitcnt lgkmcnt(0)")
        a("s_barrier")
        mfma_block(1, read_ops(c + 1, 0) + ([f"s_sub_u32 {s_cnt}, {s_cnt}, 1", f"s_cmp_lg_u32 {s_cnt}, 0"] if c == 2 else []))
    a("s_cbranch_scc1 K_CLOOP")
    stamp(a, "l9")
    if P("TPRIO", 0):
        a(f"s_setprio {P('TPRIO', 0)}")
    a("s_waitcnt lgkmcnt(0)")

    def sel_ops(sc, ee, u):
        s0, s1 = sc[u]
        e = ee + 2 * u
        return [f"v_max3_f32 {e}, {s0}, {s0+1}, {s1}", f"v_max3_f32 {e+1}, {s0+2}, {s0+3}, {s1+2}",
                f"v_max_f32 {e}, {e}, {s1+1}", f"v_max_f32 {e+1}, {e+1}, {s1+3}"]

    def softmax_pv(b, NT, sc, ee, E, mx, sm, pf, oc, ot, st, vwin, vt, pre, gaps=()):
        U = range(2 * NT)
        gaps = list(gaps)

        def gap(n=1):
            for _ in range(n):
                if gaps:
                    b(gaps.pop(0))

        for l in pre:
            b(l)
        for u in (U if RL else ()):
            b(f"v_cvt_pk_bf16_f32 {E[u]}, {ee+2*u}, {ee+2*u+1}")
        if RL == 1:
            for u in U:
                b(f"v_lshlrev_b32 {ee+2*u}, 16, {E[u]}")
                b(f"v_and_b32 {ee+2*u+1}, 0xffff0000, {E[u]}")
            for u in U:
                b(f"v_pk_mul_f32 {(ee+2*u)(2)}, {(ee+2*u)(2)}, {s_sc(2)}")
            for u in U:
                b(f"v_cvt_pk_bf16_f32 {E[u]}, {ee+2*u}, {ee+2*u+1}")
        sw16 = [f"v_permlane16_swap_b32 {E[2*k]}, {E[2*k+1]}" for k in range(NT)]
        sw32 = [f"v_permlane32_swap_b32 {E[k]}, {E[k+2]}" for k in range(2)] if NT == 2 else []
        if RL:
            for l in sw16 + sw32:
                b(l)
            for u in ([0, 2, 1, 3] if NT == 2 else U):
                b(f"v_lshlrev_b32 {ee+2*u}, 16, {E[u]}")
                b(f"v_and_b32 {ee+2*u+1}, 0xffff0000, {E[u]}")
        else:
            for k in reversed(range(NT)):
                for i in range(2):
                    b(f"v_permlane16_swap_b32 {ee+4*k+i}, {ee+4*k+2+i}")
            if NT == 2:
                gap()
                for i in (0, 2, 1, 3):
                    b(f"v_permlane32_swap_b32 {ee+i}, {ee+4+i}")

        def cross(r, t, op):
            b(f"v_mov_b32 {t}, {r}")
            b(f"v_permlane32_swap_b32 {r}, {t}")
            b(f"{op} {r}, {r}, {t}")

        if NT == 2:
            b(f"v_max3_f32 {mx}, {ee}, {ee+1}, {ee+4}")
            b(f"v_max3_f32 {mx+1}, {ee+5}, {ee+2}, {ee+3}")
            b(f"v_max3_f32 {mx}, {mx}, {ee+6}, {ee+7}")
            b(f"v_max_f32 {mx}, {mx}, {mx+1}")
        else:
            b(f"v_max3_f32 {mx}, {ee}, {ee+1}, {ee+2}")
            b(f"v_max_f32 {mx}, {mx}, {ee+3}")
            cross(mx, mx + 1, "v_max_f32")
        b(f"v_mul_f32 {mx}, {s_c}, {mx}")
        for u in U:
            b(f"v_pk_fma_f32 {(ee+2*u)(2)}, {(ee+2*u)(2)}, {s_c(2)}, {mx(2)} op_sel_hi:[1,1,0] neg_lo:[0,0,1] neg_hi:[0,0,1]")
        for i in range(4 * NT):
            b(f"v_exp_f32 {ee+i}, {ee+i}")
        b(f"v_pk_add_f32 {sm(2)}, {ee(2)}, {(ee+2)(2)}")
        if NT == 2:
            b(f"v_pk_add_f32 {(sm+2)(2)}, {(ee+4)(2)}, {(ee+6)(2)}")
            b(f"v_pk_add_f32 {sm(2)}, {sm(2)}, {(sm+2)(2)}")
        b(f"v_add_f32 {sm}, {sm}, {sm+1}")
        if NT == 1:
            cross(sm, sm + 1, "v_add_f32")
        stamp(b, "a2")
        b(f"v_rcp_f32 {sm}, {sm}")
        b("s_waitcnt lgkmcnt(0)")
        for u in U:
            b(f"v_pk_mul_f32 {(ee+2*u)(2)}, {(ee+2*u)(2)}, {sm(2)} op_sel_hi:[1,0]")
        for u in ([0, 2, 1, 3] if NT == 2 else U):
            b(f"v_cvt_pk_bf16_f32 {E[u]}, {ee+2*u}, {ee+2*u+1}")
        for i, l in enumerate(sw32 + sw16):
            b(l)
            if NT == 2 and i < 2:
                gap(i + 1)
        gap(99)
        b.raw("@V@")

        M_ = []
        for u in U:
            t, h = u >> 1, u & 1
            M_ += [f"{MFMA} {oc[u](4)}, {(vwin[h]+2*t)(4)}, {pf[u](4)}, 0",
                   f"{MFMA} {ot(4)}, {vt[u](4)}, {pf[u](4)}, {'0' if u == 0 else ot(4)}"]
        M_[-2:] = M_[-2:][::-1]
        F_ = [f"v_perm_b32 {pf[u]+k}, {E[u]}, {E[u]}, {v_ps+k}" for u in U for k in range(4)]

        def cvo(t):
            return [f"v_cvt_pk_bf16_f32 {st[t]+2*h+i}, {oc[2*t+h]+2*i}, {oc[2*t+h]+2*i+1}" for h in range(2) for i in range(2)]

        def sto(t):
            return f"buffer_store_dwordx4 {st[t](4)}, {v_os}, {sO(4)}, {s_oo[t]} offen {SC_ST}"

        if NT == 2:
            F_ += cvo(0)
        for l in F_[:6]:
            b(l)
        F_ = F_[6:]
        for m_ in M_:
            b(m_)
            for l in F_[:2]:
                b(l)
            F_ = F_[2:]
        assert not F_
        stamp(b, "a3")
        if NT == 2:
            b(sto(0))
        lastc = cvo(NT - 1)
        for l in lastc[:2]:
            b(l)
        for k in range(2):
            b(f"v_cvt_pk_bf16_f32 {sm+2*k}, {ot}, {ot+1}")
            b(f"v_cvt_pk_bf16_f32 {sm+2*k+1}, {ot+2}, {ot+3}")
        for l in lastc[2:]:
            b(l)
        b(f"v_permlane16_swap_b32 {sm}, {sm+2}")
        b(f"v_permlane16_swap_b32 {sm+1}, {sm+3}")
        b(sto(NT - 1))
        b(f"buffer_store_dwordx4 {sm(4)}, {v_ot}, {sO(4)}, {s_oo[0]} offen {SC_ST}")

    c = NCH - 1
    MO = (0, 2, 1)
    SQ = P("SEQ", 0)
    if SQ == 0:
        seq = [(m, t, 0) for t in (TA, TB, K0, K1) for m in MO]
        seq += [(m, t, 1) for m in MO for t in (TA, TB)] + [(m, t, 1) for m in MO for t in (K0, K1)]
        seq += [(m, t, ks) for m in MO for ks in range(2) for t in (Q0, Q1)]
        seq += [(m, t, ks) for m in MO for ks in range(2) for t in (V0, V1)]
    else:
        first = [(0, TA), (0, TB), (2, TA), (2, TB), (0, K0), (0, K1), (2, K0), (2, K1), (0, Q0), (0, Q1)]
        seq = [(m, t, 0) for m, t in first] + [(m, t, 1) for m, t in first]
        rest = [(1, TA), (1, K0), (2, Q0), (1, Q0), (0, V0), (2, V0), (1, V0)]
        if SQ == 2:
            rest = [(0, V0), (2, V0), (1, TA), (1, K0), (2, Q0), (1, Q0), (1, V0)]
        seq += [(m, t + h, ks) for m, t in rest for ks in range(2) for h in range(2)]
    lc = Asm()
    nst = [0]
    tdone = {}

    def put(l, name=None, n=1):
        lc(l)
        nst[0] += n
        if name:
            tdone[name] = nst[0]

    def cvt(dst, src):
        return [f"v_cvt_pk_bf16_f32 {dst}, {src}, {src+1}", f"v_cvt_pk_bf16_f32 {dst+1}, {src+2}, {src+3}"]

    sc = [[fb[u >> 1][2 * (u & 1) + k] for k in range(2)] for u in range(4)]
    vt = [fb[u >> 1][Q0 + (u & 1)] for u in range(4)]
    items = []

    def it(name, kind, text, *deps):
        items.append((name, kind, text, list(deps)))

    for m in MO:
        l = cvt(acc[m][TA], acc[m][TA]) + cvt(acc[m][TA] + 2, acc[m][TB])
        for i in range(4):
            it(f"cT{m}{i}", "v", l[i], (f"m{m}{TA}", 8), (f"m{m}{TB}", 8))
        it(f"wT{m}", "w", f"ds_write_b128 {v_t16}, {acc[m][TA](4)} offset:{m*1024}", (f"cT{m}3", 1))
    for m in MO:
        for h in range(2):
            for i, l in enumerate(cvt(acc[m][K0 + h], acc[m][K0 + h])):
                it(f"cK{m}{h}{i}", "v", l, (f"m{m}{K0+h}", 8))
        if m != 1:
            o = 4 if m == 0 else 10
            it(f"wK{m}", "w", f"ds_write2st64_b64 {v_m8}, {acc[m][K0](2)}, {acc[m][K1](2)} offset0:{o} offset1:{o+1}", (f"cK{m}11", 1))
        for h in range(2):
            it(f"rK{m}{h}", "r", f"ds_read_b64 {(acc[m][K0+h]+2)(2)}, {v_t16} offset:{m*1024}", (f"cK{m}{h}1", 0), (f"wT{m}", 0))
    for m in MO:
        for h in range(2):
            for i, l in enumerate(cvt(acc[m][Q0 + h], acc[m][Q0 + h])):
                it(f"cQ{m}{h}{i}", "v", l, (f"m{m}{Q0+h}", 8))
        if m == 0:
            it("wQ", "w", f"ds_write2st64_b64 {v_m8}, {acc[0][Q0](2)}, {acc[0][Q1](2)} offset0:8 offset1:9", ("cQ011", 1))
            it("x1", "r", f"ds_write_b32 {v_xw}, {v_t2}", ("wQ", 0), ("wK0", 0), ("wK2", 0), ("wT0", 0), ("wT2", 0))
        else:
            for h in range(2):
                it(f"rQ{m}{h}", "r", f"ds_read_b64 {(acc[m][Q0+h]+2)(2)}, {v_hq[h]} offset:{m*1024}", (f"cQ{m}{h}1", 0), (f"wT{m}", 0))
    for m in MO:
        for h in range(2):
            for i, l in enumerate(cvt(vf[h] + 2 * m, acc[m][V0 + h])):
                it(f"cV{m}{h}{i}", "v", l, (f"m{m}{V0+h}", 8))
        if m != 1:
            o = 6 if m == 0 else 12
            it(f"wV{m}", "w", f"ds_write2st64_b64 {v_m8}, {(vf[0]+2*m)(2)}, {(vf[1]+2*m)(2)} offset0:{o} offset1:{o+1}", (f"cV{m}11", 1))
        if m == 2:
            it("x2", "r", f"ds_write_b32 {v_xw}, {v_t3}", ("wV0", 0), ("wV2", 0), ("x1", 0))
    for u in range(4):
        for k in range(2):
            it(f"rT{u}{k}", "r", f"ds_read_b64_tr_b16 {(vt[u]+2*k)(2)}, {v_vt[u]} offset:{((u>>1)+k)*1024}",
               (f"m1{Q1}", 0), (f"wT{(u>>1)+k}", 0))

    if SQ:
        pr = ["cT0", "wT0", "cT2", "wT2", "cK0", "wK0", "cK2", "wK2", "cQ0", "wQ", "x1"]
        if SQ == 2:
            pr += ["cV0", "wV0", "cV2", "wV2", "x2"]
        items.sort(key=lambda x: min([i for i, q_ in enumerate(pr) if x[0].startswith(q_)], default=99))

    def smm(u, k):
        t, h = u >> 1, u & 1
        bias = v_b1 if k else (v_bp if t == 0 else v_b0)
        return f"{MFMA} {sc[u][k](4)}, {acc[t+k][K0+h](4)}, {acc[t+1][Q0+h](4)}, {bias(4)}"

    SD = P("SDIST", 12)
    sq = [(f"s{u}{k}", smm(u, k), [(f"rK{(u>>1)+k}{u&1}", SD), (f"rQ{(u>>1)+1}{u&1}", SD)]) for u in (2, 3, 0, 1) for k in (1, 0)]

    ee = acc[0][Q0]
    late_ = [x for x in items if x[0].startswith(("cV1", "rT"))]
    items[:] = [x for x in items if x not in late_]
    for u in (2, 3, 0, 1):
        for i, l in enumerate(sel_ops(sc, ee, u)):
            it(f"sel{u}{i}", "v", l, (f"s{u}0", 8), (f"s{u}1", 8), ("wQ", 2))
    items += [x for x in late_ if x[0].startswith("rT")]
    gaps_ = [x[2] for x in late_ if x[0].startswith("cV1")]

    def ok(deps):
        return all(d in tdone and nst[0] - tdone[d] >= n for d, n in deps)

    def fill_slot():
        n = 2
        first = True
        while n > 0:
            cand = [x for x in items if ok(x[3]) and (x[1] != "w" or first)]
            if not cand:
                break
            x = cand[0]
            items.remove(x)
            put(x[2], x[0])
            n -= 2 if x[1] == "w" else 1
            first = False
        if n == 2 and items:
            put("s_nop 1", None, 2)

    fill = read_ops(c, 1)
    for pos, (m, tt, ks) in enumerate(seq):
        put(mm(m, tt, ks), f"m{m}{tt}" if ks else None)
        if fill:
            for _ in range(2):
                if fill:
                    put(fill.pop(0))
            continue
        fill_slot()
    print("last chunk: left over", [x[0] for x in items])
    stamp(lc, "wr")
    lc.raw("BRK:")
    while sq:
        cand = [x for x in sq if ok(x[2])]
        if cand:
            sq.remove(cand[0])
            put(cand[0][1], cand[0][0])
        before = nst[0]
        fill_slot()
        if not cand and nst[0] == before:
            put("s_nop 0")
    stamp(lc, "a1")
    while [x for x in items if x[1] == "w" or x[0] == "x2"]:
        fill_slot()
    E = [acc[1][TB] + i for i in range(4)]
    mx, sm = acc[2][TB], acc[0][TB]
    pf = [fa[u >> 1][u & 1] for u in range(4)]
    oc = [acc[1 + (u >> 1)][Q0 + (u & 1)] for u in range(4)]
    softmax_pv(lc, 2, sc, ee, E, mx, sm, pf, oc, fa[0][2], [acc[0][K0], acc[0][K1]], vf, vt,
               [x[2] for x in items if x[1] == "r"] + [x[2] for x in items if x[1] != "r"], gaps_)
    lc.lines.remove("@V@")
    rep = []
    fx = hz.fix(hz.lgkm(lc.lines), rep)
    k_ = fx.index("BRK:")
    a.lines += fx[:k_]
    wpoint("attd", skip=True, align=True)
    a.lines += fx[k_ + 1:]
    print("tail D: %d lines, %d wait states added" % (len(lc.lines), rep[0]))

    def xgate(name, val, allw=False):
        a(f"s_mov_b32 {s_tmp}, {SPIN*8}")
        a.label(f"K_XG{name}")
        if allw:
            a(f"ds_read_b128 {v_t0(4)}, {v_pf}")
        else:
            a(f"ds_read2_b32 {v_t0(2)}, {v_pf} offset0:0 offset1:1")
        if P("XSL", 1):
            a(f"s_sleep {P('XSL', 1)}")
        a(f"s_sub_u32 {s_tmp}, {s_tmp}, 1")
        a("s_waitcnt lgkmcnt(0)")
        if allw:
            a(f"v_min3_u32 {v_t0}, {v_t0}, {v_t2}, {v_t3}")
        a(f"v_min_u32 {v_t0}, {v_t0}, {v_t1}")
        a("s_nop 0")
        a(f"v_readfirstlane_b32 {s_t2}, {v_t0}")
        a("s_nop 3")
        a(f"s_cselect_b32 {s_t2}, {val}, {s_t2}")
        a(f"s_cmp_lt_u32 {s_t2}, {val}")
        a(f"s_cbranch_scc1 K_XG{name}")

    def attention_s():
        V.release(mV2)
        b = Asm()
        qf = V.many(2, 4)
        kf = [V.many(2, 4) for _ in range(2)]
        vw = V.many(2, 4)
        vt_ = V.many(2, 4)
        sc_ = [V.many(2, 4) for _ in range(2)]
        pf_, oc_ = V.many(2, 4), V.many(2, 4)
        ot_, ee_, sm_, st_ = V.many(4, 4)
        E_ = V.many(2)
        mx_ = V.a(2)
        for h in range(2):
            b(f"ds_read_b64 {qf[h](2)}, {v_m8} offset:{4096 + 512*h}")
            b(f"ds_read_b64 {(qf[h]+2)(2)}, {v_hq[h]} offset:1024")
            for k in range(2):
                b(f"ds_read_b64 {kf[h][k](2)}, {v_m8} offset:{2048*k + 512*h}")
                b(f"ds_read_b64 {(kf[h][k]+2)(2)}, {v_t16} offset:{1024*k}")
        for h in range(2):
            for k in range(2):
                b(f"{MFMA} {sc_[h][k](4)}, {kf[h][k](4)}, {qf[h](4)}, {(v_b1 if k else v_b0)(4)}")
        stamp(b, "a1")
        for u in range(2):
            for k in range(2):
                b(f"ds_read_b64_tr_b16 {(vt_[u]+2*k)(2)}, {v_vt[u]} offset:{k*1024}")
        softmax_pv(b, 1, sc_, ee_, E_, mx_, sm_, pf_, oc_, ot_, [st_], vw, vt_, sel_ops(sc_, ee_, 0) + sel_ops(sc_, ee_, 1))
        k = b.lines.index("@V@")
        a.lines += hz.fix(hz.lgkm(b.lines[:k]))
        xgate("2", 2)
        rd = [f"    ds_read_b64 {(vw[h]+2*k_)(2)}, {v_m8} offset:{1024 + 2048*k_ + 512*h}" for h in range(2) for k_ in range(2)]
        a.lines += hz.fix(hz.lgkm(rd + b.lines[k + 1:]))

    W_DR = 48

    def flagval():
        if P("SPOLL", 0):
            a(f"v_lshrrev_b32 {v_t1}, 2, {v_fo}")
            a(f"v_lshlrev_b32 {v_t1}, {v_t1}, 1")
        else:
            a(f"v_mov_b32 {v_t1}, 1")

    def arrive(name, inc):
        a(f"v_mov_b32 {v_t2}, {YB}")
        a(f"v_mov_b32 {v_t1}, {inc}")
        a("s_mov_b64 exec, 1")
        a("s_waitcnt vmcnt(0)" if name != "7" else "s_nop 0")
        a(f"ds_add_rtn_u32 {v_t0}, {v_t2}, {v_t1} offset:{W_DR}")
        a(f"s_mov_b32 exec_lo, {s_fl}")
        flagval()
        a("s_waitcnt lgkmcnt(0)")
        a(f"v_readfirstlane_b32 {s_t2}, {v_t0}")
        a("s_nop 3")
        a(f"s_and_b32 {s_t2}, {s_t2}, 0xff")
        a(f"s_cmp_lg_u32 {s_t2}, 7")
        a(f"s_cbranch_scc1 K_ARR{name}")
        a(f"global_store_dword {v_fo}, {v_t1}, {WS(2)} {SC_FLAG}")
        a.label(f"K_ARR{name}")
        a("s_mov_b64 exec, -1")

    stamp(a, "attdone")
    a(f"s_cmp_lg_u32 {s_n}, -1")
    a("s_cbranch_scc1 K_P2_EARLY")
    a.label("K_DRAIN")
    a("s_waitcnt vmcnt(0)")
    a("s_barrier")
    stamp(a, "drained")
    a("s_branch K_END")
    a.label("K_W7A")
    a("s_waitcnt vmcnt(0)")
    zpoll(5)
    arrive("7", 1)
    if P("W7G", 1):
        a(f"v_mov_b32 {v_pf}, {YB + W_X}")
        xgate("7", P("W7G", 1), True)
        a(f"v_mov_b32 {v_t2}, {YB}")
    a("s_branch K_WOE")
    a.label("K_W7")
    stamp(a, "w7i")
    a(f"v_mov_b32 {v_t1}, 0x100")
    a("s_mov_b64 exec, 1")
    a("s_waitcnt vmcnt(0)")
    a(f"ds_add_u32 {v_t2}, {v_t1} offset:{W_DR}")
    a("s_mov_b64 exec, -1")
    stamp(a, "w7l")
    a("s_branch K_P2_HELP")
    a.label("K_FLAG")
    a("s_waitcnt vmcnt(0)")
    zpoll(0)
    flagval()
    a(f"s_mov_b32 exec_lo, {s_fl}")
    a("s_mov_b32 exec_hi, 0")
    a("s_setprio 3")
    a("s_barrier")
    a(f"global_store_dword {v_fo}, {v_t1}, {WS(2)} {SC_FLAG}")
    stamp(a, "flag")
    a("s_mov_b64 exec, -1")
    a("s_branch K_END")
    wpoint("atts")
    a.label("K_JOIN_S")
    a(f"s_setprio {P('SPRIO', 0)}")
    a(f"s_cmp_eq_u32 {s_w}, 7")
    a("s_cbranch_scc1 K_FLAG")
    a(f"s_lshl_b32 {s_tmp}, {s_w}, 2")
    a(f"s_add_u32 {s_tmp}, {s_tmp}, {YB + W_X - 16}")
    a(f"v_mov_b32 {v_pf}, {s_tmp}")
    xgate("1", 1)
    stamp(a, "join")
    attention_s()
    stamp(a, "attdone")
    a(f"s_cmp_eq_u32 {s_n}, -1")
    a("s_cbranch_scc1 K_DRAIN")
    a(f"s_cmp_lg_u32 {s_w}, 6")
    a("s_cbranch_scc1 K_NOFL")
    a(f"s_waitcnt vmcnt({12 if WOE == 3 else 2})")
    zpoll(2)
    mb_sample(v_t0)
    a.label("K_NOFL")
    arrive("S", 0x101)
    stamp(a, "drained")
    a(f"s_cmp_ge_u32 {s_w}, 6")
    a("s_cbranch_scc1 K_P2_HELP")
    a("s_branch K_LATE")
    seg_l0 = len(a.lines)
    wpoint("help")
    a.label("K_LATE")
    a(f"v_mov_b32 {v_pf}, {YB + W_X}")
    xgate("L", 1, True)
    if P("LGATE", 0):
        a(f"s_mov_b32 {s_tmp}, {SPIN*8}")
        a.label("K_LG")
        a(f"ds_read_b32 {v_t0}, {v_t2} offset:{W_DR}")
        a(f"s_sub_u32 {s_tmp}, {s_tmp}, 1")
        a("s_waitcnt lgkmcnt(0)")
        a(f"v_readfirstlane_b32 {s_t2}, {v_t0}")
        a("s_nop 3")
        a(f"s_cselect_b32 {s_t2}, 8, {s_t2}")
        a(f"s_bitcmp0_b32 {s_t2}, 3")
        a("s_cbranch_scc1 K_LG")
    a(f"s_sub_u32 {s_tg}, {s_w}, 4")
    a.label("K_WOL")
    wo_blocks(v_wv, s_tg, 1, s_oo[0], s_oo[1], s_tmp, P("THR2", 14))
    a(f"s_add_u32 {s_tg}, {s_tg}, 2")
    a(f"s_cmp_lt_u32 {s_tg}, 4")
    a("s_cbranch_scc1 K_WOL")
    a(f"v_mov_b32 {v_t0}, {YB}")
    a(f"v_mov_b32 {v_t1}, 2")
    a("s_waitcnt vmcnt(0)")
    a("s_mov_b64 exec, 1")
    a(f"ds_add_u32 {v_t0}, {v_t1} offset:44")
    a("s_mov_b64 exec, -1")
    late = a.lines[seg_l0:]
    del a.lines[seg_l0:]

    seg_aux0 = len(a.lines)
    S.release(mS)
    V.release(mV)
    page()
    a.label("K_AUX")
    stamp(a, "aux")
    GA, UP, DN = 0, 40960, 81920
    KEYS = 122880
    PRE = KEYS + 256
    HB = PRE + 1024
    XS = HB + 1024
    XSP = 1344
    WV = XS + 2 * XSP
    W_WV = 76
    assert WV + 4096 <= STG and WV % 16 == 0
    W_RT, W_K, W_P, W_D, W_R = 36, 48, 52, 56, 60
    s_j = S.a()
    s_pm = S.a(8)
    s_pg = S.a(2)
    sR, sGW = sW, sO
    sG, sU, sD = S.many(3, 4)
    s_so, s_m0, s_k1, s_k2 = S.many(4)
    s_t3 = S.a(3)
    a(f"s_load_dwordx8 {s_pm(8)}, s[0:1], 32")
    a(f"s_load_dwordx2 {s_pg(2)}, s[0:1], 64")
    a(f"s_mul_i32 {s_j}, {s_xcd}, 7")
    a(f"s_add_u32 {s_j}, {s_j}, {s_i}")
    a(f"s_sub_u32 {s_j}, {s_j}, 1")
    a(f"s_cmp_lt_u32 {s_j}, {NSL}")
    a(f"s_cselect_b32 {s_j}, {s_j}, 63")
    a(f"s_cmp_eq_u32 {s_i}, 0")
    a(f"s_cselect_b32 {s_j}, 63, {s_j}")
    v_row, v_xo, v_c16, v_gy, v_one = V.many(5)
    xr = V.a(160)
    vk = V.a(4)
    a(f"s_lshl_b32 {s_k1}, {s_xcd}, 8")
    a(f"s_lshl_b32 {s_tmp}, {s_i}, 5")
    a(f"s_add_u32 {s_k1}, {s_k1}, {s_tmp}")
    a(f"v_mov_b32 {v_gy}, {YB}")
    a(f"v_mov_b32 {v_one}, 1")

    def fgate(name, off, val, sleep=1):
        a(f"s_mov_b32 {s_tmp}, {SPIN*8}")
        a.label(f"K_FG{name}")
        a(f"ds_read_b32 {v_t0}, {v_gy} offset:{off}")
        a(f"s_sleep {sleep}")
        a(f"s_sub_u32 {s_tmp}, {s_tmp}, 1")
        a("s_waitcnt lgkmcnt(0)")
        a(f"v_readfirstlane_b32 {s_t2}, {v_t0}")
        a("s_nop 3")
        a(f"s_cselect_b32 {s_t2}, {val}, {s_t2}")
        a(f"s_cmp_lt_u32 {s_t2}, {val}")
        a(f"s_cbranch_scc1 K_FG{name}")

    def fadd(off, v=None):
        a("s_mov_b64 exec, 1")
        a(f"ds_add_u32 {v_gy}, {v or v_one} offset:{off}")
        a("s_mov_b64 exec, -1")

    a(f"s_cmp_lt_u32 {s_w}, 4")
    a("s_cbranch_scc1 K_AUX_LO")
    wr, gw = xr + 40, xr + 80
    a(f"s_lshl_b32 {s_tmp}, {s_w}, 3")
    a(f"s_add_u32 {s_tmp}, {s_tmp}, {s_k1}")
    a(f"s_sub_u32 {s_tmp}, {s_tmp}, 32")
    a(f"v_lshrrev_b32 {v_row}, 3, {v_lane}")
    a(f"v_add_u32 {v_row}, {s_tmp}, {v_row}")
    a(f"v_and_b32 {v_c16}, 7, {v_lane}")
    a(f"v_lshlrev_b32 {v_c16}, 4, {v_c16}")
    a(f"v_mul_u32_u24 {v_xo}, 1280, {v_row}")
    a(f"v_add_u32 {v_xo}, {v_xo}, {v_c16}")
    a(f"v_lshlrev_b32 {v_t0}, 4, {v_lane}")
    a(f"s_and_b32 {s_so}, {s_w}, 1")
    a(f"s_lshl_b32 {s_so}, {s_so}, 10")
    a(f"s_lshl_b32 {s_tmp}, {s_w}, 10")
    a(f"s_add_u32 m0, {s_tmp}, {WV - 4096}")
    a(f"s_mov_b32 {sR+2}, 1280")
    a(f"s_mov_b32 {sR+3}, 0x20000")
    a(f"s_cmp_lt_u32 {s_w}, 6")
    a("s_waitcnt lgkmcnt(0)")
    a(f"s_cselect_b64 {sR(2)}, {s_pm(2)}, {s_pg(2)}")
    a(f"buffer_load_dwordx4 {v_t0}, {sR(4)}, {s_so} offen lds")
    for j in range(10):
        a(f"buffer_load_dwordx4 {(xr+4*j)(4)}, {v_xo}, {sX(4)}, 0 offen offset:{j*128}")
    stamp(a, "ax")
    a(f"v_add_u32 {v_c16}, {WV}, {v_c16}")
    a("s_barrier")
    ar = V.many(4)
    for i in range(4):
        a(f"v_mov_b32 {ar[i]}, 0")
    v_kw = v_xo
    a(f"v_and_b32 {v_kw}, 31, {v_row}")
    a(f"v_lshlrev_b32 {v_kw}, 2, {v_kw}")
    a(f"v_add_u32 {v_kw}, {KEYS}, {v_kw}")
    a(f"v_sub_u32 {v_t2}, 0x87ff, {v_row}")
    a("s_setprio 2")
    stamp(a, "rb")
    a("s_waitcnt vmcnt(10)")
    fadd(W_WV)
    fgate("WV", W_WV, 4, 0)
    stamp(a, "rw")
    for k, wv in enumerate((wr, gw)):
        for j in range(10):
            a(f"ds_read_b128 {(wv+4*j)(4)}, {v_c16} offset:{k*2048 + j*128}")
    a("s_waitcnt lgkmcnt(0)")
    for j in range(10):
        a(f"s_waitcnt vmcnt({9 - j})")
        stamp(a, f"rx{j}")
        for e in range(4):
            for k, wv in enumerate((wr, gw)):
                a(f"v_dot2c_f32_bf16 {ar[2*k + (e&1)]}, {xr+4*j+e}, {wv+4*j+e}")
    a("s_nop 2")
    a(f"v_add_f32 {ar[0]}, {ar[0]}, {ar[1]}")
    a(f"v_add_f32 {ar[2]}, {ar[2]}, {ar[3]}")
    for dpp in ("quad_perm:[1,0,3,2]", "quad_perm:[2,3,0,1]", "row_half_mirror"):
        a("s_nop 0")
        for v in (ar[0], ar[2]):
            a(f"v_add_f32_dpp {v}, {v}, {v} {dpp} row_mask:0xf bank_mask:0xf")
    bf16r(a, v_t0, ar[0])
    a(f"v_ashrrev_i32 {v_t1}, 31, {v_t0}")
    a(f"v_or_b32 {v_t1}, 0x80000000, {v_t1}")
    a(f"v_xor_b32 {v_t0}, {v_t0}, {v_t1}")
    a(f"v_and_b32 {v_t0}, 0xffff0000, {v_t0}")
    a(f"v_or_b32 {v_t0}, {v_t0}, {v_t2}")
    a(f"ds_write2_b32 {v_kw}, {v_t0}, {ar[2]} offset0:0 offset1:32")
    fadd(W_RT)
    a("s_setprio 0")
    stamp(a, "rdone")
    warm("A", s_w, 4)
    a(f"s_cmp_ge_u32 {s_w}, 6")
    a(f"s_cselect_b32 {s_j}, 63, {s_j}")
    a(f"s_cmp_lg_u32 {s_j}, 63")
    a("s_cbranch_scc1 K_FFN_C")
    fgate("H", W_K, 1, 8)
    a(f"s_cmp_eq_u32 {s_w}, 6")
    a("s_cbranch_scc1 K_P2_HELP")
    a(f"v_mov_b32 {v_smp}, 1")
    if P("PG", 0):
        fgate("PG", 44, 4, 8)
    a("s_branch K_P2_HELP")

    a.label("K_AUX_LO")
    a(f"v_mov_b32 {v_t0}, {EPO}")
    a(f"s_cmp_lg_u32 {s_w}, 0")
    a("s_waitcnt lgkmcnt(0)")
    a("s_cbranch_scc1 K_AUX_LO1")
    a(f"global_load_dword {xr+1}, {v_t0}, {WS(2)} {SC_POLL}")
    a.label("K_AUX_LO1")
    a("s_barrier")
    a(f"s_cmp_eq_u32 {s_w}, 0")
    a("s_cbranch_scc1 K_AUX_PUB")
    a(f"s_cmp_eq_u32 {s_j}, 63")
    a("s_cbranch_scc1 K_AUX_NOF")
    v_go, v_do = V.many(2)
    s_q, s_lb = s_k1, s_k2
    a(f"s_and_b32 {s_tmp}, {s_j}, {P('GUSWAP', 1)}")
    a(f"s_cmp_eq_u32 {s_tmp}, 0")
    a(f"s_cselect_b64 {sG(2)}, {(s_pm+2)(2)}, {(s_pm+4)(2)}")
    a(f"s_cselect_b64 {sU(2)}, {(s_pm+4)(2)}, {(s_pm+2)(2)}")
    a(f"s_cselect_b32 {s_lb}, {GA}, {UP}")
    for d in (sG, sU):
        a(f"s_mov_b32 {d+2}, 0x{640*3456:x}")
        a(f"s_mov_b32 {d+3}, 0x20000")
    a(f"v_lshrrev_b32 {v_t0}, 2, {v_lane}")
    a(f"v_mul_u32_u24 {v_go}, 3456, {v_t0}")
    a(f"v_and_b32 {v_t0}, 3, {v_lane}")
    a(f"v_lshl_add_u32 {v_go}, {v_t0}, 4, {v_go}")
    a(f"s_lshl_b32 {s_so}, {s_j}, 6")
    a(f"v_add_u32 {v_go}, {s_so}, {v_go}")
    FT = P("FTHR", 8)

    def stream(name, v, d, stride, lim):
        a.label(f"K_FS{name}")
        a(f"s_lshl_b32 {s_m0}, {s_q}, 10")
        if stride:
            a(f"s_mul_i32 {s_so}, {s_q}, {stride}")
        else:
            a(f"s_and_b32 {s_so}, {s_q}, 3")
            a(f"s_mul_i32 {s_so}, {s_so}, {10240 - 32}")
            a(f"s_lshl_b32 {s_tmp}, {s_q}, 5")
            a(f"s_add_u32 {s_so}, {s_so}, {s_tmp}")
        a(f"s_add_u32 m0, {s_m0}, {s_lb}")
        a(f"s_waitcnt vmcnt({FT-1})")
        a(f"buffer_load_dwordx4 {v}, {d(4)}, {s_so} offen lds")
        a(f"s_add_u32 {s_q}, {s_q}, 3")
        a(f"s_cmp_lt_u32 {s_q}, {lim}")
        a(f"s_cbranch_scc1 K_FS{name}")

    a(f"s_sub_u32 {s_q}, {s_w}, 1")
    stamp(a, "a0")
    stream("A0", v_go, sG, 55296, 3 * P("FA0", FT))
    if P("FPAUSE", 1):
        fgate("PB", W_RT, 5, 1)
    stamp(a, "a1s")
    stream("A", v_go, sG, 55296, 40)
    stamp(a, "a2s")
    a(f"s_sub_u32 {s_q}, {s_q}, 40")
    a(f"s_xor_b32 {s_lb}, {s_lb}, {GA ^ UP}")
    srd(a, sD, s_pm + 6, 1728 * 1280)
    a(f"s_mul_i32 {s_tmp}, {s_j}, 40960")
    wo_voff(v_do, s_tmp)
    stream("B", v_go, sU, 55296, 40)
    stamp(a, "b2s")
    a(f"s_sub_u32 {s_q}, {s_q}, 40")
    a(f"s_mov_b32 {s_lb}, {DN}")
    stream("D0", v_do, sD, 0, 3 * FT)
    a(f"s_waitcnt vmcnt({FT})")
    fadd(W_D)
    stamp(a, "dmad")
    stream("D", v_do, sD, 0, 40)
    if P("WTCH", 1):
        a(f"s_mul_i32 {s_tmp}, {s_i}, 96")
        a(f"s_lshl_b32 {s_so}, {s_w}, 5")
        a(f"s_add_u32 {s_tmp}, {s_tmp}, {s_so}")
        a(f"s_sub_u32 {s_tmp}, {s_tmp}, 128")
        a(f"v_lshrrev_b32 {v_t0}, 1, {v_lane}")
        a(f"v_add_u32 {v_t0}, {s_tmp}, {v_t0}")
        a(f"v_mul_u32_u24 {v_t0}, 1280, {v_t0}")
        a(f"v_and_b32 {v_t1}, 1, {v_lane}")
        a(f"v_lshl_add_u32 {v_t0}, {v_t1}, 7, {v_t0}")
        a(f"buffer_load_dword {v_pf}, {v_t0}, {sWO(4)}, 0 offen offset:1024")
    a.label("K_AUX_WR")
    if P("WG3", 0):
        a("s_waitcnt vmcnt(0)")
        fadd(W_P)
        if P("WG3", 0) == 1:
            fgate("W3", W_P, 5, 4)
        else:
            fgate("W3", W_K, 1, 4)
    fgate("R", W_R, 2, 2)
    a("s_branch K_P2")

    a.label("K_AUX_NOF")
    a("s_cmp_lg_u32 s2, 63")
    a("s_cbranch_scc1 K_AUX_NOZ")
    a(f"s_cmp_lg_u32 {s_w}, 1")
    a("s_cbranch_scc1 K_AUX_NOZ")
    srd(a, sG, WS, ZBYTES, FL_OFF)
    v_ea, v_tag = v_row, v_xo
    a(f"v_mov_b32 {v_ea}, {EPO}")
    a(f"global_load_dword {v_tag}, {v_ea}, {WS(2)} {SC_POLL}")
    A2S = P("A2S", 4)
    a(f"v_lshlrev_b32 {v_c16}, {A2S}, {v_lane}")
    a(f"v_add_u32 {v_c16}, {AG2}, {v_c16}")
    if P("A2T", 1):
        a(f"global_load_dword {v_pf}, {v_c16}, {WS(2)} {SC_POLL}")
    fgate("Z", W_RT, 4, 2)
    zaddr(v_t2)
    zsample(v_t2)
    a("s_waitcnt vmcnt(1)")
    a(f"v_add_u32 {v_tag}, 1, {v_tag}")
    a(f"s_mov_b32 {s_tmp}, {SPIN}")
    a("s_setprio 3")
    a.label("K_AG2_POLL")
    a(f"global_load_dwordx4 {xr(4)}, {v_c16}, {WS(2)} {SC_POLL}")
    a("s_waitcnt vmcnt(0)")
    a(f"v_xor_b32 {v_t0}, {v_tag}, {xr+1}")
    a(f"v_xor_b32 {v_t1}, {v_tag}, {xr+3}")
    a(f"v_or_b32 {v_t0}, {v_t0}, {v_t1}")
    a(f"v_cmp_ne_u32 vcc, 0, {v_t0}")
    a("s_cbranch_vccz K_AG2_GOT")
    a(f"s_sleep {P('ASLEEP', 2)}")
    a(f"s_sub_u32 {s_tmp}, {s_tmp}, 1")
    a(f"s_cmp_lg_u32 {s_tmp}, 0")
    a("s_cbranch_scc1 K_AG2_POLL")
    a.label("K_AG2_GOT")
    wave_max_u32(a, xr, v_t1, s_k1, s_t3)
    a(f"v_cmp_ne_u32 vcc, {s_k1}, {xr}")
    a("s_nop 1")
    a(f"v_cndmask_b32 {v_t0}, {xr+2}, {xr}, vcc")
    wave_max_u32(a, v_t0, v_t1, s_k2, s_t3)
    a(f"v_mov_b32 {vk}, {s_k1}")
    a(f"v_mov_b32 {vk+1}, {s_k2}")
    zpoll(4)
    a(f"v_and_b32 {v_t0}, 7, {v_lane}")
    a(f"v_mul_u32_u24 {v_t0}, 20, {v_t0}")
    a(f"v_lshrrev_b32 {v_t1}, 3, {v_lane}")
    a(f"v_add_lshl_u32 {v_t0}, {v_t0}, {v_t1}, 8")
    a(f"buffer_store_dwordx2 {vk(2)}, {v_t0}, {sG(4)}, 0 offen offset:136 {SC_FLAG}")
    stamp(a, "agg2")
    a("s_mov_b64 exec, 1")
    a(f"global_store_dword {v_ea}, {v_tag}, {WS(2)} {SC_FLAG}")
    a("s_mov_b64 exec, -1")
    a(f"v_lshlrev_b32 {v_t2}, 2, {v_lane}")
    a(f"s_mov_b32 {s_so}, {AGG}")
    a(f"s_mov_b32 {s_tmp}, {SPIN}")
    a.label("K_AGG_POLL")
    a(f"s_sleep {P('ASLEEP2', 8)}")
    a(f"buffer_load_dword {v_t0}, {v_t2}, {sG(4)}, {s_so} offen {SC_POLL}")
    a("s_waitcnt vmcnt(0)")
    a(f"v_cmp_eq_u32 vcc, 0, {v_t0}")
    a("s_cbranch_vccz K_AGG_GOT")
    a(f"s_sub_u32 {s_tmp}, {s_tmp}, 1")
    a(f"s_cmp_lg_u32 {s_tmp}, 0")
    a("s_cbranch_scc1 K_AGG_POLL")
    a.label("K_AGG_GOT")
    a(f"s_mov_b32 {sG+2}, {YFL}")
    a(f"v_lshlrev_b32 {v_t1}, 8, {v_lane}")
    for k in range(3):
        a(f"s_mov_b32 {s_tmp}, {k*64*256}")
        a(f"buffer_store_dwordx2 {vk(2)}, {v_t1}, {sG(4)}, {s_tmp} offen offset:128 {SC_FLAG}")
    a("s_setprio 0")
    stamp(a, "agg")
    a("s_branch K_AUX_NOK")
    a.label("K_AUX_NOZ")
    a.label("K_AUX_NOK")
    if P("WDEF", 1):
        fgate("WD", W_K, 1, 4)
    a("s_branch K_P2")

    a.label("K_AUX_PUB")
    srd(a, sG, WS, 8192, G_OFF)
    a(f"v_and_b32 {v_t1}, 31, {v_lane}")
    a(f"v_lshlrev_b32 {v_xo}, 2, {v_t1}")
    a(f"v_add_u32 {v_c16}, {KEYS}, {v_xo}")
    a(f"s_lshl_b32 {s_so}, {s_k1}, 2")
    vq = xr
    a(f"s_lshl_b32 {s_tmp}, s2, 2")
    a(f"s_add_u32 {s_tmp}, {s_tmp}, {FL_OFF + AGG}")
    a(f"v_mov_b32 {v_row}, {s_tmp}")
    a(f"s_lshl_b32 {s_tmp}, s2, {A2S}")
    a(f"s_add_u32 {s_tmp}, {s_tmp}, {AG2}")
    a(f"v_lshl_add_u32 {vq+4}, {v_lane}, 4, {s_tmp}")
    zaddr(v_t3)
    a("s_setprio 3")
    a("s_waitcnt vmcnt(0)")
    a(f"v_add_u32 {vq+1}, 1, {vq+1}")
    a(f"v_mov_b32 {vq+3}, {vq+1}")
    fgate("RT", W_RT, 4, 0)
    a(f"ds_read2_b32 {vk(2)}, {v_c16} offset0:0 offset1:32")
    a("s_waitcnt lgkmcnt(0)")
    wave_top2(a, vk, v_t1, s_k1, s_k2, s_t3)
    a(f"v_mov_b32 {vq}, {s_k1}")
    a(f"v_mov_b32 {vq+2}, {s_k2}")
    a(f"s_mov_b64 exec, {(1 << (1 << (A2S - 4))) - 1}")
    a(f"global_store_dwordx4 {vq+4}, {vq(4)}, {WS(2)} {SC_FLAG}")
    a("s_mov_b64 exec, -1")
    fadd(W_RT)
    stamp(a, "pub")
    zsample(v_t3)
    bf16r(a, vk + 1, vk + 1)
    sigmoid(a, vk + 1, vk + 1, v_t1)
    bf16r(a, vk + 1, vk + 1)
    a("s_mov_b32 exec_hi, 0")
    a(f"buffer_store_dword {vk+1}, {v_xo}, {sG(4)}, {s_so} offen {SC_ST}")
    a("s_mov_b64 exec, -1")
    a("s_waitcnt vmcnt(0)")
    zpoll(3)
    a("s_mov_b64 exec, 1")
    a(f"global_store_dword {v_row}, {v_one}, {WS(2)} {SC_FLAG}")
    a("s_mov_b64 exec, -1")
    a(f"v_and_b32 {v_t1}, 1, {v_lane}")
    a(f"v_lshl_add_u32 {v_t1}, {v_t1}, 2, {s_mb}")
    a(f"v_lshlrev_b32 {v_xo}, 4, {v_lane}")
    a(f"s_mov_b32 {s_tmp}, {SPIN}")
    a.label("K_AUX_POLL")
    a(f"s_sleep {P('KSLEEP', 6)}")
    a(f"global_load_dword {v_t0}, {v_t1}, {WS(2)} offset:136 {SC_POLL}")
    a("s_waitcnt vmcnt(0)")
    a(f"v_cmp_eq_u32 vcc, 0, {v_t0}")
    a("s_cbranch_vccz K_AUX_GOT")
    a(f"s_sub_u32 {s_tmp}, {s_tmp}, 1")
    a(f"s_cmp_lg_u32 {s_tmp}, 0")
    a("s_cbranch_scc1 K_AUX_POLL")
    a.label("K_AUX_GOT")
    stamp(a, "polled")
    a(f"v_readlane_b32 {s_k1}, {v_t0}, 0")
    a(f"v_readlane_b32 {s_k2}, {v_t0}, 1")
    a("s_nop 3")
    for t, sk in enumerate((s_k1, s_k2)):
        a(f"s_and_b32 {sk}, {sk}, 0x7ff")
        a(f"s_sub_u32 {sk}, 2047, {sk}")
        a(f"s_mul_i32 {sk}, {sk}, 1280")
        a(f"s_mov_b32 m0, {XS + t*XSP}")
        a("s_nop 0")
        a(f"buffer_load_dwordx4 {v_xo}, {sX(4)}, {sk} offen lds")
        a("s_mov_b64 exec, 0xffff")
        a(f"buffer_load_dwordx4 {v_xo}, {sX(4)}, {sk} offen offset:1024 lds")
        a("s_mov_b64 exec, -1")
    a("s_waitcnt vmcnt(0)")
    a(f"ds_write_b32 {v_gy}, {v_one} offset:{W_K}")
    a("s_setprio 0")
    stamp(a, "xsel")
    a("s_branch K_P2")

    page()
    a.label("K_FFN_C")
    srd(a, sU, WS, YP_BYTES, YP_OFF)
    wf, df, yf = xr, xr, xr + 80
    xf = V.many(8, 4)
    pacc = V.many(2, 4)
    hv = V.a(4)
    v_g, v_wa, v_xa, v_hw, v_hr, v_yo = V.many(6)
    v_da = V.many(4)
    a(f"s_and_b32 {s_m0}, {s_w}, 1")
    a(f"v_lshrrev_b32 {v_g}, 4, {v_lane}")
    a(f"v_bfe_u32 {v_t2}, {v_lane}, 2, 2")
    a(f"v_lshl_add_u32 {v_t0}, {v_g}, 3, {v_t2}")
    a(f"v_and_b32 {v_t1}, 3, {v_lane}")
    a(f"v_lshlrev_b32 {v_t1}, 3, {v_t1}")
    a(f"v_lshl_add_u32 {v_wa}, {v_t0}, 6, {v_t1}")
    a(f"s_lshl_b32 {s_so}, {s_m0}, 5")
    assert GA == 0
    a(f"v_add_u32 {v_wa}, {s_so}, {v_wa}")
    a(f"v_lshl_add_u32 {v_t0}, {v_g}, 2, {v_t2}")
    a(f"v_bfe_u32 {v_t2}, {v_t0}, 1, 2")
    a(f"v_lshl_add_u32 {v_t1}, {v_t0}, 7, {v_t1}")
    a(f"v_lshl_add_u32 {v_t1}, {v_t2}, 5, {v_t1}")
    a(f"s_mul_i32 {s_tmp}, {s_m0}, {5*4096}")
    a(f"s_add_u32 {s_tmp}, {s_tmp}, {DN}")
    a(f"v_add_u32 {v_da[0]}, {s_tmp}, {v_t1}")
    for u in range(1, 4):
        a(f"v_xor_b32 {v_da[u]}, {u*32}, {v_da[0]}")
    a(f"v_and_b32 {v_t0}, 1, {v_lane}")
    a(f"v_mul_u32_u24 {v_xa}, {XSP}, {v_t0}")
    a(f"v_lshl_add_u32 {v_xa}, {v_g}, 4, {v_xa}")
    a(f"v_add_u32 {v_xa}, {XS}, {v_xa}")
    a(f"v_lshlrev_b32 {v_hr}, 4, {v_lane}")
    a(f"v_add_u32 {v_hr}, {HB}, {v_hr}")
    a(f"s_lshl_b32 {s_tmp}, {s_m0}, 3")
    a(f"v_add_u32 {v_hw}, {s_tmp}, {v_hr}")
    a(f"v_lshlrev_b32 {v_yo}, 2, {v_lane}")
    a(f"s_mul_i32 {s_tmp}, {s_j}, 5120")
    a(f"s_mul_i32 {s_so}, {s_m0}, 1280")
    a(f"s_add_u32 {s_so}, {s_so}, {s_tmp}")
    if P("YPRE", 1):
        a(f"v_lshlrev_b32 {v_t0}, 4, {v_lane}")
        for t in range(2):
            a(f"buffer_store_dwordx4 {xr(4)}, {v_t0}, {sU(4)}, {s_so} offen offset:{t*2560} {SC_ST}")
        a("s_mov_b64 exec, 0xffff")
        for t in range(2):
            a(f"buffer_store_dwordx4 {xr(4)}, {v_t0}, {sU(4)}, {s_so} offen offset:{t*2560 + 1024} {SC_ST}")
        a("s_mov_b64 exec, -1")
    a(f"v_add_u32 {v_t3}, {UP}, {v_wa}")
    fgate("D", W_D, 3, 2)
    a("s_setprio 3")
    for k, va_ in enumerate((v_wa, v_t3)):
        for q in range(20):
            for h in range(2):
                a(f"ds_read_b64_tr_b16 {(wf+80*k+4*q+2*h)(2)}, {va_} offset:{q*2048 + h*256}")
    a("s_waitcnt vmcnt(0) lgkmcnt(0)")
    fadd(W_R)
    fgate("K", W_K, 1)
    stamp(a, "fgo")
    for q in range(7):
        a(f"ds_read_b128 {xf[q](4)}, {v_xa} offset:{q*64}")
    for q in range(20):
        if q + 7 < 20:
            a(f"ds_read_b128 {xf[(q+7)%8](4)}, {v_xa} offset:{(q+7)*64}")
        a(f"s_waitcnt lgkmcnt({min(7, 19 - q)})")
        for k in range(2):
            a(f"{MFMA} {pacc[k](4)}, {(wf+80*k+4*q)(4)}, {xf[q%8](4)}, {'0' if q == 0 else pacc[k](4)}")
    stamp(a, "pre")
    f_ = Asm()
    ha = xf[4:8]
    for j in range(4):
        for k in range(2):
            f_(f"v_mov_b64 {(ha[j]+2*k)(2)}, 0")
    f_(f"v_mov_b32 {v_t3}, 0x100")
    ga, ua, sg = pacc[0], pacc[1], xf[0]
    for k in range(2):
        for h in range(2):
            f_(f"v_cvt_pk_bf16_f32 {pacc[k]+2*h+1}, {pacc[k]+2*h}, {pacc[k]+2*h+1}")
            f_(f"v_lshlrev_b32 {pacc[k]+2*h}, 16, {pacc[k]+2*h+1}")
            f_(f"v_and_b32 {pacc[k]+2*h+1}, 0xffff0000, {pacc[k]+2*h+1}")
    for i in range(4):
        f_(f"v_mul_f32 {sg+i}, 0x{LOG2E ^ 0x80000000:x}, {ga+i}")
    for i in range(4):
        f_(f"v_exp_f32 {sg+i}, {sg+i}")
    for i in range(4):
        f_(f"v_add_f32 {sg+i}, 1.0, {sg+i}")
    for i in range(4):
        f_(f"v_rcp_f32 {sg+i}, {sg+i}")
    for i in range(4):
        f_(f"v_mul_f32 {ga+i}, {ga+i}, {sg+i}")
    for h in range(2):
        f_(f"v_cvt_pk_bf16_f32 {ga+2*h+1}, {ga+2*h}, {ga+2*h+1}")
        f_(f"v_lshlrev_b32 {ga+2*h}, 16, {ga+2*h+1}")
        f_(f"v_and_b32 {ga+2*h+1}, 0xffff0000, {ga+2*h+1}")
    for i in range(4):
        f_(f"v_mul_f32 {ga+i}, {ga+i}, {ua+i}")
    for h in range(2):
        f_(f"v_cvt_pk_bf16_f32 {hv+h}, {ga+2*h}, {ga+2*h+1}")
    f_(f"ds_write_b64 {v_hw}, {hv(2)}")
    a.lines += hz.fix(f_.lines)
    stamp(a, "y1")
    fadd(W_P, v_t3)
    fgate("P", W_P, 0x203, 0)
    stamp(a, "y2")
    for j in range(4):
        m_ = 0x000f000f << (4 * j)
        a(f"s_mov_b32 exec_lo, 0x{m_:x}")
        a(f"s_mov_b32 exec_hi, 0x{m_:x}")
        a(f"ds_read_b128 {ha[j](4)}, {v_hr}")
    a("s_mov_b64 exec, -1")
    f_ = Asm()
    rd = [f"ds_read_b64_tr_b16 {(df+4*q+2*h)(2)}, {v_da[q&3]} offset:{(q>>2)*4096 + h*2048}" for q in range(20) for h in range(2)]
    for l in rd[:10]:
        f_(l)
    rd = rd[10:]
    for q in range(20):
        d = yf + 4 * (q >> 2)
        f_(f"{MFMA} {d(4)}, {ha[q&3](4)}, {(df+4*q)(4)}, {d(4) if q & 3 else '0'}")
        for l in rd[:2]:
            f_(l)
        rd = rd[2:]
        if q >= 7 and q % 4 == 3:
            for t in range(2):
                f_(f"buffer_store_dword {d-4+t}, {v_yo}, {sU(4)}, {s_so} offen offset:{t*2560 + (q//4-1)*256} {SC_ST}")
    for t in range(2):
        f_(f"buffer_store_dword {yf+16+t}, {v_yo}, {sU(4)}, {s_so} offen offset:{t*2560 + 4*256} {SC_ST}")
    a.lines += hz.fix(hz.lgkm(f_.lines, [hz.regs(ha[j](4)) for j in range(4)]))
    stamp(a, "y4")
    a(f"s_mul_i32 {s_tmp}, {s_m0}, {10*256}")
    a(f"s_lshl2_add_u32 {s_tmp}, {s_j}, {s_tmp}")
    a(f"s_add_u32 {s_tmp}, {s_tmp}, {FL_OFF + YF2}")
    a(f"v_lshl_add_u32 {v_t0}, {v_lane}, 8, {s_tmp}")
    a("s_mov_b64 exec, 0x3ff")
    a("s_waitcnt vmcnt(0)")
    stamp(a, "ydone")
    a(f"global_store_dword {v_t0}, {v_one}, {WS(2)} {SC_FLAG}")
    a("s_mov_b64 exec, -1")
    a("s_branch K_P2_HELP")
    seg_aux1 = len(a.lines)

    S.release(mS)
    V.release(mV)
    sG, sY, sOut = sW, S.a(4), S.a(4)
    s_so, s_tg, s_row0, s_c20 = S.many(4)
    s_sel = S.a(2)
    s_k1, s_k2 = S.many(2)
    s_t3 = S.a(3)
    s_rdy, s_sh0, s_sh1, s_done, s_c16 = S.many(5)
    s_q4 = ["0"] + S.many(3)
    v_g, v_fa, v_da, v_yb = V.many(4)
    vsel = V.a(4)
    mV3 = V.mark()
    W_Y = 64
    v_r, v_c, v_wo, v_go, v_n0 = V.many(5)
    v_oo = V.many(2)
    v_so = V.many(2)
    v_sa = V.many(4)
    v_sr, v_inc = V.many(2)
    v_ot2 = V.many(2)
    xv = [V.many(2, 4) for _ in range(2)]
    s_ob = S.many(4)
    PERM = [0, 2, 5, 7, 1, 3, 4, 6]
    va, vt = V.many(4), V.many(4)
    gv, om = V.many(2, 2), V.many(2, 2)
    bx = [V.many(4, 4) for _ in range(2)]

    def p2_common():
        a(f"s_lshl_b32 {s_row0}, {s_rt2}, 7")
        a(f"v_lshrrev_b32 {v_g}, 4, {v_lane}")
        a(f"v_mov_b32 {v_yb}, {YB}")

    def p2_gemm_setup():
        p2_common()
        srd(a, sO, WS, O_BYTES, O_OFF)
        srd(a, sG, WS, 8192, G_OFF)
        srd(a, sOut, s_po, X_BYTES)
        a(f"s_lshl_b32 {s_tg}, {s_rt2}, 3")
        a(f"s_lshl1_add_u32 {s_tg}, {s_w}, {s_tg}")
        a(f"s_mov_b32 {s_c20}, 20480")
        a(f"v_bfe_u32 {v_r}, {v_lane}, 2, 2")
        a(f"v_and_b32 {v_c}, 3, {v_lane}")
        a(f"s_mul_i32 {s_tmp}, {s_tg}, 20480")
        a(f"v_lshl_add_u32 {v_oo[0]}, {v_lane}, 4, {s_tmp}")
        a(f"v_add_u32 {v_oo[1]}, 20480, {v_oo[0]}")
        for m in range(2):
            a(f"v_add_u32 {v_ot2[m]}, 16384, {v_oo[m]}")
        a(f"v_and_b32 {v_t0}, 15, {v_lane}")
        a(f"s_lshl_b32 {s_tmp}, {s_tg}, 6")
        a(f"v_lshl_add_u32 {v_go}, {v_t0}, 2, {s_tmp}")
        a(f"v_lshl_add_u32 {v_t0}, {v_g}, 2, {v_r}")
        a(f"v_bfe_u32 {v_t1}, {v_t0}, 1, 2")
        a(f"v_lshlrev_b32 {v_t0}, 7, {v_t0}")
        a(f"v_lshl_add_u32 {v_t0}, {v_c}, 3, {v_t0}")
        assert WO_L == 0
        a(f"v_lshl_add_u32 {v_n0}, {v_t1}, 5, {v_t0}")
        a(f"v_lshrrev_b32 {v_t1}, 1, {v_r}")
        a(f"v_mul_u32_u24 {v_t0}, 40, {v_g}")
        a(f"v_add3_u32 {v_t0}, {v_t0}, 16, {v_r}")
        a(f"v_lshlrev_b32 {v_t0}, 7, {v_t0}")
        a(f"v_lshl_add_u32 {v_t0}, {v_c}, 3, {v_t0}")
        for t in range(4):
            a(f"v_xor_b32 {v_t2}, {t}, {v_t1}")
            a(f"v_lshl_add_u32 {vt[t]}, {v_t2}, 5, {v_t0}")
        row_lanes(v_so)
        x_base(s_ob[0], s_w)
        for j in range(1, 4):
            a(f"s_add_u32 {s_ob[j]}, {s_ob[0]}, {j*10240}")
        a(f"s_lshl_b32 {s_tmp}, {s_w}, 12")
        a(f"s_add_u32 {s_tmp}, {s_tmp}, {STG}")
        a(f"v_lshl_add_u32 {v_sr}, {v_lane}, 4, {s_tmp}")
        a(f"v_and_b32 {v_t0}, 15, {v_lane}")
        a(f"v_lshrrev_b32 {v_t1}, 1, {v_t0}")
        a(f"v_lshrrev_b32 {v_t2}, 5, {v_lane}")
        a(f"v_xor_b32 {v_t1}, {v_t1}, {v_t2}")
        a(f"v_lshlrev_b32 {v_t1}, 4, {v_t1}")
        a(f"v_lshl_add_u32 {v_t1}, {v_t0}, 7, {v_t1}")
        a(f"v_and_b32 {v_t2}, 1, {v_g}")
        a(f"v_lshl_add_u32 {v_t1}, {v_t2}, 3, {v_t1}")
        a(f"v_add_u32 {v_sa[0]}, {s_tmp}, {v_t1}")
        assert STG % 128 == 0
        for t in range(1, 4):
            a(f"v_xor_b32 {v_sa[t]}, {t*32}, {v_sa[0]}")
        a(f"s_and_b32 {s_t2}, {s_rt2}, 3")
        a(f"s_lshl_b32 {s_t2}, {s_t2}, 3")
        a(f"s_lshr_b32 {s_t2}, 0x7f06037f, {s_t2}")
        a(f"s_and_b32 {s_t2}, {s_t2}, 0xff")
        a(f"s_lshl_b32 {s_tmp}, {s_w}, 1")
        a(f"s_cmp_ge_u32 {s_tmp}, {s_t2}")
        a(f"s_cselect_b32 {s_sh0}, 16, 0")
        a(f"s_add_u32 {s_tmp}, {s_tmp}, 1")
        a(f"s_cmp_ge_u32 {s_tmp}, {s_t2}")
        a(f"s_cselect_b32 {s_sh1}, 16, 0")
        a(f"s_mov_b32 {s_rdy}, 0")
        a(f"s_mov_b32 {s_done}, 0")
        a(f"s_mov_b32 {s_c16}, 16384")
        if P("P2ROT", 0):
            a(f"s_mul_i32 {s_q4[1]}, {s_ct}, {P('P2ROT', 0)}")
            a(f"s_and_b32 {s_q4[1]}, {s_q4[1]}, 7")
        if not P("DYN", 1):
            for u in range(1, 4):
                a(f"s_mov_b32 {s_q4[u]}, {u*4096}")

    def x_unpack():
        for m in range(2):
            for t in range(4):
                a(f"ds_read_b64 {(xv[m][t>>1]+2*(t&1))(2)}, {v_sa[t]} offset:{m*2048}")
        for m in range(2):
            a(f"s_waitcnt lgkmcnt({4 - 4*m})")
            for p_ in range(2):
                x_ = xv[m][p_]
                for i in range(4):
                    d = bx[m][2*p_ + (i >> 1)] + 2 * (i & 1)
                    a(f"v_lshlrev_b32 {d}, 16, {x_+i}")
                    a(f"v_and_b32 {d+1}, 0xffff0000, {x_+i}")

    def lgate(name, off, val, sleep=0, o=None, mask=None):
        o = o or a
        o(f"s_mov_b32 {s_tmp}, {SPIN*8}")
        o.label(f"K_P2_G{name}")
        o(f"ds_read_b32 {v_t0}, {v_yb} offset:{off}")
        if sleep:
            o(f"s_sleep {sleep}")
        o(f"s_sub_u32 {s_tmp}, {s_tmp}, 1")
        o("s_waitcnt lgkmcnt(0)")
        o(f"v_readfirstlane_b32 {s_t2}, {v_t0}")
        o("s_nop 3")
        o(f"s_cselect_b32 {s_t2}, {val}, {s_t2}")
        if mask:
            o(f"s_and_b32 {s_t2}, {s_t2}, {mask}")
        o(f"s_cmp_lt_u32 {s_t2}, {val}")
        o(f"s_cbranch_scc1 K_P2_G{name}")

    wpoint("early")
    a.label("K_P2_EARLY")
    p2_gemm_setup()
    a(f"v_mov_b32 {v_inc}, 0")
    arrive("D", 1)
    stamp(a, "drained")
    lgate("E", W_DR, 0x400)
    a.label("K_P2_GEMM")
    if P("P2XS", -1) >= 0:
        x_unpack()
    a(f"s_setprio {P('GPRIO', 0)}")
    stamp(a, "p2in")
    NB = P("P2NB", 3)
    RO = P("P2RO", 6)
    OA = P("P2OA", 5)
    assert NB <= OA <= RO
    assert RO > OA
    DYN = P("DYN", 1)
    s_of = S.many(OA - NB + 2)
    of = [V.many(2, 4) for _ in range(RO)]
    acc = [V.many(4, 4) for _ in range(2)]
    fb = [V.many(4, 4) for _ in range(NB)]
    TAIL = {8: 0, 9: 1, 18: 2, 19: 3}
    DT = DYN and P("DTAIL", 1)
    if DT:
        TAIL = {7: 0, 9: 1, 17: 2, 19: 3}
    SPOS = [0, 4, 1, 5, 2, 6, 3, 7]
    spin = Asm()
    wpoint("spin", asm=spin, align=True)
    VQ, LQ = [], []

    def fetch(r_):
        r_(f"ds_read_b32 {v_t0}, {v_yb} offset:32")
        r_("s_waitcnt lgkmcnt(0)")
        r_(f"v_readfirstlane_b32 {s_t2}, {v_t0}")
        r_("s_nop 3")
        r_(f"s_lshr_b32 {s_rdy}, {s_t2}, {s_sh0}")
        r_(f"s_lshr_b32 {s_t2}, {s_t2}, {s_sh1}")
        r_(f"s_and_b32 {s_rdy}, {s_rdy}, {s_t2}")

    def oload(s):
        L = []
        so, off = s_of[s % len(s_of)], 0
        if s in TAIL and DT:
            u0 = TAIL[s] & 2
            if s % 10 == 7:
                L += [f"s_andn2_b32 {s_t2}, {s_done}, {s_rdy}", f"s_bfe_u32 {s_t2}, {s_t2}, 0x{(4 << 16) | (4 * u0):x}",
                      f"s_cmp_eq_u32 {s_t2}, 15", f"s_cselect_b32 {so}, 0, 1024", f"s_xor_b32 {s_q4[2]}, {so}, 1024"]
            else:
                so = s_q4[2]
            off = u0 * 1024
            L = [(None, None, l) for l in L]
            for m in range(2):
                L.append(("v", s, f"buffer_load_dwordx4 {of[s % RO][m](4)}, {v_ot2[m]}, {sO(4)}, {so} offen offset:{off} {SC_LD}"))
            return L
        elif s in TAIL:
            so, off = s_c16, TAIL[s] * 1024
        elif DYN:
            L += [f"s_cmp_eq_u32 {s_rdy}, 0", f"s_cbranch_scc1 K_SP{s}\nK_SPR{s}:", f"s_ff1_i32_b32 {s_t2}, {s_rdy}",
                  f"s_bitset0_b32 {s_rdy}, {s_t2}"]
            if P("P2ROT", 0):
                L.append(f"s_xor_b32 {s_t2}, {s_t2}, {s_q4[1]}")
            L.append(f"s_lshl_b32 {so}, {s_t2}, 10")
            spin.label(f"K_SP{s}")
            fetch(spin)
            spin(f"s_and_b32 {s_rdy}, {s_rdy}, 0x{0xff00 if s > 9 else 0xff:x}")
            spin(f"s_andn2_b32 {s_rdy}, {s_rdy}, {s_done}")
            spin(f"s_cbranch_scc0 K_SP{s}")
            spin(f"s_or_b32 {s_done}, {s_done}, {s_rdy}")
            spin(f"s_branch K_SPR{s}")
        else:
            ps = SPOS[s % 10] + (8 if s > 9 else 0)
            so, off = (s_q4[ps >> 2], (ps & 3) * 1024)
            L += [f"s_bitcmp0_b32 {s_rdy}, {ps}", f"s_cbranch_scc1 K_SP{s}\nK_SPR{s}:"]
            spin.label(f"K_SP{s}")
            fetch(spin)
            spin(f"s_bitcmp0_b32 {s_rdy}, {ps}")
            spin(f"s_cbranch_scc1 K_SP{s}")
            spin(f"s_branch K_SPR{s}")
        L = [(None, None, l) for l in L]
        for m in range(2):
            L.append(("v", s, f"buffer_load_dwordx4 {of[s % RO][m](4)}, {v_oo[m]}, {sO(4)}, {so} offen offset:{off} {SC_LD}"))
        return L

    def read_list(s):
        b = s % NB
        L = []
        if s in TAIL and DT:
            n_, off = va, (TAIL[s] & 2) * 20480
            so = s_of[s % len(s_of)] if s % 10 == 7 else s_q4[2]
            L.append((None, None, f"v_mad_u32_u24 {va[0]}, {so}, 20, {vt[0]}"))
            L += [(None, None, f"v_xor_b32 {va[t]}, {t*32}, {va[0]}") for t in (2, 1, 3)]
        elif s in TAIL:
            n_, off = vt, TAIL[s] * 20480
        elif DYN:
            n_, off = va, 0
            L.append((None, None, f"v_mad_u32_u24 {va[0]}, {s_of[s % len(s_of)]}, 5, {v_n0}"))
            L += [(None, None, f"v_xor_b32 {va[t]}, {t*32}, {va[0]}") for t in (2, 1, 3)]
        else:
            n_, off = va, SPOS[s % 10] * 5120
            if s == 10:
                L += [(None, None, f"v_add_u32 {va[t]}, 40960, {va[t]}") for t in range(4)]
        for t in range(4):
            L.append(("l", s, f"ds_read_b64_tr_b16 {fb[b][t](2)}, {n_[t]} offset:{off}"))
            L.append(("l", s, f"ds_read_b64_tr_b16 {(fb[b][t]+2)(2)}, {n_[t^2]} offset:{off + 2560}"))
        return L

    def emit(tl):
        for kind, tag, l in tl:
            for x_ in l.split("\n"):
                if x_.endswith(":"):
                    a.label(x_[:-1])
                else:
                    a(x_)
            if kind:
                (VQ if kind == "v" else LQ).append(tag)

    def wait_step(tag):
        w = []
        for q, nm, cap in ((VQ, "vmcnt", 63), (LQ, "lgkmcnt", 15)):
            idx = [i for i, t in enumerate(q) if t == tag]
            if idx:
                n = min(len(q) - 1 - idx[-1], cap)
                w.append(f"{nm}({n})")
                del q[:len(q) - n]
        a("s_waitcnt " + " ".join(w))

    EP = []
    for m in range(2):
        EP += [f"v_sub_f32 {om[m]}, 1.0, {gv[m]}", f"v_cvt_pk_bf16_f32 {om[m]}, {om[m]}, {om[m]}", f"v_lshlrev_b32 {om[m]}, 16, {om[m]}"]
    for m in range(2):
        for t in range(4):
            for h in range(2):
                d = bx[m][t] + 2 * h
                EP.append(f"v_pk_mul_f32 {d(2)}, {d(2)}, {om[m](2)} op_sel_hi:[1,0]")
    if not DYN:
        for t in range(4):
            a(f"v_xor_b32 {va[t]}, {t*32}, {v_n0}")
        for s in range(NB - 1):
            emit(read_list(s))
    if P("ALLW", 0):
        lgate("ALL", 32, -1)
        a("s_sleep 32")
    XS = P("P2XS", -1)
    if XS < 0:
        lgate("S", 40, 1)
        for m in range(2):
            a(f"buffer_load_dword {gv[m]}, {v_go}, {sG(4)}, 0 offen offset:{64*m} {SC_LD}")
        a(f"ds_read_b128 {vsel(4)}, {v_yb}")
        del LQ[:]
        x_unpack()
    for s in range(OA):
        emit(oload(s))
        if s == 0:
            stamp(a, "p2goA")
        if s < NB - 1 and DYN:
            emit(read_list(s))
        if s == P("P2SC", 1) and XS < 0:
            a(f"s_waitcnt vmcnt({len(VQ)})")
            a("s_mov_b64 exec, 1")
            a(f"ds_add_u32 {v_yb}, {v_inc} offset:44")
            a("s_mov_b64 exec, -1")
            LQ.append("add")
            while EP:
                a(EP.pop(0))
    wpoint("p2g", skip=True, align=True)
    YS = P("P2YS", 15)
    rare = Asm()
    for s in range(20):
        stamp(a, f"s{s}")
        if s == XS:
            lgate("S", 40, 1)
            for m in range(2):
                a(f"buffer_load_dword {gv[m]}, {v_go}, {sG(4)}, 0 offen offset:{64*m} {SC_LD}")
            a(f"ds_read_b128 {vsel(4)}, {v_yb}")
            VQ.extend(["x"] * 2)
            del LQ[:]
            LQ.append("sel")
        if s - 1 + NB == 10:
            lgate("W", 44, 4)
            del LQ[:]
            assert s > XS
            for k in range(2):
                a(f"v_readfirstlane_b32 {s_sel+k}, {vsel+k}")
            a(f"s_lshl_b32 {s_k1}, {s_tg}, 4")
            stamp(a, "p2w2")
        if s == 18:
            break
        wait_step(s)
        F = (read_list(s - 1 + NB) if s - 1 + NB < 20 else []) + (oload(s + OA) if s + OA < 20 else [])
        if s >= YS:
            assert "x" not in VQ
            while len(F) < 16 and EP:
                F.append((None, None, EP.pop(0)))
        PL = P("P2PL", 0)
        if PL:
            ld = [f for f in F if f[0] == "v"]
            sc_ = [f for f in F if f[0] is None and f[2].startswith("s_")]
            ot_ = [f for f in F if f not in ld and f not in sc_]
            LS = {1: (3, 6), 2: (6, 7), 3: (2, 5)}[PL]
            cap = [(P("P2LC", 1) if (i in LS and ld) else 2) for i in range(8)]
            rest = sc_ + ot_ if PL != 2 else ot_ + sc_
            i = 0
            while sum(cap) < len(rest):
                if not (i % 8 in LS and ld):
                    cap[i % 8] += 1
                i += 1
            slots = []
            for i in range(8):
                sl = [ld.pop(0)] if (i in LS and ld) else []
                sl += rest[:cap[i]]
                rest = rest[cap[i]:]
                slots.append(sl)
            assert not rest and not ld
            flat = [f for sl in slots for f in sl]
            lastsc = max([i for i, f in enumerate(flat) if f in sc_], default=-1)
            assert all(i > lastsc for i, f in enumerate(flat) if f[0] == "v")
        for i in range(8):
            t, m = i >> 1, i & 1
            a(f"{MFMA} {acc[m][t](4)}, {fb[s % NB][t](4)}, {of[s % RO][m](4)}, {'0' if s == 0 else acc[m][t](4)}")
            if PL:
                emit(slots[i])
                continue
            k = max(2, (len(F) + 7 - i) // (8 - i))
            emit(F[:k])
            F = F[k:]
        if s + OA == 18:
            stamp(a, "p2go")
    e = Asm()
    OSC = os.environ.get("OUT_SC", "sc1")
    RA_ = P("RNDA", 0)

    def epi(m):
        L = []
        for t in range(4):
            c_, b_, q = acc[m][t], bx[m][t], xv[m][t >> 1] + 2 * (t & 1)
            for h in range(2):
                if RA_:
                    L.append(f"v_cvt_pk_bf16_f32 {c_+2*h+1}, {c_+2*h}, {c_+2*h+1}")
                    L.append(f"v_lshlrev_b32 {c_+2*h}, 16, {c_+2*h+1}")
                    L.append(f"v_and_b32 {c_+2*h+1}, 0xffff0000, {c_+2*h+1}")
                if m == 0 and t < P("EPF", 3):
                    L += [f"v_fma_f32 {c_+2*h+i}, {c_+2*h+i}, {gv[m]}, {b_+2*h+i}" for i in range(2)]
                else:
                    L.append(f"v_pk_fma_f32 {(c_+2*h)(2)}, {(c_+2*h)(2)}, {gv[m](2)}, {(b_+2*h)(2)} op_sel_hi:[1,0,1]")
            for h in range(2):
                L.append(f"v_cvt_pk_bf16_f32 {q+h}, {c_+2*h}, {c_+2*h+1}")
            L.append(f"ds_write_b64 {v_sa[t]}, {q(2)} offset:{m*2048}")
        for i in range(len(L) - 3):
            if L[i].startswith("ds_write") and L[i - 1].startswith("v_cvt"):
                L[i:i + 3] = [L[i + 1], L[i + 2], L[i]]
        for j in range(2):
            L.append(f"ds_read_b128 {bx[m][j](4)}, {v_sr} offset:{m*2048 + j*1024}")
        return L

    def mf(s, m, t):
        return f"{MFMA} {acc[m][t](4)}, {fb[s % NB][t](4)}, {of[s % RO][m](4)}, {acc[m][t](4)}"

    def st_(m, j):
        return f"buffer_store_dwordx4 {bx[m][j](4)}, {v_so[j]}, {sOut(4)}, {s_ob[2*m+j]} offen {OSC}"

    wait_step(18)
    for t in range(4):
        a(mf(18, 0, t))
        for _ in range(2):
            if EP:
                a(EP.pop(0))
    assert not EP
    wpoint("yr0", asm=rare)
    for t in range(2):
        a(f"s_sub_u32 {s_k2}, {s_sel+t}, {s_k1}")
        a(f"s_cmp_lt_u32 {s_k2}, 32")
        a(f"s_cbranch_scc1 K_YROW{t}")
        a.label(f"K_NOY{t}")
        r_ = rare
        r_.label(f"K_YROW{t}")
        r_(f"v_lshlrev_b32 {v_t3}, 4, {v_g}")
        r_(f"v_add_u32 {v_t3}, {YB + 256 + t*256}, {v_t3}")
        r_(f"v_and_b32 {v_t1}, 15, {v_lane}")
        r_(f"s_and_b32 {s_t2}, {s_k2}, 15")
        r_(f"v_cmp_eq_u32 vcc, {s_t2}, {v_t1}")
        lgate(f"Y{t}", W_Y + 4 * t, 1, o=r_)
        r_("s_mov_b64 exec, vcc")
        r_(f"s_cmp_ge_u32 {s_k2}, 16")
        r_(f"s_cbranch_scc1 K_YR1_{t}")
        for m in range(2):
            if m:
                r_.label(f"K_YR1_{t}")
            for tt in range(4):
                r_(f"ds_read_b128 {bx[m][tt](4)}, {v_t3} offset:{tt*64}")
            r_("s_mov_b64 exec, -1")
            r_(f"s_branch K_NOY{t}")
    assert LQ[-1] == 19
    wait_step(19)
    stamp(a, "p2mm")
    for t in range(4):
        e(mf(19, 0, t))
    E0 = epi(0)
    for i, (s, t) in enumerate([(s, t) for s in (18, 19) for t in range(4)]):
        e(mf(s, 1, t))
        if i >= 2:
            for _ in range(P("EPK", 3)):
                if E0:
                    e(E0.pop(0))
    for l in E0:
        e(l)
    E1 = epi(1)
    if P("EPO", 1):
        for l in [l for l in E1 if l.startswith("v_")]:
            e(l)
        e("s_waitcnt lgkmcnt(0)")
        D1 = [l for l in E1 if not l.startswith("v_")]
        if P("EPO", 1) == 1:
            e(st_(0, 0))
            e(st_(0, 1))
        for l in D1:
            e(l)
        if P("EPO", 1) == 2:
            e(st_(0, 0))
            e(st_(0, 1))
    else:
        k = len(E1) // 2
        n1 = sum(1 for l in E1[:k] if l.startswith("ds_"))
        for l in E1[:k]:
            e(l)
        e(f"s_waitcnt lgkmcnt({n1})")
        e(st_(0, 0))
        e(st_(0, 1))
        for l in E1[k:]:
            e(l)
    e("s_waitcnt lgkmcnt(1)")
    e(st_(1, 0))
    e("s_waitcnt lgkmcnt(0)")
    e(st_(1, 1))
    rep = []
    a.lines += hz.fix(e.lines, rep)
    print("epilogue: %d wait states added" % rep[0])
    a.label("K_END")
    stamp_flush(a, 0, WS, "K_STX")
    a.label("K_EXIT")
    a("s_endpgm")

    seg_h0 = len(a.lines)
    wpoint("gen", align=True)
    a.label("K_P2")
    a(f"s_cmp_ge_u32 {s_w}, 4")
    a("s_cbranch_scc1 K_P2_HELP")
    a(f"v_mov_b32 {v_yb}, {YB}")
    a(f"s_cmp_lg_u32 {s_w}, 0")
    a("s_cbranch_scc1 K_P2_W13")
    row_lanes(v_so)
    a(f"s_mov_b32 {s_k1}, 0")
    a.label("K_P2_XD")
    x_base(s_k2, s_k1)
    x_dma(v_so, s_k2, s_k1)
    a(f"s_add_u32 {s_k1}, {s_k1}, 1")
    a(f"s_cmp_lt_u32 {s_k1}, 4")
    a("s_cbranch_scc1 K_P2_XD")
    a("s_waitcnt vmcnt(0)")
    a("s_branch K_P2_AUXW")
    a.label("K_P2_W13")
    wo_voff(v_wo)
    HT = sum((8 * ((p_ >> 2) & 1) + PERM[4 * (p_ >> 3) + (p_ & 3)]) << (4 * p_) for p_ in range(16))
    a(f"s_mov_b32 {s_t3}, 0x{HT & 0xffffffff:x}")
    a(f"s_mov_b32 {s_t3+1}, 0x{HT >> 32:x}")
    a(f"s_sub_u32 {s_k1}, {s_w}, 1")
    a.label("K_P2_WS")
    a(f"s_lshl_b32 {s_tmp}, {s_k1}, 2")
    a(f"s_lshr_b64 {s_px(2)}, {s_t3(2)}, {s_tmp}")
    a(f"s_and_b32 {s_px}, {s_px}, 15")
    a(f"s_mul_i32 {s_px}, {s_px}, 51200")
    a(f"s_mul_i32 {s_k2}, {s_k1}, 5120")
    for r in range(5):
        a(f"s_add_u32 {s_so}, {s_px}, {r*10240}")
        a(f"s_add_u32 m0, {s_k2}, {WO_L + r*1024}")
        a(f"s_waitcnt vmcnt({P('THR', 12)-1})")
        a(f"buffer_load_dwordx4 {v_wo}, {sWO(4)}, {s_so} offen lds")
    a(f"s_cmp_ge_u32 {s_k1}, {0 if P('WG3', 0) else 3}")
    a("s_cbranch_scc1 K_P2_WS1")
    a(f"v_mov_b32 {v_t1}, 1")
    a("s_waitcnt vmcnt(5)")
    a("s_mov_b64 exec, 1")
    a(f"ds_add_u32 {v_yb}, {v_t1} offset:52")
    a("s_mov_b64 exec, -1")
    a.label("K_P2_WS1")
    a(f"s_add_u32 {s_k1}, {s_k1}, 3")
    a(f"s_cmp_lt_u32 {s_k1}, 16")
    a("s_cbranch_scc1 K_P2_WS")
    a.label("K_P2_AUXW")
    a(f"v_mov_b32 {v_inc}, 1")
    a("s_waitcnt vmcnt(10)")
    a("s_mov_b64 exec, 1")
    a(f"ds_add_u32 {v_yb}, {v_inc} offset:72")
    a("s_mov_b64 exec, -1")
    p2_gemm_setup()
    lgate("WA", 72, 4)
    a("s_branch K_P2_GEMM")
    V.release(mV3)
    a.lines += late
    a.label("K_P2_HELP")
    a(f"s_setprio {P('HPRIO', 3)}")
    a(f"s_add_u32 {s_k2}, {s_rt2}, 1")
    a(f"s_bitcmp1_b32 {s_k2}, 1")
    a(f"s_cselect_b32 {s_k2}, 31, 15")
    a(f"v_and_b32 {v_fa}, {s_k2}, {v_lane}")
    if P("P2ROT", 0):
        a(f"s_mul_i32 {s_tmp}, {s_ct}, {P('P2ROT', 0)}")
        a(f"s_and_b32 {s_tmp}, {s_tmp}, 7")
        a(f"v_xor_b32 {v_fa}, {s_tmp}, {v_fa}")
    a(f"v_lshl_add_u32 {v_fa}, {v_fa}, 2, {s_mb}")
    a(f"s_cmp_lg_u32 {s_w}, 7")
    a("s_cbranch_scc1 K_P2_N7")
    zpoll(1)
    a(f"global_load_dword {v_smp}, {v_fa}, {WS(2)} {SC_POLL}")
    a.label("K_P2_N7")
    p2_common()
    srd(a, sY, WS, YP_BYTES, YP_OFF)
    vs = V.a(4)
    yq = V.many(14, 4)
    v_one = V.a()
    a(f"v_mov_b32 {v_one}, 1")
    a(f"s_cmp_eq_u32 {s_w}, 7")
    a("s_cbranch_scc1 K_P2_FLAGS")
    a(f"s_cmp_lg_u32 {s_w}, 6")
    a("s_cbranch_scc1 K_END")
    a(f"s_mov_b32 {s_tmp}, {SPIN}")
    a.label("K_P2_DPOLL")
    a(f"v_cmp_eq_u32 vcc, 0, {v_smp}")
    a("s_cbranch_vccz K_P2_DOK")
    a(f"s_cmp_eq_u32 {s_tmp}, {SPIN}")
    a("s_cbranch_scc1 K_P2_DNS")
    a(f"s_sleep {P('DSLEEP', 12)}")
    a.label("K_P2_DNS")
    mb_sample(v_da)
    a(f"s_sub_u32 {s_tmp}, {s_tmp}, 1")
    a("s_waitcnt vmcnt(0)")
    a(f"s_cmp_lg_u32 {s_tmp}, 0")
    a("s_cbranch_scc1 K_P2_DPOLL")
    a.label("K_P2_DOK")
    a(f"v_readlane_b32 {s_k1}, {v_smp}, 0")
    a(f"v_readlane_b32 {s_k2}, {v_smp}, 1")
    a("s_nop 3")
    for t, sk in enumerate((s_k1, s_k2)):
        a(f"s_and_b32 {s_tmp}, {sk}, 0x7ff")
        a(f"s_sub_u32 {s_tmp}, 2047, {s_tmp}")
        a(f"v_mov_b32 {vs+t}, {s_tmp}")
        a(f"v_mov_b32 {v_t2}, {sk}")
        a(f"v_and_b32 {v_t2}, 0xffff0000, {v_t2}")
        a(f"v_ashrrev_i32 {v_t3}, 31, {v_t2}")
        a(f"v_not_b32 {v_t3}, {v_t3}")
        a(f"v_or_b32 {v_t3}, 0x80000000, {v_t3}")
        a(f"v_xor_b32 {v_t2}, {v_t2}, {v_t3}")
        a(f"v_and_b32 {v_t2}, 0xffff0000, {v_t2}")
        sigmoid(a, v_t2, v_t2, v_t3)
        bf16r(a, vs + 2 + t, v_t2)
    a(f"ds_write_b128 {v_yb}, {vs(4)}")
    a(f"ds_write_b32 {v_yb}, {v_one} offset:40")
    s_y = s_tg
    a(f"s_mov_b32 {s_y}, 0")
    for k in range(4):
        a(f"v_mov_b32 {vsel+k}, {vs+k}")
    a.label("K_P2_HW")
    a(f"s_cmp_eq_u32 {s_y}, 0")
    a("s_cselect_b64 vcc, -1, 0")
    a("s_nop 1")
    a(f"v_cndmask_b32 {v_t0}, {vsel+1}, {vsel}, vcc")
    a(f"v_cndmask_b32 {v_t3}, {vsel+3}, {vsel+2}, vcc")
    a("s_nop 0")
    a(f"v_readfirstlane_b32 {s_k1}, {v_t0}")
    a("s_nop 3")
    a(f"s_sub_u32 {s_tmp}, {s_k1}, {s_row0}")
    a(f"s_cmp_lt_u32 {s_tmp}, 128")
    a("s_cbranch_scc0 K_P2_YN")
    a(f"s_call_b64 {s_pc(2)}, WP_yr0")
    xs_, gs_ = V.a(4), V.a()
    a(f"s_mul_i32 {s_tmp}, {s_k1}, 1280")
    a(f"s_lshl_b32 {s_t2}, {s_ct}, 7")
    a(f"s_add_u32 {s_tmp}, {s_tmp}, {s_t2}")
    a(f"v_and_b32 {v_t0}, 15, {v_lane}")
    a(f"v_lshlrev_b32 {v_t0}, 3, {v_t0}")
    a(f"buffer_load_dwordx2 {xs_(2)}, {v_t0}, {sX(4)}, {s_tmp} offen")
    a(f"s_lshl_b32 {s_tmp}, {s_k1}, 2")
    a(f"s_add_u32 {s_tmp}, {s_tmp}, {G_OFF}")
    a(f"v_mov_b32 {v_t0}, {s_tmp}")
    a(f"global_load_dword {gs_}, {v_t0}, {WS(2)} {SC_LD}")
    a(f"s_lshl1_add_u32 {s_tmp}, {s_ct}, {s_y}")
    a(f"s_lshl_b32 {s_tmp}, {s_tmp}, 8")
    a(f"s_add_u32 {s_tmp}, {s_tmp}, {FL_OFF + YF2}")
    a(f"v_min_u32 {v_t1}, {NSL-1}, {v_lane}")
    a(f"v_lshl_add_u32 {v_t1}, {v_t1}, 2, {s_tmp}")
    if P("YM", 2) == 1:
        lgate("Y", 32, 0xff, 1, mask=0xff)
    elif P("YM", 2) == 0:
        lgate("Y", 32, P("YG", 0x01000000), 1)
    a(f"s_mov_b32 {s_tmp}, {SPIN}")
    a.label("K_P2_YPOLL")
    a(f"global_load_dword {v_t0}, {v_t1}, {WS(2)} {SC_POLL}")
    a(f"s_sub_u32 {s_tmp}, {s_tmp}, 1")
    a("s_waitcnt vmcnt(0)")
    a(f"v_cmp_ne_u32 vcc, 1, {v_t0}")
    a("s_cbranch_vccz K_P2_YGO")
    a(f"s_bcnt1_i32_b64 {s_t2}, vcc")
    a(f"s_cmp_le_u32 {s_t2}, {P('YNEAR', 24)}")
    a("s_cbranch_scc1 K_P2_YS")
    a(f"s_sleep {P('YSLEEP', 16)}")
    a.label("K_P2_YS")
    a(f"s_sleep {P('YSLEEP2', 2)}")
    a(f"s_cmp_lg_u32 {s_tmp}, 0")
    a("s_cbranch_scc1 K_P2_YPOLL")
    a.label("K_P2_YGO")
    stamp(a, "ygo")
    a(f"v_and_b32 {v_t0}, 15, {v_lane}")
    a(f"v_lshlrev_b32 {v_t0}, 4, {v_t0}")
    a(f"v_mul_u32_u24 {v_t2}, 5120, {v_g}")
    a(f"s_mov_b32 {s_k2}, {s_y}")
    a(f"s_mul_i32 {s_t2}, {s_k2}, 2560")
    a(f"s_lshl_b32 {s_tmp}, {s_ct}, 8")
    a(f"s_add_u32 {s_tmp}, {s_tmp}, {s_t2}")
    a(f"v_add3_u32 {v_t1}, {v_t0}, {v_t2}, {s_tmp}")
    NQ = (NSL + 3) // 4
    for q in range(NQ):
        a(f"s_mov_b32 {s_so}, {q*20480}")
        a(f"buffer_load_dwordx4 {yq[q](4)}, {v_t1}, {sY(4)}, {s_so} offen {SC_LD}")
    a(f"v_sub_f32 {gs_}, 1.0, {gs_}")
    bf16r(a, gs_, gs_)
    a(f"v_lshlrev_b32 {xs_+2}, 16, {xs_+1}")
    a(f"v_and_b32 {xs_+3}, 0xffff0000, {xs_+1}")
    a(f"v_and_b32 {xs_+1}, 0xffff0000, {xs_}")
    a(f"v_lshlrev_b32 {xs_}, 16, {xs_}")
    for q in range(1, NQ):
        a(f"s_waitcnt vmcnt({NQ-1-q})")
        for e in (0, 2):
            a(f"v_pk_add_f32 {(vs+e)(2)}, {((vs if q > 1 else yq[0])+e)(2)}, {(yq[q]+e)(2)}")
    for swap in ("v_permlane16_swap_b32", "v_permlane32_swap_b32"):
        for e in range(4):
            a(f"v_mov_b32 {yq[0]+e}, {vs+e}")
        a("s_nop 0")
        for e in range(4):
            a(f"{swap} {vs+e}, {yq[0]+e}")
        for e in range(4):
            a(f"v_add_f32 {vs+e}, {vs+e}, {yq[0]+e}")
    for e in range(4):
        bf16r(a, vs + e, vs + e)
        a(f"v_mul_f32 {vs+e}, {v_t3}, {vs+e}")
        bf16r(a, vs + e, vs + e)
        a(f"v_add_f32 {vs+e}, {vs+e}, {xs_+e}")
        bf16r(a, vs + e, vs + e)
        a(f"v_mul_f32 {vs+e}, {vs+e}, {gs_}")
    a(f"s_lshl_b32 {s_tmp}, {s_k2}, 8")
    a(f"s_add_u32 {s_tmp}, {s_tmp}, {YB + 256}")
    a(f"v_add_u32 {v_t0}, {s_tmp}, {v_t0}")
    a(f"ds_write_b128 {v_t0}, {vs(4)}")
    a(f"s_lshl_b32 {s_tmp}, {s_k2}, 2")
    a(f"v_add_u32 {v_t0}, {s_tmp}, {v_yb}")
    a(f"ds_write_b32 {v_t0}, {v_one} offset:{W_Y}")
    stamp(a, "yrdy")
    a.label("K_P2_YN")
    a(f"s_add_u32 {s_y}, {s_y}, 1")
    a(f"s_cmp_lt_u32 {s_y}, 2")
    a("s_cbranch_scc1 K_P2_HW")
    a("s_branch K_END")
    wpoint("flags")
    a.label("K_P2_FLAGS")
    if P("SPOLL", 0):
        sp = R("s", 44)
        s_dup = s_hg
        a(f"s_cmp_eq_u32 {s_k2}, 15")
        a(f"s_cselect_b32 {s_dup}, 16, 0")
        a(f"s_mov_b32 {s_tmp}, {SPIN}")
        stamp(a, "f1")
        a.label("K_SPL")
        a(f"s_load_dwordx16 {sp(16)}, {WS(2)}, {s_mb} glc")
        a(f"s_load_dwordx16 {(sp+16)(16)}, {WS(2)}, {s_mb} offset:64 glc")
        a("s_waitcnt lgkmcnt(0)")
        n = 16
        while n >= 2:
            for i in range(0, n, 2):
                a(f"s_or_b64 {(sp+i)(2)}, {(sp+i)(2)}, {(sp+n+i)(2)}")
            n //= 2
        a(f"s_or_b32 {sp}, {sp}, {sp+1}")
        a(f"s_lshl_b32 {sp+1}, {sp}, {s_dup}")
        a(f"s_or_b32 {sp}, {sp}, {sp+1}")
        a(f"s_sub_u32 {s_tmp}, {s_tmp}, 1")
        a(f"s_cselect_b32 {sp}, -1, {sp}")
        a(f"v_mov_b32 {v_t0}, {sp}")
        a(f"ds_write_b32 {v_yb}, {v_t0} offset:32")
        a(f"s_cmp_eq_u32 {sp}, -1")
        a("s_cbranch_scc1 K_P2_FGO")
        a(f"s_sleep {P('SSLEEP', 2)}")
        a(f"s_and_b32 {sp}, {sp}, 0x{P('SMASK', 0xffffffff):x}")
        a("s_cbranch_scc1 K_SPL")
        a(f"s_sleep {P('SSLEEP0', 12)}")
        a("s_branch K_SPL")
    a("s_mov_b32 exec_hi, 0")
    a("s_waitcnt vmcnt(0)")
    stamp(a, "f1")
    a(f"s_mov_b32 {s_tmp}, {SPIN}")
    a.label("K_P2_FCHK")
    a(f"v_cmp_eq_u32 vcc, 1, {v_smp}")
    a("s_nop 1")
    a(f"v_mov_b32 {v_t0}, vcc_lo")
    a(f"ds_write_b32 {v_yb}, {v_t0} offset:32")
    a("s_cmp_eq_u32 vcc_lo, -1")
    a("s_cbranch_scc1 K_P2_FGO")
    a("s_cmp_lg_u32 vcc_lo, 0")
    a("s_cbranch_scc1 K_P2_FS")
    a(f"s_sleep {P('FSLEEP0', 4)}")
    a.label("K_P2_FS")
    a(f"s_sleep {P('FSLEEP', 6)}")
    a(f"global_load_dword {v_smp}, {v_fa}, {WS(2)} {SC_POLL}")
    a(f"s_sub_u32 {s_tmp}, {s_tmp}, 1")
    a("s_waitcnt vmcnt(0)")
    a("s_cbranch_scc0 K_P2_FCHK")
    a(f"v_mov_b32 {v_t0}, -1")
    a(f"ds_write_b32 {v_yb}, {v_t0} offset:32")
    a.label("K_P2_FGO")
    stamp(a, "fall")
    if STAMP and "npoll" in STAMP_SEL:
        a(f"s_sub_u32 s{STB + 2*(1 + STAMP_SEL.index('npoll'))}, {SPIN}, {s_tmp}")
    a("s_mov_b64 exec, -1")
    a("s_branch K_END")
    seg_h1 = len(a.lines)
    L = a.lines
    a.lines = L[:seg_aux0] + L[seg_aux1:seg_h0] + spin.lines + rare.lines + L[seg_h0:seg_h1] + L[seg_aux0:seg_aux1]
    a.label("K_CODE_END")
    return V.high, S.high


def kd(name, vg, sg):
    vg = (vg + 7) // 8 * 8
    return """.amdhsa_kernel %s
  .amdhsa_next_free_vgpr %d
  .amdhsa_next_free_sgpr %d
  .amdhsa_accum_offset %d
  .amdhsa_group_segment_fixed_size 0
  .amdhsa_kernarg_size 96
  .amdhsa_user_sgpr_count 2
  .amdhsa_user_sgpr_kernarg_segment_ptr 1
  .amdhsa_system_sgpr_workgroup_id_x 1
.end_amdhsa_kernel""" % (name, vg, 100 if STAMP else max(sg, 16), vg)


def main():
    a = Asm()
    for l in HEADER:
        a.raw(l)
    a.raw("; @launch grid=(256,1,1) block=(512,1,1) lds=%d" % LDS_BYTES)
    a.raw('.amdgcn_target "amdgcn-amd-amdhsa--gfx950"')
    a.raw(".text")
    v1, s1 = gen(a)
    a.raw('.section .rodata,"a"')
    a.raw(".p2align 6")
    a.raw(kd(KNAME, v1, s1))
    out = sys.argv[1] if len(sys.argv) > 1 else os.path.join(os.path.dirname(os.path.abspath(__file__)), "..", NAME + ".s")
    open(out, "w").write(a.text())
    print("wrote", out, "v%d s%d" % (v1, s1))


if __name__ == "__main__":
    main()
```
